```python
import torch

def _softmax(x, axis=-1):
    return torch.softmax(x, dim=axis)
def _gelu(x):
    return torch.nn.functional.gelu(x, approximate="tanh")
def _silu(x):
    return torch.nn.functional.silu(x)
def _sigmoid(x):
    return torch.sigmoid(x)
def _layernorm(x, axis=-1, eps=1e-5):
    m = x.mean(dim=axis, keepdim=True)
    v = x.var(dim=axis, keepdim=True, unbiased=False)
    return (x - m) / torch.sqrt(v + eps)
def _scatter_add(tgt, idx, src, axis=0):
    return tgt.clone().index_add_(axis, idx, src)
def _segment_sum(src, seg, n):
    out = torch.zeros((n,) + src.shape[1:], dtype=src.dtype)
    return out.index_add_(0, seg, src)
def _pad(x, pw):
    flat = tuple(v for pair in reversed(pw) for v in pair)
    return torch.nn.functional.pad(x, flat)

kernel_name = 'concat_heads__ssm_conv_s4d__spectral_gfnet__prompt'

def setup_inputs():

    _w = (lambda a: (lambda t: t.to(torch.bfloat16) if t.is_floating_point() else t)(torch.as_tensor(a)))
    def _A_setup():
        Bsz, L, D, N = 1, 2048, 448, 256
        return {
            "u": _w((lambda *s: torch.randn(*s, dtype=torch.bfloat16) * 0.05)(Bsz, L, D)),
            "log_A_real": _w((lambda *s: torch.randn(*s, dtype=torch.bfloat16) * 6.4)(D, N) * 0.5),
            "A_imag": _w((lambda *s: torch.randn(*s, dtype=torch.bfloat16) * 0.05)(D, N) * 3.14),
            "C_real": _w((lambda *s: torch.randn(*s, dtype=torch.bfloat16) * 0.05)(D, N) / N ** 0.5),
            "C_imag": _w((lambda *s: torch.randn(*s, dtype=torch.bfloat16) * 0.05)(D, N) / N ** 0.5),
            "log_dt": _w((lambda *s: torch.randn(*s, dtype=torch.bfloat16) * 0.05)(D) * 0.5 - 4.0),
            "D_skip": _w((lambda *s: torch.randn(*s, dtype=torch.bfloat16) * 0.05)(D)),
        }
    _A_in = _A_setup()

    def _B_setup():
        B, S, D = 1, 2048, 448
        Df = D // 2 + 1
        return {
            "x": _w((lambda *s: torch.randn(*s, dtype=torch.bfloat16) * 0.05)(B, S, D)),
            "w_r": _w((lambda *s: torch.randn(*s, dtype=torch.bfloat16) * 0.8)(S, Df) * 0.02),
            "w_i": _w((lambda *s: torch.randn(*s, dtype=torch.bfloat16) * 0.8)(S, Df) * 0.02),
        }
    _B_in = _B_setup()

    return {
        "A_u": _A_in["u"],
        "A_log_A_real": _A_in["log_A_real"],
        "A_A_imag": _A_in["A_imag"],
        "A_C_real": _A_in["C_real"],
        "A_C_imag": _A_in["C_imag"],
        "A_log_dt": _A_in["log_dt"],
        "A_D_skip": _A_in["D_skip"],
        "B_x": _B_in["x"],
        "B_w_r": _B_in["w_r"],
        "B_w_i": _B_in["w_i"],
    }

def reference(A_u, A_log_A_real, A_A_imag, A_C_real, A_C_imag, A_log_dt, A_D_skip, B_x, B_w_r, B_w_i):
    def _A_ref(u, log_A_real, A_imag, C_real, C_imag, log_dt, D_skip):
        L = u.shape[1]
        dt = torch.exp(log_dt)
        A = -torch.exp(log_A_real) + 1j * A_imag
        C = (C_real + 1j * C_imag) * dt[:, None]
        pos = (lambda x, dt: x.to(dt))(torch.arange(L), log_dt.dtype)
        P = torch.exp((A * dt[:, None])[:, :, None] * pos[None, None, :])
        K = 2.0 * torch.einsum("dn,dnl->dl", C, P).real
        L2 = 2 * L
        u_t = (lambda x, *d: x.permute(*d))(u, 0, 2, 1)
        Kf = (lambda x, *a, **k: torch.fft.rfft(x.float(), *a, **k))(K, L2)
        Uf = (lambda x, *a, **k: torch.fft.rfft(x.float(), *a, **k))(u_t, L2)
        y = (lambda x, *a, **k: torch.fft.irfft(x, *a, **k).to(torch.bfloat16))(Uf * Kf[None, :, :], L2)[:, :, :L]
        y = (lambda x, *d: x.permute(*d))(y, 0, 2, 1)
        return y + u * D_skip[None, None, :]

    def _B_ref(x, w_r, w_i):
        B, S, D = x.shape
        X = (lambda x, axes=(-2,-1): torch.fft.rfft2(x.float(), dim=axes))(x, axes=(-2, -1))
        W = w_r + 1j * w_i
        X = X * W
        y = (lambda x, s, axes=(-2,-1): torch.fft.irfft2(x, s=s, dim=axes).to(torch.bfloat16))(X, (S, D), axes=(-2, -1))
        return y

    a = _A_ref(A_u, A_log_A_real, A_A_imag, A_C_real, A_C_imag, A_log_dt, A_D_skip)
    b = _B_ref(B_x, B_w_r, B_w_i)
    return torch.concatenate([a, b], axis=-1)
```

```python
import re, struct
def f2h(x):
    return "0x%08x" % struct.unpack("<I", struct.pack("<f", x))[0]

TRANS = ("v_exp_f32", "v_log_f32", "v_rcp_f32", "v_rsq_f32", "v_sqrt_f32", "v_sin_f32", "v_cos_f32")
def regs(tok):
    t = tok.strip()
    t = t.lstrip("-")
    if t.startswith("abs(") or t.startswith("neg("): t = t[4:-1]
    t = t.strip("|")
    m = re.fullmatch(r"([vsa])(\d+)", t)
    if m: return m.group(1), {int(m.group(2))}
    m = re.fullmatch(r"([vsa])\[(\d+):(\d+)\]", t)
    if m: return m.group(1), set(range(int(m.group(2)), int(m.group(3)) + 1))
    if t == "vcc": return "s", {106, 107}
    if t == "exec": return "s", {126, 127}
    if t == "m0": return "s", {124}
    return None, set()

class Ins:
    def __init__(s, text):
        s.text = text
        body = text.split(";")[0].strip()
        parts = body.split(None, 1)
        s.mn = parts[0]
        rest = parts[1] if len(parts) > 1 else ""
        ops = [o.strip() for o in re.split(r",(?![^\[]*\])", rest)] if rest else []
        if ops:
            last = ops[-1].split()
            ops[-1] = last[0] if last else ""
            s.mods = " ".join(last[1:])
        else: s.mods = ""
        s.ops = ops
        mn = s.mn
        s.vw, s.vr, s.sw, s.sr = set(), set(), set(), set()
        s.cls = "other"
        def add(tok, w=False, r=False):
            k, st = regs(tok)
            if k == "v":
                if w: s.vw |= st
                if r: s.vr |= st
            elif k == "s":
                if w: s.sw |= st
                if r: s.sr |= st
        s.A = s.B = s.C = set()
        if mn.startswith("v_mfma"):
            s.cls = "mfma"
            add(ops[0], w=True)
            for o in ops[1:4]: add(o, r=True)
            s.AB = regs(ops[1])[1] | regs(ops[2])[1]
            s.C = regs(ops[3])[1] if regs(ops[3])[0] == "v" else set()
        elif mn.startswith("v_"):
            s.cls = "valu"
            if mn.startswith("v_swap") or mn.startswith("v_permlane"):
                add(ops[0], w=True, r=True); add(ops[1], w=True, r=True)
            elif mn.startswith(("v_add_co", "v_sub_co", "v_addc_co", "v_subb_co")):
                add(ops[0], w=True); add(ops[1], w=True)
                for o in ops[2:]: add(o, r=True)
            else:
                add(ops[0], w=True)
                for o in ops[1:]: add(o, r=True)
                if mn.startswith(("v_fmac", "v_mac")): add(ops[0], r=True)
                if mn.startswith("v_cndmask") and len(ops) == 3: s.sr |= {106, 107}
        elif mn.startswith("ds_"):
            s.cls = "ds"
            if mn.startswith("ds_read"):
                add(ops[0], w=True)
                for o in ops[1:]: add(o, r=True)
            else:
                for o in ops: add(o, r=True)
            if "addtid" in mn: s.sr.add(124)
        elif mn.startswith(("buffer_", "global_")):
            s.cls = "vmem"
            lds = "lds" in s.mods.split()
            if "load" in mn and not lds:
                add(ops[0], w=True)
                for o in ops[1:]: add(o, r=True)
            else:
                for o in ops: add(o, r=True)
            if lds: s.sr.add(124); s.ldsdma = True
            s.wide_store = ("store" in mn) and (mn.endswith("x4") or mn.endswith("x3"))
            s.data = regs(ops[0])[1] if mn.startswith("buffer_store") else (regs(ops[1])[1] if mn.startswith("global_store") else set())
        elif mn.startswith("s_"):
            s.cls = "salu"
            if mn in ("s_nop", "s_waitcnt", "s_barrier", "s_sleep", "s_endpgm", "s_setprio", "s_branch") or mn.startswith(("s_cbranch", "s_cmp", "s_setvskip")):
                for o in ops: add(o, r=True)
            else:
                add(ops[0], w=True)
                for o in ops[1:]: add(o, r=True)
        s.states = 1
        if mn == "s_nop": s.states = int(ops[0], 0) + 1
        s.trans = mn.replace("_e32", "").replace("_e64", "") in TRANS

def need(p, c):
    n = 0
    if p.cls == "valu":
        if p.trans and c.cls == "valu" and not c.trans and (p.vw & c.vr): n = max(n, 1)
        if p.trans and c.cls in ("ds", "vmem", "mfma") and (p.vw & c.vr): n = max(n, 1)
        if c.cls == "mfma" and (p.vw & c.vr): n = max(n, 2)
        if p.sw:
            if c.cls == "valu" and (p.sw & c.sr): n = max(n, 2)
            if c.cls == "vmem" and (p.sw & c.sr): n = max(n, 5)
            if c.cls == "salu" and (p.sw & c.sr): n = max(n, 1)
            if (p.sw & {126, 127}) and c.cls in ("mfma",): n = max(n, 4)
        if c.mn.startswith(("v_readfirstlane", "v_readlane")) and (p.vw & c.vr): n = max(n, 1)
        if (c.mn.startswith("v_permlane") or "dpp" in c.mn) and (p.vw & c.vr): n = max(n, 2)
    if p.cls == "mfma":
        if c.cls == "valu" and (p.vw & (c.vr | c.vw)): n = max(n, 8)
        if c.cls in ("ds", "vmem") and (p.vw & (c.vr | c.vw)): n = max(n, 8)
        if c.cls == "mfma":
            if p.vw & c.AB: n = max(n, 8)
            if (p.vw & c.C) and p.vw != c.C: n = max(n, 6)
            if (p.vw & c.vw) and not (p.vw & c.C): n = max(n, 6)
        if c.cls == "valu" and (p.C & c.vw): n = max(n, 3)
    if p.cls == "salu" and (124 in p.sw) and (124 in c.sr) and c.cls in ("ds", "vmem"): n = max(n, 1)
    if p.cls == "vmem" and getattr(p, "wide_store", False):
        if c.cls == "valu" and (p.data & c.vw): n = max(n, 2)
        elif (p.data & c.vw): n = max(n, 1)
    if p.cls == "ds" and c.cls == "valu" and p.mn.startswith("ds_write") and (p.vr & c.vw) and ("b128" in p.mn or "b96" in p.mn):
        n = max(n, 1)
    return n

class Asm:
    def __init__(s):
        s.out = []; s.hist = []; s.nops = 0
    def raw(s, t): s.out.append(t)
    def uid(s):
        s.n = getattr(s, 'n', 0) + 1; return s.n
    def label(s, name): s.out.append(name + ":")
    def __call__(s, text):
        for line in text.strip("\n").split("\n"):
            line = line.strip()
            if not line or line.startswith(";"):
                if line: s.out.append("    " + line)
                continue
            if line.split(";")[0].strip().endswith(":"):
                s.out.append(line); continue
            if line in ("AONLY", "REMAP", "KSTAMP"):
                s.out.append("    " + line); continue
            c = Ins(line)
            dist = 0; req = 0
            for p in reversed(s.hist[-12:]):
                r = need(p, c) - dist
                req = max(req, r)
                dist += p.states
            if req > 0:
                nop = Ins(f"s_nop {req-1}")
                s.out.append(f"    s_nop {req-1}"); s.hist.append(nop); s.nops += req
            s.out.append("    " + line); s.hist.append(c)
    def text(s): return "\n".join(s.out) + "\n"
```

```python
import sys, math
from asmlib import Asm, f2h
KNAME = "concat_heads__ssm_conv_s4d__spectral_gfnet__prompt_kernel"
Z1, Z2, UT, YT, STAMP = 0x000000, 0x200000, 0x400000, 0x600000, 0x1000000
PSTR = 8832
NROW, NT0, NT1, NA0, NWG = 128, 128, 265, 265, 489
LDS_BYTES = 73728
SPIN_MAX = 200000

def V(a, n=1): return f"v{a}" if n == 1 else f"v[{a}:{a+n-1}]"
def S(a, n=1): return f"s{a}" if n == 1 else f"s[{a}:{a+n-1}]"

class G:
    def __init__(s, stamps=False, opts=None):
        s.a = Asm(); s.stamps = stamps; s.o = opts or {}
        s.nst = 0
    def stamp(s, i):
        if s.stamps: s.a(f"s_memrealtime {S(80+2*i,2)}")
    def stamp_flush(s):
        if not s.stamps: return
        a = s.a
        a("s_waitcnt lgkmcnt(0) vmcnt(0)")
        for i in range(10): a(f"v_mov_b32 v{4+i}, s{80+2*i}")
        a(f"""v_mov_b32 v14, 0
v_mov_b32 v15, s70
v_mov_b32 v2, 0
s_lshl_b32 s64, s2, 3
s_add_u32 s64, s64, s3
s_lshl_b32 s64, s64, 6
s_add_u32 s64, s64, {STAMP}
buffer_store_dwordx4 v[4:7], v2, s[32:35], s64 offen
buffer_store_dwordx4 v[8:11], v2, s[32:35], s64 offen offset:16
buffer_store_dwordx4 v[12:15], v2, s[32:35], s64 offen offset:32
s_waitcnt vmcnt(0)""")
    def srd(s, base, size):
        s.a(f"s_mov_b32 s{base+2}, {size}\ns_mov_b32 s{base+3}, 0x20000")
    def mfma(s, d, A, B, c=None):
        s.a(f"v_mfma_f32_16x16x32_bf16 {V(d,4)}, {V(A,4)}, {V(B,4)}, {'0' if c is None else V(c,4)}")
    def twiddle(s, dre, dim, co, si, P, conj, T=6):
        a = s.a
        for r in range(4):
            a(f"v_mul_f32 v{T+r}, v{dim+r}, v{si+r}")
            a(f"v_mul_f32 v{T+4+r}, v{dre+r}, v{si+r}")
        for r in range(4):
            a(f"v_fma_f32 v{dre+r}, v{dre+r}, v{co+r}, {'-' if conj else ''}v{T+r}")
            a(f"v_fma_f32 v{dim+r}, v{dim+r}, v{co+r}, {'' if conj else '-'}v{T+4+r}")
        for r in range(4):
            a(f"v_cvt_pk_bf16_f32 v{P[r]}, v{dre+r}, v{dim+r}")
    def sincos4(s, a0, step, co, si, T=6):
        a = s.a
        a(f"v_add_f32 v{T+1}, v{a0}, v{step}")
        a(f"v_fma_f32 v{T+2}, v{step}, 2.0, v{a0}")
        a(f"v_add_f32 v{T+3}, v{T+2}, v{step}")
        regs = [a0, T+1, T+2, T+3]
        for r in range(4):
            a(f"v_cos_f32 v{co+r}, v{regs[r]}")
            a(f"v_sin_f32 v{si+r}, v{regs[r]}")
    def nonce_issue(s, vn):
        s.a(f"buffer_load_dword v{vn}, off, s[36:39], 0 sc1")
    def nonce_get(s, vn, tag):
        s.a(f"""
L_nonce_{tag}:
v_readfirstlane_b32 s60, v{vn}
s_cmp_lg_u32 s60, 0
s_cbranch_scc1 L_nonce_ok_{tag}
s_add_u32 s70, s70, 1
s_cmp_gt_u32 s70, {SPIN_MAX}
s_cbranch_scc1 L_exit
s_sleep 2
buffer_load_dword v{vn}, off, s[36:39], 0 sc1
s_waitcnt vmcnt(0)
s_branch L_nonce_{tag}
L_nonce_ok_{tag}:""")
    def spin(s, tag, sleep):
        s.a(f"""s_add_u32 s70, s70, 1
s_cmp_gt_u32 s70, {SPIN_MAX}
s_cbranch_scc1 L_exit
s_sleep {sleep}
s_branch L_poll_{tag}""")
    def tagcheck(s, regs, tag, sleep, mask="s[62:63]"):
        a = s.a
        a(f"v_cmp_ne_u32 vcc, s60, v{regs[0]}")
        for i, r in enumerate(regs[1:]):
            a(f"v_cmp_ne_u32 {S(72+2*(i%4),2)}, s60, v{r}")
            if i % 4 == 3 or i == len(regs) - 2:
                for j in range(i % 4 + 1): a(f"s_or_b64 vcc, vcc, {S(72+2*j,2)}")
        a(f"s_and_b64 vcc, vcc, {mask}\ns_cbranch_scc0 L_got_{tag}")
        s.spin(tag, sleep)
        a(f"L_got_{tag}:")

    def entry(s):
        a = s.a
        s.stamp(0)
        a(f"""
s_cmp_ge_u32 s2, {NWG}
s_cbranch_scc1 L_end
s_load_dwordx2 s[32:33], s[0:1], 96
s_load_dwordx2 s[36:37], s[0:1], 88
v_lshrrev_b32 v4, 6, v0
v_and_b32 v1, 15, v0
v_readfirstlane_b32 s3, v4
v_bfe_u32 v2, v0, 4, 2
v_and_b32 v3, 63, v0
s_mov_b32 s70, 0
""")
        s.srd(32, "0x10000000"); s.srd(36, 256)
        a(f"""
s_cmp_lg_u32 s3, 7
s_cbranch_scc1 L_nopf
s_getpc_b64 s[64:65]
v_lshlrev_b32 v4, 7, v3
global_load_dword v124, v4, s[64:65]
v_add_u32 v4, 0x2000, v4
global_load_dword v125, v4, s[64:65]
L_nopf:
v_cmp_eq_u32 s[62:63], 15, v1
v_cvt_f32_u32 v4, v1
v_lshlrev_b32 v5, 2, v2
v_cvt_f32_u32 v5, v5
s_cmp_ge_u32 s2, {NA0}
s_cbranch_scc1 L_A
""")
    def b_prologue(s):
        a = s.a
        a(f"""
s_setprio 2
s_load_dwordx2 s[44:45], s[0:1], 80
s_load_dwordx2 s[48:49], s[0:1], 64
s_load_dwordx2 s[52:53], s[0:1], 72
s_and_b32 s66, s2, 15          ; f1
s_lshr_b32 s67, s2, 4          ; k2
""")
        s.srd(44, 3670016); s.srd(48, 921600); s.srd(52, 921600); s.srd(40, 1835008)
        a(f"""
s_mul_i32 s64, s67, 28
s_sub_u32 s65, 448, s64
v_add_u32 v6, s64, v1
v_sub_u32 v7, s65, v1
s_cmp_lt_u32 s67, 8
s_cselect_b64 vcc, -1, 0
v_and_b32 v8, 1, v2
v_lshrrev_b32 v9, 1, v2
v_cndmask_b32 v6, v7, v6, vcc
v_mul_u32_u24 v8, {1024*450}, v8
v_mul_u32_u24 v9, {16*450}, v9
v_lshlrev_b32 v6, 1, v6
v_add3_u32 v6, v6, v8, v9
s_lshl_b32 s64, s3, 5
s_add_u32 s64, s64, s66
s_mul_i32 s68, s64, 450        ; W soffset r=0
v_lshlrev_b32 v22, 19, v2
v_lshl_add_u32 v22, v1, 2, v22     ; g*524288 + 4c
v_lshlrev_b32 v7, 4, v3            ; lane*16
s_cmp_ge_u32 s2, {NT0}
s_cbranch_scc1 L_T
""")
    def w_loads(s):
        a = s.a
        for r in range(4):
            a(f"buffer_load_short_d16_hi v{14+r}, v6, s[48:51], s68 offen")
            a(f"buffer_load_short_d16_hi v{18+r}, v6, s[52:55], s68 offen")
            if r < 3: a(f"s_add_u32 s68, s68, {256*450}")
    def f16_consts(s):
        a = s.a
        a(f"v_mul_f32 v28, {f2h(1/16)}, v4\nv_mul_f32 v29, v28, v5")
        s.sincos4(29, 28, 96, 100)
        for j in range(4):
            a(f"v_cvt_pk_bf16_f32 v{32+j}, v{96+j}, v{100+j}")
            a(f"v_cvt_pk_bf16_f32 v{36+j}, -v{100+j}, v{96+j}")
    def lds_addrs(s):
        a = s.a
        T1, E = 16896, 37376
        a(f"""
v_mul_u32_u24 v23, 5120, v2
v_mul_u32_u24 v8, 80, v1
s_lshl_b32 s64, s3, 3
s_add_u32 s64, s64, {T1}
v_add3_u32 v23, v23, v8, s64          ; T write: g*5120 + 80c + 8w
s_mul_i32 s64, s3, 2560
s_add_u32 s64, s64, {T1}
v_lshl_add_u32 v24, v2, 4, v8
v_add_u32 v24, s64, v24               ; T read: 2w*1280 + 80c + 16g
v_lshlrev_b32 v25, 11, v2
v_lshl_add_u32 v25, v1, 2, v25        ; Z1 poll: g*2048 + 4c
v_mul_u32_u24 v8, 48, v1
v_mul_u32_u24 v26, 3072, v2
s_lshl_b32 s64, s3, 2
s_add_u32 s64, s64, {E}
v_add3_u32 v26, v26, v8, s64          ; E b32: 4g*768 + 48c + 4w
v_lshrrev_b32 v9, 1, v2
v_mul_u32_u24 v9, 768, v9
v_and_b32 v10, 1, v2
v_lshl_add_u32 v9, v10, 4, v9
s_mul_i32 s64, s3, 1536
s_add_u32 s64, s64, {E}
v_add3_u32 v27, v9, v8, s64           ; E b128
""")
    def row_s1(s):
        a = s.a
        a(f"""
s_load_dwordx2 s[40:41], s[0:1], 56
s_lshl_b32 s64, s3, 8
s_add_u32 s64, s64, s2
s_mul_i32 s64, s64, 896
s_lshl_b32 s65, s3, 11
s_mov_b32 m0, s65
s_waitcnt lgkmcnt(0)
buffer_load_dwordx4 v7, s[40:43], s64 offen lds
s_add_u32 s64, s64, {128*896}
s_add_u32 m0, s65, 1024
buffer_load_dwordx4 v7, s[40:43], s64 offen lds
""")
        a(f"""
s_add_u32 s64, s2, s3
s_cmp_lg_u32 s64, 0
s_cbranch_scc1 L_nopub
s_memrealtime s[64:65]
s_waitcnt lgkmcnt(0)
s_lshr_b32 s65, s64, 13
s_and_b32 s65, s65, 0x3fff
s_lshl_b32 s65, s65, 16
s_and_b32 s64, s64, 0x1fff
s_or_b32 s64, s64, s65
s_or_b32 s64, s64, 0x2000
v_mov_b32 v8, s64
s_mov_b64 exec, 1
buffer_store_dword v8, off, s[36:39], 0 sc1
s_mov_b64 exec, -1
L_nopub:
""")
        s.stamp(1)
        s.f16_consts()
        a(f"v_mul_f32 v28, {f2h(1/28)}, v4\nv_mul_f32 v29, v28, v5\nv_fmamk_f32 v30, v28, {f2h(16.0)}, v29")
        s.sincos4(29, 28, 96, 104)
        s.sincos4(30, 28, 100, 108)
        a("v_cmp_eq_u32 vcc, 3, v2")
        for jj in range(4):
            a(f"v_cvt_pk_bf16_f32 v{40+jj}, v{96+2*jj}, v{97+2*jj}")
            a(f"v_cvt_pk_bf16_f32 v{44+jj}, -v{104+2*jj}, -v{105+2*jj}")
        for r in (42, 43, 46, 47): a(f"v_cndmask_b32 v{r}, v{r}, 0, vcc" if False else f"v_cndmask_b32_e64 v{r}, v{r}, 0, vcc")
        a("v_cmp_lt_u32 vcc, 7, v1\nv_mov_b32 v28, 0x80008000\nv_cndmask_b32 v28, 0, v28, vcc")
        for j in range(4): a(f"v_xor_b32 v{48+j}, v{36+j}, v28")
        a(f"v_mul_f32 v28, {f2h(1/448)}, v4\nv_mul_f32 v29, v28, v5")
        s.sincos4(29, 28, 52, 56)
        s.nonce_issue(31)
        s.w_loads()
        a(f"v_cvt_f32_u32 v28, s2\nv_mul_f32 v28, {f2h(1/2048)}, v28\nv_mul_f32 v29, v28, v5")
        s.sincos4(29, 28, 60, 64)
        s.lds_addrs()
        a(f"""
s_lshl_b32 s65, s3, 11
v_lshlrev_b32 v28, 3, v3
v_add_u32 v28, s65, v28
s_waitcnt vmcnt(9)
""")
        s.stamp(2)
        a(f"""
ds_read_b64_tr_b16 v[96:97], v28
ds_read_b64_tr_b16 v[98:99], v28 offset:512
ds_read_b64_tr_b16 v[100:101], v28 offset:1024
ds_read_b64_tr_b16 v[102:103], v28 offset:1536
s_waitcnt lgkmcnt(2)
""")
        s.mfma(104, 96, 40); s.mfma(108, 96, 44)
        a("s_waitcnt lgkmcnt(0)")
        s.mfma(112, 100, 40); s.mfma(116, 100, 44)
        s.twiddle(104, 108, 52, 56, [96, 97, 98, 99], False)
        s.mfma(104, 32, 96); s.mfma(108, 48, 96)
        s.twiddle(112, 116, 52, 56, [100, 101, 102, 103], False)
        s.mfma(112, 32, 100); s.mfma(116, 48, 100)
        for r in range(4): a(f"v_cvt_pk_bf16_f32 v{120+2*r}, v{104+r}, v{108+r}")
        for r in range(4): a(f"v_cvt_pk_bf16_f32 v{121+2*r}, v{112+r}, v{116+r}")
        for r in range(4): a(f"ds_write_b64 v23, {V(120+2*r,2)} offset:{1280*r}")
        a("s_waitcnt vmcnt(8)")
        s.nonce_get(31, "row")
        a(f"""
s_waitcnt lgkmcnt(0)
s_barrier
ds_read_b128 v[96:99], v24
ds_read_b128 v[100:103], v24 offset:1280
s_lshl_b32 s64, s2, 6
s_lshl_b32 s65, s3, 14
s_add_u32 s64, s64, s65            ; sigma*64 + 2w*8192
v_mov_b32 v31, s60
s_waitcnt lgkmcnt(1)
""")
        s.mfma(104, 32, 96); s.mfma(108, 36, 96)
        a("s_waitcnt lgkmcnt(0)")
        s.mfma(112, 32, 100); s.mfma(116, 36, 100)
        for t, (dr, di, P) in enumerate(((104, 108, 120), (112, 116, 124))):
            s.twiddle(dr, di, 60, 64, [P, P+1, P+2, P+3], False)
            for r in range(4): a(f"v_cndmask_b32 v{P+r}, v{P+r}, v31, s[62:63]")
            for r in range(4):
                a(f"s_add_u32 s65, s64, {Z1 + t*8192 + r*131072}")
                a(f"buffer_store_dword v{P+r}, v22, s[32:35], s65 offen sc1")
        s.stamp(3)
        a("s_branch L_col")
    def t_u(s):
        a = s.a
        a(f"""
L_T:
s_load_dwordx2 s[40:41], s[0:1], 0
s_load_dwordx2 s[56:57], s[0:1], 48
s_sub_u32 s69, s2, 128
s_mul_i32 s64, s69, 15
s_add_u32 s64, s64, s3
s_mul_i32 s64, s64, 896
s_mul_i32 s65, s3, 1040
s_mov_b32 m0, s65
s_waitcnt lgkmcnt(0)
buffer_load_dwordx4 v7, s[40:43], s64 offen lds
s_add_u32 s64, s64, {8*896}
s_add_u32 m0, s65, {8*1040}
buffer_load_dwordx4 v7, s[40:43], s64 offen lds
""")
        s.srd(56, 896)
        a(f"""
v_lshlrev_b32 v30, 4, v0           ; tid*16
s_mul_i32 s71, s69, 14336
v_cmp_gt_u32 vcc, 384, v0
s_mov_b64 s[30:31], vcc
s_cmp_ge_u32 s2, 256
s_cbranch_scc1 L_T_only1
v_mov_b32 v96, -1
v_mov_b32 v97, -1
v_mov_b32 v98, -1
v_mov_b32 v99, -1
s_add_u32 s64, s71, {YT}
buffer_store_dwordx4 v[96:99], v30, s[32:35], s64 offen sc1
s_add_u32 s64, s64, 8192
s_mov_b64 exec, s[30:31]
s_cbranch_execz L_T_p1
buffer_store_dwordx4 v[96:99], v30, s[32:35], s64 offen sc1
L_T_p1:
s_mov_b64 exec, -1
L_T_only1:
""")
        a(f"""
s_add_u32 s64, s71, 8192
buffer_load_dwordx4 v[104:107], v30, s[40:43], s71 offen
buffer_load_dwordx4 v[108:111], v30, s[40:43], s64 offen
v_mul_u32_u24 v28, {(1<<20)//56+1}, v0
v_lshrrev_b32 v28, 20, v28
v_mul_u32_u24 v29, 56, v28
v_sub_u32 v29, v0, v29             ; grp0
v_add_u32 v8, 512, v0
v_mul_u32_u24 v9, {(1<<20)//56+1}, v8
v_lshrrev_b32 v9, 20, v9           ; row1
v_mul_u32_u24 v10, 56, v9
v_sub_u32 v10, v8, v10             ; grp1
v_lshlrev_b32 v29, 4, v29
v_lshlrev_b32 v10, 4, v10
buffer_load_dwordx4 v[112:115], v29, s[56:59], 0 offen
buffer_load_dwordx4 v[116:119], v10, s[56:59], 0 offen
""")
        a(f"""
v_mul_u32_u24 v120, 912, v28
v_add_u32 v120, v120, v29
v_mul_u32_u24 v121, 912, v9
v_add_u32 v121, v121, v10
v_mul_u32_u24 v122, 1792, v28
v_add_u32 v122, v122, v29
v_mul_u32_u24 v123, 1792, v9
v_add_u32 v123, v123, v10
""")
        s.stamp(1)
        s.f16_consts()
        s.lds_addrs()
        s.nonce_issue(31)
        s.w_loads()
        a(f"""
v_mul_u32_u24 v28, 1040, v1
v_lshl_add_u32 v28, v2, 2, v28
s_lshl_b32 s64, s3, 4
v_add_u32 v28, s64, v28            ; LDS: 1040c + 4g + 16w
v_mul_u32_u24 v29, {PSTR}, v2
v_lshl_add_u32 v29, v1, 2, v29     ; g*PSTR + 4c
s_mul_i32 s64, s3, {4*PSTR}
s_lshl_b32 s65, s69, 6
s_add_u32 s64, s64, s65
s_add_u32 s64, s64, {UT}
s_waitcnt vmcnt(8)
""")
        s.stamp(2)
        s.nonce_get(31, "t")
        a("s_barrier")
        for i in range(7): a(f"ds_read_b32 v{96+i}, v28 offset:{128*i}")
        a("v_mov_b32 v31, s60")
        for i in range(7):
            a(f"s_waitcnt lgkmcnt({6-i})")
            a(f"v_cndmask_b32 v{96+i}, v{96+i}, v31, s[62:63]")
            a(f"buffer_store_dword v{96+i}, v29, s[32:35], s64 offen sc1")
            if i < 6: a(f"s_add_u32 s64, s64, {32*PSTR}")
        s.stamp(3)
        a(f"""
s_cmp_ge_u32 s2, 256
s_cbranch_scc1 L_exit
""")
        for it in range(2):
            for j in range(4):
                u, d, o = 104 + 4*it + j, 112 + 4*it + j, 52 + 4*it + j
                a(f"""v_lshlrev_b32 v6, 16, v{u}
v_lshlrev_b32 v7, 16, v{d}
v_and_b32 v8, 0xffff0000, v{u}
v_and_b32 v9, 0xffff0000, v{d}
v_mul_f32 v6, v6, v7
v_mul_f32 v8, v8, v9
v_cvt_pk_bf16_f32 v{o}, v6, v8""")
        a("v_mov_b32 v23, v120\nv_mov_b32 v24, v121\nv_mov_b32 v28, v122\nv_mov_b32 v29, v123")
    def column(s):
        a = s.a
        a("L_col:")
        for j in range(4):
            a(f"v_xor_b32 v{40+j}, 0x80000000, v{32+j}")
            a(f"v_xor_b32 v{44+j}, 0x8000, v{36+j}")
        a(f"""
v_and_b32 v10, 7, v1
v_cvt_f32_u32 v10, v10
v_mul_f32 v10, {f2h(1/8)}, v10
v_and_b32 v11, 1, v2
v_lshlrev_b32 v11, 2, v11
v_cvt_f32_u32 v11, v11            ; 4(g&1)
v_mul_f32 v12, v10, v11
v_lshrrev_b32 v13, 3, v1
v_lshrrev_b32 v30, 1, v2
v_cmp_eq_u32 vcc, v13, v30
""")
        s.sincos4(12, 10, 96, 100)
        for j in range(4):
            a(f"v_cvt_pk_bf16_f32 v{48+j}, v{96+j}, v{100+j}")
            a(f"v_cvt_pk_bf16_f32 v{60+j}, -v{100+j}, v{96+j}")
        for j in range(4):
            a(f"v_cndmask_b32 v{48+j}, 0, v{48+j}, vcc")
            a(f"v_cndmask_b32 v{60+j}, 0, v{60+j}, vcc")
        for j in range(4):
            a(f"v_xor_b32 v{64+j}, 0x80000000, v{48+j}")
            a(f"v_xor_b32 v{68+j}, 0x8000, v{60+j}")
        a(f"v_cvt_f32_u32 v10, s3\nv_mul_f32 v10, {f2h(1/128)}, v10\nv_mul_f32 v12, v10, v5")
        s.sincos4(12, 10, 72, 76)
        a(f"""s_lshl_b32 s64, s3, 1
v_add_u32 v10, s64, v30
v_cvt_f32_u32 v10, v10
v_mul_f32 v10, {f2h(1/128)}, v10
v_mul_f32 v12, v10, v11""")
        s.sincos4(12, 10, 80, 84)
        a(f"""v_cvt_f32_u32 v10, s66
s_mul_i32 s64, s66, s3
v_cvt_f32_u32 v13, s64
v_mul_f32 v10, {f2h(1/256)}, v10
v_mul_f32 v13, {f2h(1/2048)}, v13
v_fma_f32 v12, v10, v5, v13""")
        s.sincos4(12, 10, 88, 92)
        a(f"""
s_lshl_b32 s64, s66, 4
s_add_u32 s64, s64, s67
s_lshl_b32 s64, s64, 13
s_lshl_b32 s65, s3, 6
s_add_u32 s61, s64, s65            ; Z1 + unit*8192 + w*64
""")
        if s.o.get("d1"): a(f"s_sleep {s.o['d1']}")
        s.stamp(4)
        a("L_poll_z1:")
        for j in range(4): a(f"buffer_load_dword v{96+j}, v25, s[32:35], s61 offen offset:{512*j} sc1")
        a("s_waitcnt vmcnt(0)")
        s.tagcheck([96, 97, 98, 99], "z1", s.o.get("sl", 4))
        s.stamp(5)
        s.mfma(104, 32, 96); s.mfma(108, 36, 96)
        s.twiddle(104, 108, 72, 76, [120, 121, 122, 123], False)
        for r in range(4): a(f"ds_write_b32 v26, v{120+r} offset:{768*r}")
        a("s_waitcnt lgkmcnt(0)\ns_barrier\nds_read_b128 v[96:99], v27\ns_waitcnt lgkmcnt(0)")
        s.mfma(104, 48, 96); s.mfma(108, 60, 96)
        s.twiddle(104, 108, 14, 18, [96, 97, 98, 99], True)
        s.mfma(104, 64, 96); s.mfma(108, 68, 96)
        s.twiddle(104, 108, 80, 84, [120, 121, 122, 123], True)
        a("ds_write_b128 v27, v[120:123]\ns_waitcnt lgkmcnt(0)\ns_barrier")
        for j in range(4): a(f"ds_read_b32 v{96+j}, v26 offset:{768*j}")
        a(f"""
s_lshl_b32 s64, s3, 14
s_lshl_b32 s65, s67, 10
s_add_u32 s64, s64, s65
s_lshl_b32 s65, s66, 6
s_add_u32 s64, s64, s65
s_waitcnt lgkmcnt(0)
""")
        s.mfma(104, 40, 96); s.mfma(108, 44, 96)
        s.twiddle(104, 108, 88, 92, [120, 121, 122, 123], True)
        for r in range(4): a(f"v_cndmask_b32 v{120+r}, v{120+r}, v31, s[62:63]")
        for r in range(4):
            a(f"s_add_u32 s65, s64, {Z2 + r*131072}")
            a(f"buffer_store_dword v{120+r}, v22, s[32:35], s65 offen sc1")
        s.stamp(6)
        a(f"s_cmp_ge_u32 s2, {NT0}\ns_cbranch_scc1 L_Ty")
    def row_inv(s):
        a = s.a
        a("v_cmp_lt_u32 vcc, 1, v2\nv_mov_b32 v10, 0x80000000\nv_cndmask_b32 v10, 0, v10, vcc")
        for j in range(4):
            a(f"v_xor_b32 v{48+j}, v{40+j}, v10")
            a(f"v_xor_b32 v{60+j}, v{44+j}, v10")
        sc = 1.0 / (7 * 2048 * 64)
        for r in range(4):
            a(f"v_mul_f32 v{64+r}, {f2h(sc)}, v{52+r}")
            a(f"v_mul_f32 v{68+r}, {f2h(sc)}, v{56+r}")
        a(f"v_mul_f32 v10, {f2h(1/28)}, v4\nv_mul_f32 v12, v10, v5")
        s.sincos4(12, 10, 96, 100)
        a(f"v_add_f32 v10, {f2h(16/28)}, v10\nv_mul_f32 v12, v10, v5")
        s.sincos4(12, 10, 104, 108)
        a("""v_cmp_eq_u32 vcc, 0, v2
v_cndmask_b32_e64 v112, 2.0, 1.0, vcc
v_mov_b32 v113, 2.0
v_cmp_eq_u32 vcc, 3, v2
v_cndmask_b32_e64 v114, 2.0, 1.0, vcc
v_cndmask_b32_e64 v115, 2.0, 0, vcc""")
        for j in range(4):
            for b in (96, 100, 104, 108): a(f"v_mul_f32 v{b+j}, v{b+j}, v{112+j}")
        for j in range(4):
            a(f"v_cvt_pk_bf16_f32 v{72+j}, v{96+j}, -v{100+j}")
            a(f"v_cvt_pk_bf16_f32 v{76+j}, v{104+j}, -v{108+j}")
        a(f"""
v_and_b32 v10, 1, v2
v_lshl_add_u32 v11, v10, 4, v1        ; n1 = c + 16(g&1)
v_lshlrev_b32 v28, 5, v11
v_lshrrev_b32 v12, 1, v2
v_lshl_add_u32 v28, v12, 4, v28
v_cmp_lt_u32 vcc, 27, v11
v_mov_b32 v12, 0x10000000
v_cndmask_b32 v28, v28, v12, vcc
v_lshlrev_b32 v25, 8, v2
v_lshl_add_u32 v25, v1, 2, v25
s_lshl_b32 s64, s2, 14
s_lshl_b32 s65, s3, 11
s_add_u32 s61, s64, s65
s_add_u32 s61, s61, {Z2}
""")
        if s.o.get("d2"): a(f"s_sleep {s.o['d2']}")
        a("L_poll_z2:")
        for t in range(2):
            for j in range(4): a(f"buffer_load_dword v{96+4*t+j}, v25, s[32:35], s61 offen offset:{1024*t+64*j} sc1")
        a("s_waitcnt vmcnt(0)")
        s.tagcheck(list(range(96, 104)), "z2", s.o.get("sl", 4))
        s.stamp(7)
        s.mfma(104, 40, 96); s.mfma(108, 44, 96); s.mfma(112, 40, 100); s.mfma(116, 44, 100)
        for r in range(4): a(f"v_cvt_pk_bf16_f32 v{120+2*r}, v{104+r}, v{108+r}")
        for r in range(4): a(f"v_cvt_pk_bf16_f32 v{121+2*r}, v{112+r}, v{116+r}")
        for r in range(4): a(f"ds_write_b64 v23, {V(120+2*r,2)} offset:{1280*r}")
        a(f"""
s_waitcnt lgkmcnt(0)
s_barrier
ds_read_b128 v[96:99], v24
ds_read_b128 v[100:103], v24 offset:1280
s_lshl_b32 s64, s3, 8
s_add_u32 s64, s64, s2
s_mul_i32 s64, s64, 1792
s_add_u32 s64, s64, 896
s_add_u32 s65, s64, {128*1792}
s_waitcnt lgkmcnt(1)
""")
        s.mfma(104, 96, 48); s.mfma(108, 96, 60)
        a("s_waitcnt lgkmcnt(0)")
        s.mfma(112, 100, 48); s.mfma(116, 100, 60)
        s.twiddle(104, 108, 64, 68, [96, 97, 98, 99], True)
        s.mfma(104, 96, 72); s.mfma(108, 96, 76)
        s.twiddle(112, 116, 64, 68, [100, 101, 102, 103], True)
        s.mfma(112, 100, 72); s.mfma(116, 100, 76)
        for t, (d0, d1, P, so) in enumerate(((104, 108, 120, "s64"), (112, 116, 124, "s65"))):
            a(f"""v_cvt_pk_bf16_f32 v{P}, v{d0}, v{d0+1}
v_cvt_pk_bf16_f32 v{P+1}, v{d0+2}, v{d0+3}
v_cvt_pk_bf16_f32 v{P+2}, v{d1}, v{d1+1}
v_cvt_pk_bf16_f32 v{P+3}, v{d1+2}, v{d1+3}
v_permlane16_swap_b32 v{P}, v{P+2}
v_permlane16_swap_b32 v{P+1}, v{P+3}
buffer_store_dwordx4 {V(P,4)}, v28, s[44:47], {so} offen""")
        s.stamp(8)
        a("s_branch L_exit")
    def t_y(s):
        a = s.a
        a(f"""
L_Ty:
v_lshlrev_b32 v30, 4, v0
s_add_u32 s61, s71, {YT}
s_add_u32 s64, s61, 8192
v_and_b32 v10, 3, v0
v_mul_u32_u24 v10, 3648, v10
v_and_b32 v11, 0xfffffffc, v0
v_add_u32 v25, v10, v11
v_mov_b32 v100, 0
v_mov_b32 v101, 0
v_mov_b32 v102, 0
v_mov_b32 v103, 0
""")
        if s.o.get("d3"): a(f"s_sleep {s.o['d3']}")
        a(f"""
L_poll_y:
buffer_load_dwordx4 v[96:99], v30, s[32:35], s61 offen sc1
s_mov_b64 exec, s[30:31]
s_cbranch_execz L_y1
buffer_load_dwordx4 v[100:103], v30, s[32:35], s64 offen sc1
L_y1:
s_mov_b64 exec, -1
s_waitcnt vmcnt(0)
v_max3_u32 v6, v96, v97, v98
v_max3_u32 v7, v99, v100, v101
v_max3_u32 v6, v6, v102, v103
v_max_u32 v6, v6, v7
v_cmp_eq_u32 vcc, -1, v6
s_cbranch_vccz L_got_y
""")
        s.spin("y", s.o.get("sl", 4))
        a("L_got_y:")
        s.stamp(7)
        for r in range(4): a(f"ds_write_b32 v25, v{96+r} offset:{912*r}")
        a("s_mov_b64 exec, s[30:31]")
        for r in range(4): a(f"ds_write_b32 v25, v{100+r} offset:{912*r+512}")
        a(f"""
s_mov_b64 exec, -1
s_waitcnt lgkmcnt(0)
s_barrier
ds_read_b128 v[96:99], v23
ds_read_b128 v[100:103], v24
s_mul_i32 s64, s69, {16*1792}
""")
        for it in range(2):
            a(f"s_waitcnt lgkmcnt({1-it})")
            for j in range(4):
                y, o = 96 + 4*it + j, 52 + 4*it + j
                a(f"""v_lshlrev_b32 v6, 16, v{y}
v_lshlrev_b32 v7, 16, v{o}
v_and_b32 v8, 0xffff0000, v{y}
v_and_b32 v9, 0xffff0000, v{o}
v_add_f32 v6, v6, v7
v_add_f32 v8, v8, v9
v_cvt_pk_bf16_f32 v{104+4*it+j}, v6, v8""")
            if it == 0:
                a("buffer_store_dwordx4 v[104:107], v28, s[44:47], s64 offen")
        a("""s_mov_b64 exec, s[30:31]
s_cbranch_execz L_y2
buffer_store_dwordx4 v[108:111], v29, s[44:47], s64 offen
L_y2:
s_mov_b64 exec, -1""")
        s.stamp(8)
        a("s_branch L_exit")
    def cmul(s, d, x, e, t):
        s.a(f"v_pk_mul_f32 {V(t,2)}, {V(x,2)}, {V(e,2)} op_sel:[1,1] op_sel_hi:[1,0] neg_lo:[1,0]")
        s.a(f"v_pk_fma_f32 {V(d,2)}, {V(x,2)}, {V(e,2)}, {V(t,2)} op_sel_hi:[0,1,1]")
    def exp_bf16(s, d, x, t):
        L_HI = 1.4426950216293335; L_LO = 1.4426950408889634 - L_HI
        s.a(f"""v_mul_f32 v{t}, {f2h(L_HI)}, v{x}
v_exp_f32 v{d}, v{t}
v_fma_f32 v{t+1}, v{x}, s71, -v{t}
v_fmac_f32 v{t+1}, {f2h(L_LO)}, v{x}
v_mul_f32 v{t+1}, {f2h(math.log(2))}, v{t+1}
v_fma_f32 v{d}, v{d}, v{t+1}, v{d}
v_cvt_pk_bf16_f32 v{d}, v{d}, v{d}
v_and_b32 v{d}, 0xffff0000, v{d}""")
    def a_path(s):
        a = s.a
        CH = 36864; WV = 9216; BUF = 4608; RS = 288
        KC, KCP, UA = 4608, 9216, 31232
        a(f"""
L_A:
s_load_dwordx2 s[40:41], s[0:1], 8
s_load_dwordx2 s[44:45], s[0:1], 16
s_load_dwordx2 s[48:49], s[0:1], 24
s_load_dwordx2 s[52:53], s[0:1], 32
s_load_dwordx2 s[56:57], s[0:1], 40
s_sub_u32 s66, s2, {NA0}           ; pair
s_lshr_b32 s67, s3, 2              ; ch
s_and_b32 s68, s3, 3               ; q4
s_lshl_b32 s64, s66, 1
s_add_u32 s64, s64, s67
s_lshl_b32 s64, s64, 9
s_lshl_b32 s65, s68, 7
s_add_u32 s64, s64, s65
v_lshlrev_b32 v24, 1, v3
s_lshl_b32 s65, s66, 2
""")
        for b in (40, 44, 48, 52): s.srd(b, 229376)
        a(f"""
s_waitcnt lgkmcnt(0)
s_load_dword s58, s[56:57], s65
buffer_load_short_d16_hi v4, v24, s[40:43], s64 offen
buffer_load_short_d16_hi v5, v24, s[44:47], s64 offen
buffer_load_short_d16_hi v6, v24, s[48:51], s64 offen
buffer_load_short_d16_hi v7, v24, s[52:55], s64 offen
s_mul_i32 s69, s67, {CH}
""")
        s.stamp(1)
        a(f"""
v_and_b32 v32, 255, v0
v_lshlrev_b32 v33, 3, v32
v_sub_u32 v33, 2047, v33           ; lag0
s_add_u32 s64, s69, {KC}
s_movk_i32 s65, 0x4280
s_movk_i32 s72, 128
""")
        for e in range(0, 11):
            a(f"""v_subrev_u32 v34, {e}, v33
v_cvt_f32_i32 v35, v34
v_cvt_pk_bf16_f32 v35, v35, v35
v_bfe_u32 v35, v35, 0, 16
v_subrev_u32 v35, s65, v35
v_cmp_gt_i32 vcc, s72, v34
v_cndmask_b32 v35, v35, v34, vcc
""")
            if e >= 8:
                a("v_cmp_gt_i32 vcc, 0, v34\nv_mov_b32 v36, 768\nv_cndmask_b32 v35, v35, v36, vcc")
            a(f"v_lshl_add_u32 v{8+e}, v35, 1, s64")
        a(f"""
s_add_u32 s64, s69, {KCP}
v_lshl_add_u32 v26, v32, 4, s64
""")
        a(f"""
s_add_u32 s64, s69, {KC}
v_lshrrev_b32 v34, 1, v2           ; g>>1
v_and_b32 v35, 1, v2               ; g&1
s_cmp_eq_u32 s68, 1
s_cbranch_scc1 L_sc1
s_cmp_eq_u32 s68, 2
s_cbranch_scc1 L_sc2
; tile0: 128(g>>1) + 4(g&1) + 8c + r
v_lshlrev_b32 v36, 7, v34
v_lshl_add_u32 v36, v35, 2, v36
v_lshl_add_u32 v36, v1, 3, v36
v_lshl_add_u32 v20, v36, 1, s64
v_add_u32 v21, 2, v20
v_add_u32 v22, 4, v20
v_add_u32 v23, 6, v20
s_branch L_scd
L_sc1:
; g<2: 256 + 64g + 4c + r ; g>=2: 384 + 64(g-2) + 2c + 32(r>>1) + (r&1)  (256+64g common)
v_lshlrev_b32 v36, 6, v2
v_add_u32 v36, 256, v36
v_sub_u32 v37, 2, v34
v_lshlrev_b32 v37, v37, v1         ; c << (2 - (g>>1))
v_add_u32 v36, v36, v37
v_lshl_add_u32 v20, v36, 1, s64
v_add_u32 v21, 2, v20
v_mul_u32_u24 v37, 60, v34
v_add3_u32 v22, v20, v37, 4
v_add_u32 v23, 2, v22
s_branch L_scd
L_sc2:
; 512 + 16(4g+r) + c
v_lshl_add_u32 v36, v2, 6, v1
v_add_u32 v36, 512, v36
v_lshl_add_u32 v20, v36, 1, s64
v_add_u32 v21, 32, v20
v_add_u32 v22, 64, v20
v_add_u32 v23, 96, v20
L_scd:
s_mul_i32 s59, s3, {WV}
v_mul_u32_u24 v24, {RS}, v1
v_lshl_add_u32 v24, v2, 4, v24
v_add_u32 v24, s59, v24
v_lshlrev_b32 v25, 4, v3           ; 16*lane
v_sub_u32 v34, 3, v1
v_and_b32 v34, 3, v34              ; s = (3-i)&3
v_mul_u32_u24 v35, 4158, v34       ; s*4160 - 2s
v_lshlrev_b32 v36, 4, v2
v_lshlrev_b32 v37, 1, v1
v_sub_u32 v36, v36, v37            ; 16g - 2i
s_lshl_b32 s64, s68, 7
s_sub_u32 s65, s69, s64
s_add_u32 s72, s65, {KCP + 2*2031 - 64 - 512*7}
v_add3_u32 v27, v35, v36, s72      ; vA
v_lshlrev_b32 v28, 5, v1
v_lshl_add_u32 v28, v2, 4, v28
s_add_u32 s72, s65, {UA + 448 - 64}
v_add_u32 v28, s72, v28            ; vB
v_lshlrev_b32 v29, 2, v3           ; 64g + 4c
v_mul_u32_u24 v34, 15, v2
v_add_u32 v34, v34, v1
s_mul_i32 s64, s3, 60
v_add_u32 v34, s64, v34            ; t0 = 60w + 15g + c
v_lshlrev_b32 v30, 1, v34
v_add_u32 v30, {UA + 480}, v30
v_cmp_gt_u32 vcc, {2048 - 1920}, v34
s_andn2_b64 s[30:31], vcc, s[62:63]
s_lshl_b32 s64, s3, 2
v_add_u32 v34, s64, v2
v_cmp_gt_u32 vcc, 9, v34
s_and_b64 s[28:29], vcc, s[62:63]
s_mul_i32 s61, s66, {PSTR}
s_lshl_b32 s64, s3, 8
s_add_u32 s61, s61, s64
s_add_u32 s61, s61, {UT}
s_mov_b32 s71, {f2h(1.4426950216293335)}
s_waitcnt lgkmcnt(0)
s_lshl_b32 s64, s58, 16
s_and_b32 s65, s58, 0xffff0000
s_cmp_eq_u32 s67, 0
s_cselect_b32 s64, s64, s65
v_mov_b32 v32, s64
""")
        s.exp_bf16(31, 32, 34)
        s.nonce_issue(19)
        a("s_mov_b32 m0, s59\ns_waitcnt vmcnt(1)")
        s.stamp(2)
        s.exp_bf16(32, 4, 34)
        a(f"""
v_mul_f32 v32, v32, v31            ; -zr
v_mul_f32 v33, v5, v31             ; zi
v_mul_f32 v32, {f2h(-1.4426950408889634)}, v32     ; zr*log2e
v_mul_f32 v33, 0.15915494, v33     ; revolutions
v_mul_f32 v6, v6, v31
v_mul_f32 v7, v7, v31
v_add_f32 v42, v6, v6
v_add_f32 v43, v7, v7              ; G0 = 2C
""")
        E1, E8, E128, E2, E4 = 56, 58, 60, 38, 40
        for (dst, m, cj) in ((E8, 8.0, True), (E1, 1.0, False), (E128, 128.0, False)):
            if m == 1.0:
                a(f"v_exp_f32 v34, v32\nv_fract_f32 v35, v33")
            else:
                a(f"v_mul_f32 v34, {f2h(m)}, v32\nv_mul_f32 v35, {f2h(m)}, v33\nv_exp_f32 v34, v34\nv_fract_f32 v35, v35")
            a(f"""v_cos_f32 v36, v35
v_sin_f32 v37, v35
v_mul_f32 v{dst}, v34, v36
v_mul_f32 v{dst+1}, {'-' if cj else ''}v34, v37""".replace("v_mul_f32 v%d, -v34" % (dst+1), "v_mul_f32_e64 v%d, -v34" % (dst+1)))
        pk = [54, 55, 62, 63]
        st = {"k": 0}
        def emit(x, buf, row):
            p = pk[st["k"] % 4]; st["k"] += 1
            a(f"v_cvt_pk_bf16_f32 v{p}, v{x}, v{x+1}")
            a(f"ds_write_addtid_b32 v{p} offset:{buf*BUF + row*RS}")
        X0, X1, XV, T0, T1, T2 = 42, 44, 46, 48, 50, 52
        a(f"v_mov_b32 v{pk[3]}, 0x3f80\nds_write_addtid_b32 v{pk[3]} offset:0")
        emit(E8, 0, 1)
        s.cmul(X1, X0, E128, T1)
        s.cmul(XV, E8, E8, T2)
        emit(X0, 1, 0); emit(X1, 1, 8); emit(XV, 0, 2)
        GA, GB = 34, 36
        s.cmul(GA, X1, E128, T0)
        for j in range(1, 8):
            s.cmul(XV, XV, E8, T2); s.cmul(X0, X0, E1, T0); s.cmul(X1, X1, E1, T1)
            emit(XV, 0, 2 + j); emit(X0, 1, j); emit(X1, 1, 8 + j)
        s.cmul(E2, E1, E1, T0)
        s.cmul(GB, GA, E128, T1)
        for j in range(8, 14):
            s.cmul(XV, XV, E8, T2)
            if j == 8: s.cmul(E4, E2, E2, T0)
            emit(XV, 0, 2 + j)
        a("s_waitcnt lgkmcnt(0)")
        for ks in range(4): a(f"ds_read_b128 {V(64+4*ks,4)}, v24 offset:{64*ks}")
        for ks in range(4): a(f"ds_read_b128 {V(80+4*ks,4)}, v24 offset:{BUF+64*ks}")
        s.cmul(X0, GA, E2, T0); s.cmul(X1, GB, E2, T1)
        s.cmul(XV, GB, E128, T2)
        a("s_waitcnt lgkmcnt(4)")
        emit(GA, 0, 0); emit(GB, 0, 4); emit(X0, 0, 1); emit(X1, 0, 5); emit(XV, 0, 8)
        a("s_waitcnt lgkmcnt(5)")
        for ks in range(4): s.mfma(96, 80+4*ks, 64+4*ks, None if ks == 0 else 96)
        for j in (2, 3):
            s.cmul(X0, X0, E2, T0); s.cmul(X1, X1, E2, T1)
            emit(X0, 0, j); emit(X1, 0, 4 + j)
        cur, nxt = XV, GA
        for h in range(4, 8):
            s.cmul(X0, cur, E4, T0); s.cmul(nxt, cur, E128, T1)
            emit(X0, 0, 8 + 2*(h-4) + 1)
            if h < 7: emit(nxt, 0, 8 + 2*(h-3))
            cur, nxt = nxt, cur
        emit(cur, 1, 0)
        s.cmul(E2, E128, E128, T2)
        s.cmul(nxt, cur, E128, T1)
        a("s_waitcnt lgkmcnt(1)")
        for ks in range(4): a(f"ds_read_b128 {V(80+4*ks,4)}, v24 offset:{64*ks}")
        emit(nxt, 1, 1)
        for h in range(2, 9):
            x = cur if h % 2 == 0 else nxt
            s.cmul(x, x, E2, T0 if h % 2 == 0 else T1)
            emit(x, 1, h)
            if h == 4:
                a("s_waitcnt lgkmcnt(4)")
                for ks in range(4): s.mfma(100, 80+4*ks, 64+4*ks, None if ks == 0 else 100)
        a("s_waitcnt lgkmcnt(0)")
        for ks in range(4): a(f"ds_read_b128 {V(80+4*ks,4)}, v24 offset:{BUF+64*ks}")
        a("v_add_u32 v32, s59, v25\ns_waitcnt lgkmcnt(0)")
        for ks in range(4): s.mfma(104, 80+4*ks, 64+4*ks, None if ks == 0 else 104)
        for t in range(3): a(f"ds_write_b128 v32, {V(96+4*t,4)} offset:{1024*t}")
        a("s_waitcnt vmcnt(0)")
        s.nonce_get(19, "a")
        a("s_waitcnt lgkmcnt(0)\ns_barrier")
        s.stamp(3)
        def uloads():
            for i in range(5):
                a(f"buffer_load_dword v{108+i}, v29, s[32:35], s61 offen offset:{2048*i if i < 2 else 0} sc1" if i < 2 else
                  f"buffer_load_dword v{108+i}, v29, s[32:35], s{64 if i < 4 else 65} offen offset:{2048*(i-2) if i < 4 else 0} sc1")
        a("s_add_u32 s64, s61, 4096\ns_add_u32 s65, s61, 8192")
        uloads()
        a(f"""
s_cmp_eq_u32 s68, 3
s_cbranch_scc1 L_zp
s_lshl_b32 s72, s68, 10
s_add_u32 s72, s72, s69
v_add_u32 v32, s72, v25
ds_read_b128 v[96:99], v32
ds_read_b128 v[100:103], v32 offset:{WV}
ds_read_b128 v[104:107], v32 offset:{2*WV}
ds_read_b128 v[80:83], v32 offset:{3*WV}
s_waitcnt lgkmcnt(2)
""")
        for r in range(4): a(f"v_add_f32 v{96+r}, v{96+r}, v{100+r}")
        a("s_waitcnt lgkmcnt(0)")
        for r in range(4): a(f"v_add_f32 v{104+r}, v{104+r}, v{80+r}")
        for r in range(4): a(f"v_add_f32 v{96+r}, v{96+r}, v{104+r}")
        a(f"""v_cvt_pk_bf16_f32 v96, v96, v97
v_cvt_pk_bf16_f32 v98, v98, v99
ds_write_b16 v20, v96
ds_write_b16_d16_hi v21, v96
ds_write_b16 v22, v98
ds_write_b16_d16_hi v23, v98
s_branch L_zpd
L_zp:
v_mov_b32 v96, 0
v_mov_b32 v97, 0
v_lshlrev_b32 v32, 3, v3
s_add_u32 s72, s69, {UA}
v_add_u32 v33, s72, v32
ds_write_b64 v33, v[96:97]
s_add_u32 s72, s69, {KC + 1536}
v_mov_b32 v33, s72
ds_write_b32 v33, v96
L_zpd:
s_waitcnt lgkmcnt(0)
s_barrier
""")
        for e in range(11): a(f"ds_read_u16 v{32+e}, v{8+e}")
        a(f"""
s_cmp_lg_u32 s68, 3
s_cbranch_scc1 L_nzt
v_mov_b32 v98, 0
v_mov_b32 v99, 0
v_lshrrev_b32 v44, 1, v3
v_and_b32 v44, 3, v44
v_mul_u32_u24 v44, 4160, v44
v_and_b32 v45, 1, v3
v_lshl_add_u32 v44, v45, 4, v44
s_add_u32 s72, s69, {KCP + 4096}
v_add_u32 v44, s72, v44
ds_write_b128 v44, v[96:99]
L_nzt:
s_waitcnt lgkmcnt(0)
""")
        for cp in range(4):
            for j in range(4):
                x = cp + 2*j
                a(f"v_lshl_or_b32 v{44+4*cp+j}, v{33+x}, 16, v{32+x}")
            a(f"ds_write_b128 v26, {V(44+4*cp,4)} offset:{4160*cp}")
        a("s_branch L_chk_u\nL_poll_u:")
        uloads()
        a("L_chk_u:\ns_waitcnt vmcnt(0)")
        a(f"""v_cmp_ne_u32 vcc, s60, v108
v_cmp_ne_u32 s[72:73], s60, v109
v_cmp_ne_u32 s[74:75], s60, v110
v_cmp_ne_u32 s[76:77], s60, v111
v_cmp_ne_u32 s[78:79], s60, v112
s_or_b64 vcc, vcc, s[72:73]
s_or_b64 vcc, vcc, s[74:75]
s_or_b64 vcc, vcc, s[76:77]
s_and_b64 vcc, vcc, s[62:63]
s_and_b64 s[78:79], s[78:79], s[28:29]
s_or_b64 vcc, vcc, s[78:79]
s_cbranch_scc0 L_got_u""")
        s.spin("u", s.o.get("sl", 4))
        a("L_got_u:")
        s.stamp(4)
        a("s_andn2_b64 exec, -1, s[62:63]")
        for i in range(5):
            if i == 4: a("s_mov_b64 exec, s[30:31]")
            a(f"ds_write_b16 v30, v{108+i} offset:{960*i}")
            a(f"ds_write_b16_d16_hi v30, v{108+i} offset:{960*i + CH}")
        a("s_mov_b64 exec, -1\ns_waitcnt lgkmcnt(0)\ns_barrier")
        s.stamp(5)
        free = [64 + 4*i for i in range(16)]
        Areg, Breg = {}, {}
        pend = []
        def load(cl, d):
            off = 64 if cl == 0 else 0
            ra = free.pop(0); rb = free.pop(0)
            Areg[(cl, d)] = ra; Breg[(cl, d)] = rb
            a(f"ds_read_b128 {V(rb,4)}, v28 offset:{512*d + off}")
            a(f"ds_read_b64 {V(ra,2)}, v27 offset:{512*(7-d) + off}")
            a(f"ds_read_b64 {V(ra+2,2)}, v27 offset:{512*(7-d) + off + 8}")
            pend.extend([(cl, d)] * 3)
        def wait(cl, d):
            idx = max(i for i, k in enumerate(pend) if k == (cl, d)) if (cl, d) in pend else -1
            if idx >= 0:
                a(f"s_waitcnt lgkmcnt({len(pend) - 1 - idx})")
                del pend[:idx + 1]
        first = set()
        def mm(cl, p, q):
            T = p + q
            s.mfma(32 + 4*T, Areg[(cl, p)], Breg[(cl, q)], None if T not in first else 32 + 4*T)
            first.add(T)
        def group(cl, d):
            prs = [(d, j) for j in range(d) if d + j <= 7] + [(j, d) for j in range(d) if d + j <= 7]
            prs = sorted(prs, key=lambda x: (0 if x[0] == d else 1, min(x)))
            if 2*d <= 7: prs.append((d, d))
            for p, q in prs: mm(cl, p, q)
        for d in range(5): load(0, d)
        nextload = [(0, 5), (0, 6), (0, 7)] + [(1, d) for d in range(8)]
        for cl in range(2):
            for d in range(8):
                wait(cl, d)
                while nextload and len(free) >= 2 and len(pend) <= 12:
                    load(*nextload.pop(0))
                group(cl, d)
                if d >= 4:
                    for k in (7 - d, d):
                        free.append(Areg[(cl, k)]); free.append(Breg[(cl, k)])
                    while nextload and len(free) >= 2 and len(pend) <= 12:
                        load(*nextload.pop(0))
        assert not nextload
        s.stamp(6)
        a(f"""
v_lshrrev_b32 v4, 1, v1
v_and_b32 v4, 3, v4
v_xor_b32 v4, v4, v2
v_lshlrev_b32 v4, 4, v4
v_lshl_add_u32 v4, v1, 6, v4
s_lshl_b32 s64, s3, 13
v_add_u32 v4, s64, v4
v_lshrrev_b32 v5, 3, v3
v_xor_b32 v5, v5, v3
v_and_b32 v5, 3, v5
v_lshlrev_b32 v5, 4, v5
v_and_b32 v6, 0x3c, v3
v_lshl_add_u32 v5, v6, 4, v5
s_lshl_b32 s64, s3, 10
v_add_u32 v5, s64, v5
v_lshrrev_b32 v6, 2, v3
v_mul_u32_u24 v6, 14336, v6
v_and_b32 v7, 3, v3
v_lshl_add_u32 v6, v7, 4, v6
s_mul_i32 s64, s3, {16*14336}
s_lshl_b32 s65, s66, 6
s_add_u32 s64, s64, s65
s_add_u32 s64, s64, {YT}
s_barrier
""")
        for T in range(8): a(f"ds_write_b128 v4, {V(32+4*T,4)} offset:{1024*T}")
        a("s_waitcnt lgkmcnt(0)\ns_barrier")
        for q in range(8): a(f"ds_read_b128 {V(64+4*q,4)}, v5 offset:{8192*q}")
        for ch in range(2):
            b = 64 + 16*ch
            a(f"s_waitcnt lgkmcnt({6-4*ch})")
            for r in range(4): a(f"v_add_f32 v{b+r}, v{b+r}, v{b+4+r}")
            a(f"s_waitcnt lgkmcnt({4-4*ch})")
            for r in range(4): a(f"v_add_f32 v{b+8+r}, v{b+8+r}, v{b+12+r}")
            for r in range(4): a(f"v_add_f32 v{b+r}, v{b+r}, v{b+8+r}")
        for r in range(4): a(f"v_cvt_pk_bf16_f32 v{96+r}, v{64+r}, v{80+r}")
        for r in range(4): a(f"v_min_u32 v{96+r}, -2, v{96+r}")
        a("buffer_store_dwordx4 v[96:99], v6, s[32:35], s64 offen sc1")
        s.stamp(7)
    def build(s):
        a = s.a
        hdr = open("concat_heads__ssm_conv_s4d__spectral_gfnet__prompt.s.ref").read().split("; Override launch")[0]
        a.raw(hdr + f"; @launch grid=({NWG},1,1) block=(512,1,1) lds={LDS_BYTES}")
        a.raw(f'.amdgcn_target "amdgcn-amd-amdhsa--gfx950"\n.text\n.globl {KNAME}\n.p2align 8\n.type {KNAME},@function\n{KNAME}:')
        s.entry(); s.b_prologue(); s.row_s1(); s.t_u(); s.column(); s.row_inv(); s.t_y(); s.a_path()
        a("L_exit:")
        s.stamp(9)
        s.stamp_flush()
        a("L_end:\ns_endpgm")
        a.raw(f""".section .rodata,"a"
.p2align 6
.amdhsa_kernel {KNAME}
  .amdhsa_next_free_vgpr 128
  .amdhsa_next_free_sgpr 102
  .amdhsa_accum_offset 128
  .amdhsa_group_segment_fixed_size 0
  .amdhsa_kernarg_size 104
  .amdhsa_user_sgpr_count 2
  .amdhsa_user_sgpr_kernarg_segment_ptr 1
  .amdhsa_system_sgpr_workgroup_id_x 1
.end_amdhsa_kernel""")
        return a.text()
if __name__ == "__main__":
    import json
    out = sys.argv[1]; stamps = len(sys.argv) > 2 and sys.argv[2] == "1"
    opts = json.loads(sys.argv[3]) if len(sys.argv) > 3 else {}
    g = G(stamps, opts); t = g.build(); open(out, "w").write(t)
    print("lines", t.count("\n"), "nops", g.a.nops)
```

```python
import numpy as np
def bf16(x):
    u = np.asarray(x, dtype=np.float32).view(np.uint32)
    return ((u + 0x7FFF + ((u >> 16) & 1)) >> 16).astype(np.uint32)
def pk(lo, hi): return bf16(lo) | (bf16(hi) << 16)
def f32(x): return np.asarray(x, dtype=np.float32).view(np.uint32)
lane = np.arange(64); c = (lane & 15)[:, None]; g = (lane >> 4)[:, None]; j4 = np.arange(4)[None, :]
def cs(num, den):
    a = 2 * np.pi * (np.asarray(num) % den) / den
    co, si = np.cos(a), np.sin(a)
    co[np.abs(co) < 1e-12] = 0; si[np.abs(si) < 1e-12] = 0
    return co, si
def b_tables():
    T = {}
    j8 = np.arange(8)[None, :]
    n1 = np.where(j8 < 4, 4 * g + j8, 16 + 4 * g + (j8 - 4))
    co, si = cs(n1 * c, 28); v = (n1 < 28)
    T["COS28"] = pk((co * v)[:, 0::2], (co * v)[:, 1::2]); T["NSIN28"] = pk((-si * v)[:, 0::2], (-si * v)[:, 1::2])
    co, si = cs((4 * g + j4) * c, 16)
    sg = np.where(c >= 8, -1.0, 1.0)
    T["R2RE"] = pk(co, si); T["R2IM"] = pk(-si * sg, co * sg)
    sg2 = np.where(g >= 2, -1.0, 1.0)
    T["R2BRE"] = pk(co, -si * sg2); T["R2BIM"] = pk(si, co * sg2)
    co, si = cs((4 * g + j4) * c, 448)
    T["TWRC"] = f32(co); T["TWRS"] = f32(si)
    sc = 1.0 / (7 * 2048 * 64)
    T["TWIC"] = f32(co * sc); T["TWIS"] = f32(si * sc)
    co, si = cs((4 * (g & 1) + j4) * (c & 7), 8); m = ((c >> 3) == (g >> 1))
    T["F8RE"] = pk(co * m, si * m); T["F8IM"] = pk(-si * m, co * m)
    T["G8RE"] = pk(co * m, -si * m); T["G8IM"] = pk(si * m, co * m)
    k1 = 4 * g + j4
    cw = np.where((k1 == 0) | (k1 == 14), 1.0, np.where(k1 == 15, 0.0, 2.0))
    for t in range(2):
        co, si = cs(k1 * (c + 16 * t), 28)
        T[f"R1B{t}"] = pk(cw * co, -cw * si)
    for b in range(8):
        co, si = cs((8 * (4 * g + j4) + b) * c, 128)
        T[f"C1RE{b}"] = pk(co, si); T[f"C1IM{b}"] = pk(-si, co)
        co, si = cs((8 * c + b) * (4 * g + j4), 128)
        T[f"D1RE{b}"] = pk(co, -si); T[f"D1IM{b}"] = pk(si, co)
    return T
def a_tables(KC):
    lag = 2047 - (8 * np.arange(256)[:, None] + np.arange(12)[None, :])
    bits = bf16(np.maximum(lag, 0).astype(np.float32)).astype(np.int64)
    idx = np.where(lag < 0, 768, np.where(lag < 128, lag, bits - 0x4280))
    G = (KC + 2 * idx).astype(np.uint32)
    r = j4
    s0 = 128 * (g >> 1) + 4 * (g & 1) + 8 * c + r
    s1 = np.where(g < 2, 256 + 64 * g + 4 * c + r, 256 + 64 * g + 2 * c + 32 * (r >> 1) + (r & 1))
    s2 = 512 + 16 * (4 * g + r) + c
    S = (KC + 2 * np.stack([s0, s1, s2, s2])).astype(np.uint32)
    return G, S
```

```python
import sys, math, json
import numpy as np
from asmlib import Asm, f2h
import tables
KNAME = "concat_heads__ssm_conv_s4d__spectral_gfnet__prompt_kernel"
Z1, Z2, UT, YT, STAMP = 0x010000, 0x220000, 0x430000, 0x640000, 0x1000000
EPOCH = 0x630000
PSTR = 9216
NT0, NA0, NWG = 128, 272, 496
LDS_BYTES = 77824
SPIN_MAX = 200000
WV, BUF, RS = 9216, 4608, 288
KC, KCH = 4608, 55296
KB = 0x3F7F
ZS = 0x4502 - KB
KCP, UA, CH = 9216, 25856, 21248
XP = [0, 53248, 61440, 69632]; YP = 9216
TB = {n: 1024 * i for i, n in enumerate(["COS28", "NSIN28", "R2RE", "R2IM", "TWRC", "TWRS", "F8RE", "F8IM", "G8RE", "G8IM",
                                          "R2BRE", "R2BIM", "TWIC", "TWIS", "R1B0", "R1B1"])}
TB_SIZE = 16384
T1, EB, CT = 16896, 37376, 49664

def V(a, n=1): return f"v{a}" if n == 1 else f"v[{a}:{a+n-1}]"
def S(a, n=1): return f"s{a}" if n == 1 else f"s[{a}:{a+n-1}]"

class G:
    def __init__(s, stamps=False, opts=None):
        s.a = Asm(); s.stamps = stamps; s.o = opts or {}
    def stamp(s, i):
        if not s.stamps: return
        prof = s.o.get("prof")
        if prof:
            if isinstance(i, str):
                if i[:len(prof)] == prof: s.a(f"s_memtime {S(80+2*int(i[len(prof):]),2)}")
            return
        if isinstance(i, int): s.a(f"s_memrealtime {S(80+2*i,2)}")
    def stamp_flush(s):
        if not s.stamps: return
        a = s.a
        a("s_waitcnt lgkmcnt(0) vmcnt(0)")
        for i in range(10): a(f"v_mov_b32 v{4+i}, s{80+2*i}")
        a(f"""v_mov_b32 v14, 0
v_mov_b32 v15, s70
v_mov_b32 v2, 0
s_lshl_b32 s64, s2, 3
s_add_u32 s64, s64, s3
s_lshl_b32 s64, s64, 6
s_add_u32 s64, s64, {STAMP}
buffer_store_dwordx4 v[4:7], v2, s[32:35], s64 offen
buffer_store_dwordx4 v[8:11], v2, s[32:35], s64 offen offset:16
buffer_store_dwordx4 v[12:15], v2, s[32:35], s64 offen offset:32
s_waitcnt vmcnt(0)""")
    def srd(s, base, size):
        s.a(f"s_mov_b32 s{base+2}, {size}\ns_mov_b32 s{base+3}, 0x20000")
    def mfma(s, d, A, B, c=None):
        s.a(f"v_mfma_f32_16x16x32_bf16 {V(d,4)}, {V(A,4)}, {V(B,4)}, {'0' if c is None else V(c,4)}")
    def twiddle(s, dre, dim, co, si, P, conj, T=8, packed=False):
        a = s.a
        if packed:
            for h in (0, 2):
                a(f"v_pk_mul_f32 {V(T+h,2)}, {V(dim+h,2)}, {V(si+h,2)}")
                a(f"v_pk_mul_f32 {V(T+4+h,2)}, {V(dre+h,2)}, {V(si+h,2)}")
            for h in (0, 2):
                n = " neg_lo:[0,0,1] neg_hi:[0,0,1]"
                a(f"v_pk_fma_f32 {V(dre+h,2)}, {V(dre+h,2)}, {V(co+h,2)}, {V(T+h,2)}{n if conj else ''}")
                a(f"v_pk_fma_f32 {V(dim+h,2)}, {V(dim+h,2)}, {V(co+h,2)}, {V(T+4+h,2)}{'' if conj else n}")
        else:
            for r in range(4):
                a(f"v_mul_f32 v{T+r}, v{dim+r}, v{si+r}")
                a(f"v_mul_f32 v{T+4+r}, v{dre+r}, v{si+r}")
            for r in range(4):
                a(f"v_fma_f32 v{dre+r}, v{dre+r}, v{co+r}, {'-' if conj else ''}v{T+r}")
                a(f"v_fma_f32 v{dim+r}, v{dim+r}, v{co+r}, {'' if conj else '-'}v{T+4+r}")
        s.pack(dre, dim, P)
    def pack(s, dre, dim, P):
        for r in range(4): s.a(f"v_cvt_pk_bf16_f32 v{P[r]}, v{dre+r}, v{dim+r}")
    def sincos4(s, a0, step, co, si, T=8):
        a = s.a
        a(f"v_add_f32 v{T+1}, v{a0}, v{step}")
        a(f"v_fma_f32 v{T+2}, v{step}, 2.0, v{a0}")
        a(f"v_add_f32 v{T+3}, v{T+2}, v{step}")
        regs = [a0, T+1, T+2, T+3]
        for r in range(4):
            a(f"v_cos_f32 v{co+r}, v{regs[r]}")
            a(f"v_sin_f32 v{si+r}, v{regs[r]}")
    def tbl_srd(s):
        s.a("s_getpc_b64 s[36:37]")
        n = s.a.uid()
        s.a.raw(f"L_pc{n}:")
        s.a(f"s_add_u32 s36, s36, L_tbl-L_pc{n}\ns_addc_u32 s37, s37, 0")
        s.srd(36, TB_SIZE)
    def tload(s, items, vaddr, sbase=None):
        cur = None
        for r, off in items:
            b = off & ~4095
            if b != cur:
                if sbase is None: s.a(f"s_mov_b32 s61, {b}")
                else: s.a(f"s_add_u32 s61, {sbase}, {b}")
                cur = b
            s.a(f"buffer_load_dwordx4 {V(r,4)}, v{vaddr}, s[36:39], s61 offen offset:{off - b}")
        return len(items)
    def nonce_issue(s, vn):
        s.a(f"s_mov_b32 s61, {EPOCH}\nbuffer_load_dword v{vn}, off, s[32:35], s61")
    def nonce_get(s, vn):
        s.a(f"v_add_u32 v{vn}, 1, v{vn}\nv_readfirstlane_b32 s60, v{vn}")
    def spin(s, tag, sleep):
        s.a(f"""s_add_u32 s70, s70, 1
s_cmp_gt_u32 s70, {SPIN_MAX}
s_cbranch_scc1 L_exit
s_sleep {sleep}
s_branch L_poll_{tag}""")
    def gate_issue(s, tag, K, stride, off, sreg, vt, wave=0):
        s.a(f"""
v_mul_u32_u24 v{vt+1}, {stride}, v3
s_cmp_lg_u32 s3, {wave}
s_cbranch_scc1 L_gi_{tag}
v_mov_b32 v{vt}, 0
s_mov_b64 exec, {hex((1<<K)-1)}
buffer_atomic_or v{vt}, v{vt+1}, s[32:35], {sreg} offen offset:{off} sc0 sc1
s_mov_b64 exec, -1
L_gi_{tag}:""")
    def gate_wait(s, tag, K, stride, off, sreg, vt, wave=0, sentinel=False):
        a = s.a
        a(f"""
s_cmp_lg_u32 s3, {wave}
s_cbranch_scc1 L_gd_{tag}
s_mov_b64 exec, {hex((1<<K)-1)}
s_branch L_gc_{tag}
L_poll_g{tag}:
v_mov_b32 v{vt}, 0
buffer_atomic_or v{vt}, v{vt+1}, s[32:35], {sreg} offen offset:{off} sc0 sc1
L_gc_{tag}:
s_waitcnt vmcnt(0)
v_cmp_{'eq' if sentinel else 'ne'}_u32 vcc, {'-1' if sentinel else 's60'}, v{vt}
s_cbranch_vccz L_gok_{tag}""")
        s.spin("g" + tag, s.o.get("gsl", 1))
        a(f"""L_gok_{tag}:
s_mov_b64 exec, -1
L_gd_{tag}:""")
    def tagcheck(s, regs, tag, sleep, mask="s[62:63]"):
        a = s.a
        a(f"v_cmp_ne_u32 vcc, s60, v{regs[0]}")
        for i, r in enumerate(regs[1:]):
            a(f"v_cmp_ne_u32 {S(72+2*(i%4),2)}, s60, v{r}")
            if i % 4 == 3 or i == len(regs) - 2:
                for j in range(i % 4 + 1): a(f"s_or_b64 vcc, vcc, {S(72+2*j,2)}")
        a(f"s_and_b64 vcc, vcc, {mask}\ns_cbranch_scc0 L_got_{tag}")
        s.spin(tag, sleep)
        a(f"L_got_{tag}:")
    def lanes(s):
        s.a("""v_lshrrev_b32 v4, 6, v0
v_and_b32 v3, 63, v0
v_readfirstlane_b32 s3, v4
v_and_b32 v1, 15, v0
v_bfe_u32 v2, v0, 4, 2
s_mov_b32 s70, 0""")
    def prefetch(s, tag):
        if s.o.get("nopf"): return
        s.a(f"""
s_cmp_lg_u32 s3, 7
s_cbranch_scc1 L_nopf_{tag}
s_lshr_b32 s64, s2, 3
s_and_b32 s64, s64, 1
s_lshl_b32 s64, s64, 13
s_sub_u32 s74, s36, L_tbl-{KNAME}
s_subb_u32 s75, s37, 0
v_lshl_add_u32 v124, v3, 7, s64
v_min_u32 v124, L_tbl-{KNAME}-4, v124
global_load_dword v124, v124, s[74:75]
L_nopf_{tag}:""")

    def entry(s):
        a = s.a
        s.stamp(0)
        a(f"""
s_load_dwordx16 s[4:19], s[0:1], 0
s_load_dwordx8 s[20:27], s[0:1], 64
s_load_dwordx2 s[32:33], s[0:1], 96
s_cmp_ge_u32 s2, {NA0}
s_cbranch_scc1 L_A
""")
        s.lanes()
        s.srd(40, 1835008); s.srd(32, "0x10000000")
        s.tbl_srd()
        a(f"""v_lshlrev_b32 v7, 4, v3            ; lane*16
s_cmp_ge_u32 s2, {NT0}
s_cbranch_scc1 L_T
""")
    def cread(s, items):
        for r, n in items: s.a(f"ds_read_b128 {V(r,4)}, v7 offset:{CT + TB[n]}")
    def matrix(s, a0, step, re, im, conj):
        s.sincos4(a0, step, 96, 100)
        for j in range(4):
            s.a(f"v_cvt_pk_bf16_f32 v{re+j}, v{96+j}, {'-' if conj else ''}v{100+j}")
            s.a(f"v_cvt_pk_bf16_f32 v{im+j}, {'' if conj else '-'}v{100+j}, v{96+j}")
    def b_common(s):
        a = s.a
        s.srd(44, 3670016); s.srd(48, 921600); s.srd(52, 921600)
        a(f"""
v_cmp_eq_u32 s[62:63], 15, v1
s_mov_b64 s[44:45], s[24:25]
s_mov_b64 s[48:49], s[20:21]
s_mov_b64 s[52:53], s[22:23]
s_and_b32 s66, s2, 15          ; f1
s_lshr_b32 s67, s2, 4          ; k2
s_mul_i32 s64, s67, 56
s_sub_u32 s65, 896, s64
s_cmp_lt_u32 s67, 8
s_cselect_b32 s64, s64, s65
s_cselect_b32 s65, 2, -2
v_and_b32 v8, 1, v2
v_lshrrev_b32 v9, 1, v2
v_mul_i32_i24 v6, s65, v1
v_mul_u32_u24 v10, {1024*450}, v8
v_mul_u32_u24 v11, {16*450}, v9
v_add_u32 v6, s64, v6
v_add3_u32 v6, v6, v10, v11
s_lshl_b32 s64, s3, 5
s_add_u32 s64, s64, s66
s_mul_i32 s68, s64, 450        ; W soffset r=0
v_lshlrev_b32 v10, 2, v1
v_lshl_add_u32 v24, v2, 19, v10    ; g*524288 + 4c
v_lshl_add_u32 v27, v2, 11, v10    ; Z1 poll: g*2048 + 4c
v_mul_u32_u24 v12, 48, v1
v_mul_u32_u24 v28, 3072, v2
s_lshl_b32 s64, s3, 2
s_add_u32 s64, s64, {EB}
v_add3_u32 v28, v28, v12, s64          ; E b32: 4g*768 + 48c + 4w
v_mul_u32_u24 v9, 768, v9
v_lshl_add_u32 v9, v8, 4, v9
s_mul_i32 s64, s3, 1536
s_add_u32 s64, s64, {EB}
v_add3_u32 v29, v9, v12, s64           ; E b128
v_cvt_f32_u32 v4, v1
v_lshlrev_b32 v5, 2, v2
v_cvt_f32_u32 v5, v5
v_mul_f32 v4, {f2h(1/16)}, v4          ; c/16
v_cvt_f32_u32 v14, s3
v_mul_f32 v14, {f2h(1/128)}, v14       ; b/128
v_mul_f32 v13, v4, v14
v_mul_f32 v13, {f2h(16.0)}, v13
v_fmac_f32 v13, v4, v5
""")
        s.matrix(13, 4, 64, 68, False)
        a("v_add_f32 v12, v4, v14\nv_mul_f32 v13, v12, v5")
        s.matrix(13, 12, 72, 76, True)
    def w_prefetch(s, d):
        s.a(f"""
s_lshl_b32 s64, s67, 3
s_add_u32 s64, s64, s3
s_lshl_b32 s64, s64, 4
s_add_u32 s64, s64, s66
s_mul_i32 s64, s64, 450
v_lshlrev_b32 v8, 7, v3
v_min_u32 v8, 448, v8
buffer_load_ushort v{d}, v8, s[48:51], s64 offen
buffer_load_ushort v{d+1}, v8, s[52:55], s64 offen
""")
        return 2
    def w_loads(s):
        a = s.a
        for r in range(4):
            a(f"buffer_load_short_d16_hi v{16+r}, v6, s[48:51], s68 offen")
            a(f"buffer_load_short_d16_hi v{20+r}, v6, s[52:55], s68 offen")
            if r < 3: a(f"s_add_u32 s68, s68, {256*450}")
    def row_s1(s):
        a = s.a
        a(f"""
s_lshl_b32 s64, s3, 8
s_add_u32 s64, s64, s2
s_mul_i32 s64, s64, 896
s_lshl_b32 s65, s3, 11
s_mov_b32 m0, s65
s_waitcnt lgkmcnt(0)
s_mov_b64 s[40:41], s[18:19]
buffer_load_dwordx4 v7, s[40:43], s64 offen lds
s_add_u32 s64, s64, {128*896}
s_add_u32 m0, s65, 1024
buffer_load_dwordx4 v7, s[40:43], s64 offen lds
s_add_u32 m0, s65, {CT}
buffer_load_dwordx4 v7, s[36:39], s65 offen lds
buffer_load_dwordx4 v7, s[36:39], s65 offen offset:1024 lds
""")
        s.prefetch("r")
        s.nonce_issue(31)
        s.stamp(1)
        s.b_common()
        wp = s.o.get("wp", 1)
        if wp == 0: s.w_prefetch(94)
        a(f"""
v_cvt_f32_u32 v14, s2
v_mul_f32 v14, {f2h(1/2048)}, v14          ; sigma/2048
v_mul_f32 v13, v4, v14
v_mul_f32 v13, {f2h(16.0)}, v13
v_fmac_f32 v13, v4, v5
""")
        s.matrix(13, 4, 56, 60, False)
        a("v_add_f32 v12, v4, v14\nv_mul_f32 v13, v12, v5")
        s.matrix(13, 12, 80, 84, True)
        a(f"""
v_mul_u32_u24 v25, 5120, v2
v_mul_u32_u24 v8, 80, v1
s_lshl_b32 s64, s3, 3
s_add_u32 s64, s64, {T1}
v_add3_u32 v25, v25, v8, s64          ; T write: g*5120 + 80c + 8w
s_mul_i32 s64, s3, 2560
s_add_u32 s64, s64, {T1}
v_lshl_add_u32 v26, v2, 4, v8
v_add_u32 v26, s64, v26               ; T read: 2w*1280 + 80c + 16g
s_lshl_b32 s65, s3, 11
v_lshl_add_u32 v120, v3, 3, s65
v_and_b32 v10, 1, v2
v_lshl_add_u32 v11, v10, 4, v1        ; n1 = c + 16(g&1)
v_lshlrev_b32 v30, 5, v11
v_lshrrev_b32 v12, 1, v2
v_lshl_add_u32 v30, v12, 4, v30
v_cmp_lt_u32 vcc, 27, v11
v_mov_b32 v12, 0x10000000
v_cndmask_b32 v30, v30, v12, vcc
v_lshlrev_b32 v5, 8, v2
v_lshl_add_u32 v5, v1, 2, v5
v_cmp_eq_u32 s[28:29], 3, v2
""")
        if s.o.get("wd"): a(f"s_sleep {s.o['wd']}")
        if wp == 1: s.w_prefetch(94)
        a(f"s_setprio BPRIO\ns_waitcnt vmcnt({2 if wp < 2 else 0})")
        s.stamp(2); s.stamp("s0")
        a("s_barrier")
        s.stamp("s1")
        pk = s.o.get("pk", True)
        a(f"""
ds_read_b64_tr_b16 v[96:97], v120
ds_read_b64_tr_b16 v[98:99], v120 offset:512
""")
        s.cread([(32, "COS28"), (36, "NSIN28")])
        a(f"""
ds_read_b64_tr_b16 v[100:101], v120 offset:1024
ds_read_b64_tr_b16 v[102:103], v120 offset:1536
""")
        s.cread([(48, "TWRC"), (52, "TWRS"), (40, "R2RE"), (44, "R2IM")])
        if s.o.get("wg", 0) == 0: s.w_loads()
        s.stamp("s2")
        s.nonce_get(31)
        a("s_waitcnt lgkmcnt(6)")
        s.mfma(104, 96, 32); s.mfma(108, 96, 36)
        a("s_waitcnt lgkmcnt(4)")
        s.mfma(112, 100, 32); s.mfma(116, 100, 36)
        a("s_waitcnt lgkmcnt(0)")
        s.stamp("s3")
        s.twiddle(104, 108, 48, 52, [96, 97, 98, 99], False, packed=pk)
        s.mfma(104, 40, 96); s.mfma(108, 44, 96)
        s.twiddle(112, 116, 48, 52, [100, 101, 102, 103], False, packed=pk)
        s.mfma(112, 40, 100); s.mfma(116, 44, 100)
        s.stamp("s4")
        s.pack(104, 108, [120, 122, 124, 126]); s.pack(112, 116, [121, 123, 125, 127])
        for r in range(4): a(f"ds_write_b64 v25, {V(120+2*r,2)} offset:{1280*r}")
        a(f"""
s_lshl_b32 s64, s2, 6
s_lshl_b32 s65, s3, 14
s_add_u32 s64, s64, s65            ; sigma*64 + 2w*8192
s_waitcnt lgkmcnt(0)""")
        s.stamp("s5")
        a("s_barrier")
        s.stamp("s6")
        a(f"""
ds_read_b128 v[96:99], v26
ds_read_b128 v[100:103], v26 offset:1280
s_waitcnt lgkmcnt(1)
""")
        s.mfma(104, 56, 96); s.mfma(108, 60, 96)
        a("s_waitcnt lgkmcnt(0)")
        s.mfma(112, 56, 100); s.mfma(116, 60, 100)
        s.stamp("s7")
        for t, (dr, di, P) in enumerate(((104, 108, 120), (112, 116, 124))):
            s.pack(dr, di, [P, P+1, P+2, P+3])
            for r in range(4): a(f"v_cndmask_b32 v{P+r}, v{P+r}, v31, s[62:63]")
            for r in range(4):
                a(f"s_add_u32 s65, s64, {Z1 + t*8192 + r*131072}")
                a(f"buffer_store_dword v{P+r}, v24, s[32:35], s65 offen sc1")
        s.stamp(3); s.stamp("s8")
        s.z1_gate_issue("r")
        if s.o.get("wg", 0) == 1:
            a("s_barrier"); s.w_loads()
        a("s_branch L_col")
    def z1_gate_issue(s, tag):
        s.a(f"""
s_lshl_b32 s64, s66, 4
s_add_u32 s64, s64, s67
s_lshl_b32 s64, s64, 13
s_lshl_b32 s65, s3, 6
s_add_u32 s69, s64, s65
s_add_u32 s69, s69, {Z1}           ; Z1 + unit*8192 + w*64
""")
        s.gate_issue("z1" + tag, 4, 2048 + 64 * 5, 60, "s69", 14)
    def t_u(s):
        a = s.a
        a(f"""
L_T:
s_sub_u32 s71, s2, 128
s_lshl_b32 s64, s71, 4
s_lshl_b32 s65, s71, 7
s_sub_u32 s65, s65, {128*128 - 15}
s_cmp_ge_u32 s2, 256
s_cselect_b32 s28, s65, s64
s_cselect_b32 s58, 16, 1
s_cselect_b32 s59, 448, 0
s_mul_i32 s66, s58, 896
s_mul_i32 s64, s28, 896
s_mul_i32 s65, s66, s3
s_add_u32 s64, s64, s65
s_lshl_b32 s66, s66, 3
s_mul_i32 s65, s3, 1040
s_mov_b32 m0, s65
s_waitcnt lgkmcnt(0)
s_mov_b64 s[40:41], s[4:5]
buffer_load_dwordx4 v7, s[40:43], s64 offen lds
s_add_u32 s64, s64, s66
s_add_u32 m0, s65, {8*1040}
buffer_load_dwordx4 v7, s[40:43], s64 offen lds
s_and_b32 s64, s3, 3
s_lshl_b32 s64, s64, 10
s_add_u32 s64, s64, {TB["F8RE"]}
s_add_u32 m0, s64, {CT}
buffer_load_dwordx4 v7, s[36:39], s64 offen lds
""")
        s.prefetch("t")
        s.nonce_issue(31)
        s.stamp(1)
        a(f"""
s_cmp_eq_u32 s59, 0
s_cselect_b32 s59, 840, s59
s_mul_i32 s58, s58, 1792
v_mul_u32_u24 v8, {(1<<20)//56+1}, v0
v_lshrrev_b32 v8, 20, v8
v_mul_u32_u24 v9, 56, v8
v_sub_u32 v9, v0, v9               ; grp0
v_add_u32 v10, 512, v0
v_mul_u32_u24 v11, {(1<<20)//56+1}, v10
v_lshrrev_b32 v11, 20, v11         ; row1
v_mul_u32_u24 v12, 56, v11
v_sub_u32 v12, v10, v12            ; grp1
v_lshlrev_b32 v9, 4, v9
v_lshlrev_b32 v12, 4, v12
global_load_dwordx4 v[112:115], v9, s[16:17]
global_load_dwordx4 v[116:119], v12, s[16:17]
v_min_u32 v11, 15, v11
v_mul_u32_u24 v25, 912, v8
v_add_u32 v25, v25, v9
v_mul_u32_u24 v26, 912, v11
v_add_u32 v26, v26, v12
v_mul_u32_u24 v48, s58, v8
v_add_u32 v48, v48, v9
v_mul_u32_u24 v49, s58, v11
v_add_u32 v49, v49, v12
v_mov_b32 v13, 0x10000000
v_cmp_gt_u32 vcc, s59, v0
v_cndmask_b32 v48, v13, v48, vcc
v_cmp_gt_u32 vcc, s59, v10
v_cndmask_b32 v49, v13, v49, vcc
v_lshl_add_u32 v104, v8, 7, v25
v_lshl_add_u32 v108, v11, 7, v26
v_and_b32 v10, 3, v0
v_cmp_eq_u32 s[56:57], 3, v10
v_mul_u32_u24 v10, 3648, v10
v_and_b32 v11, 0xfffffffc, v0
v_add_u32 v50, v10, v11
v_mul_u32_u24 v120, 1040, v1
v_lshl_add_u32 v120, v2, 2, v120
s_lshl_b32 s64, s3, 4
v_add_u32 v120, s64, v120          ; LDS: 1040c + 4g + 16w
v_mul_u32_u24 v121, {PSTR}, v2
v_lshl_add_u32 v121, v1, 2, v121   ; g*PSTR + 4c
v_lshlrev_b32 v30, 4, v0           ; tid*16
v_cmp_gt_u32 vcc, 384, v0
s_mov_b64 s[30:31], vcc
s_mul_i32 s29, s71, 14336
s_add_u32 s29, s29, {YT}
s_mul_i32 s28, s28, 1792
""")
        s.b_common()
        wp = s.o.get("wp", 1)
        if s.o.get("wdt"): a(f"s_sleep {s.o['wdt']}")
        if wp < 2: s.w_prefetch(62)
        a(f"""
s_mul_i32 s64, s3, {4*PSTR}
s_lshl_b32 s65, s71, 6
s_add_u32 s64, s64, s65
s_add_u32 s64, s64, {UT}
s_setprio BPRIO
s_waitcnt vmcnt({2 if wp < 2 else 0})
""")
        s.stamp(2)
        a("s_barrier")
        for i in range(7): a(f"ds_read_b32 v{96+i}, v120 offset:{128*i}")
        s.nonce_get(31)
        for i in range(7):
            a(f"s_waitcnt lgkmcnt({6-i})")
            a(f"v_cndmask_b32 v{96+i}, v{96+i}, v31, s[62:63]")
            a(f"buffer_store_dword v{96+i}, v121, s[32:35], s64 offen sc1")
            if i < 6: a(f"s_add_u32 s64, s64, {32*PSTR}")
        s.stamp(3)
        a(f"""
ds_read_b128 v[104:107], v104
ds_read_b128 v[108:111], v108
v_mov_b32 v15, 0
s_mov_b32 s69, 0
s_cmp_ge_u32 s2, 256
s_cbranch_scc1 L_T_ud
""")
        s.z1_gate_issue("t")
        a("s_barrier")
        s.w_loads()
        a("L_T_ud:\ns_setprio 0\ns_waitcnt lgkmcnt(0)")
        for it in range(2):
            for j in range(4):
                u, d, o = 104 + 4*it + j, 112 + 4*it + j, 88 + 4*it + j
                a(f"""v_lshlrev_b32 v8, 16, v{u}
v_lshlrev_b32 v9, 16, v{d}
v_and_b32 v10, 0xffff0000, v{u}
v_and_b32 v11, 0xffff0000, v{d}
v_mul_f32 v8, v8, v9
v_mul_f32 v10, v10, v11
v_cvt_pk_bf16_f32 v{o}, v8, v10""")
        a("s_setprio BPRIO\ns_cmp_ge_u32 s2, 256\ns_cbranch_scc1 L_Ty")
    def column(s):
        a = s.a
        a("L_col:")
        s.cread([(32, "F8RE"), (36, "F8IM"), (40, "G8RE"), (44, "G8IM")])
        s.stamp(4)
        s.gate_wait("z1", 4, 2048 + 64 * 5, 60, "s69", 14)
        a("s_waitcnt lgkmcnt(0)\ns_barrier\nL_poll_z1:")
        for j in range(4): a(f"buffer_load_dword v{96+j}, v27, s[32:35], s69 offen offset:{512*j} sc1")
        a("s_waitcnt vmcnt(0)")
        s.tagcheck([96, 97, 98, 99], "z1", s.o.get("sl", 4))
        s.stamp(5)
        s.mfma(104, 64, 96); s.mfma(108, 68, 96)
        s.pack(104, 108, [120, 121, 122, 123])
        for r in range(4): a(f"ds_write_b32 v28, v{120+r} offset:{768*r}")
        a("s_waitcnt lgkmcnt(0)\ns_barrier\nds_read_b128 v[96:99], v29\ns_waitcnt lgkmcnt(0)")
        s.mfma(104, 32, 96); s.mfma(108, 36, 96)
        s.twiddle(104, 108, 16, 20, [96, 97, 98, 99], True)
        s.mfma(104, 40, 96); s.mfma(108, 44, 96)
        s.pack(104, 108, [120, 121, 122, 123])
        a("ds_write_b128 v29, v[120:123]\ns_waitcnt lgkmcnt(0)\ns_barrier")
        for j in range(4): a(f"ds_read_b32 v{96+j}, v28 offset:{768*j}")
        a(f"""
s_lshl_b32 s64, s3, 14
s_lshl_b32 s65, s67, 10
s_add_u32 s64, s64, s65
s_lshl_b32 s65, s66, 6
s_add_u32 s64, s64, s65
s_waitcnt lgkmcnt(0)
""")
        s.mfma(104, 72, 96); s.mfma(108, 76, 96)
        s.pack(104, 108, [120, 121, 122, 123])
        for r in range(4): a(f"v_cndmask_b32 v{120+r}, v{120+r}, v31, s[62:63]")
        for r in range(4):
            a(f"s_add_u32 s65, s64, {Z2 + r*131072}")
            a(f"buffer_store_dword v{120+r}, v24, s[32:35], s65 offen sc1")
        s.stamp(6)
        a(f"s_cmp_ge_u32 s2, {NT0}\ns_cbranch_scc1 L_Ty")
    def row_inv(s):
        a = s.a
        a(f"""
s_lshl_b32 s64, s2, 14
s_lshl_b32 s65, s3, 11
s_add_u32 s69, s64, s65
s_add_u32 s69, s69, {Z2}
""")
        s.gate_issue("z2", 4, 4096 + 64 * 5, 60, "s69", 14)
        s.cread([(32, "R2BRE"), (36, "R2BIM"), (40, "TWIC"), (44, "TWIS"), (48, "R1B0"), (52, "R1B1")])
        s.gate_wait("z2", 4, 4096 + 64 * 5, 60, "s69", 14)
        a("s_waitcnt lgkmcnt(0)\ns_barrier\nL_poll_z2:")
        for t in range(2):
            for j in range(4): a(f"buffer_load_dword v{96+4*t+j}, v5, s[32:35], s69 offen offset:{1024*t+64*j} sc1")
        a("s_waitcnt vmcnt(0)")
        s.tagcheck(list(range(96, 104)), "z2", s.o.get("sl", 4))
        s.stamp(7)
        pk = s.o.get("pk2", True)
        s.mfma(104, 80, 96); s.mfma(108, 84, 96); s.mfma(112, 80, 100); s.mfma(116, 84, 100)
        s.pack(104, 108, [120, 122, 124, 126]); s.pack(112, 116, [121, 123, 125, 127])
        for r in range(4): a(f"ds_write_b64 v25, {V(120+2*r,2)} offset:{1280*r}")
        a(f"""
s_lshl_b32 s64, s3, 8
s_add_u32 s64, s64, s2
s_mul_i32 s64, s64, 1792
s_add_u32 s64, s64, 896
s_add_u32 s65, s64, {128*1792}
s_waitcnt lgkmcnt(0)
s_barrier
ds_read_b128 v[96:99], v26
ds_read_b128 v[100:103], v26 offset:1280
s_waitcnt lgkmcnt(1)
""")
        s.mfma(104, 96, 32); s.mfma(108, 96, 36)
        a("s_waitcnt lgkmcnt(0)")
        s.mfma(112, 100, 32); s.mfma(116, 100, 36)
        s.twiddle(104, 108, 40, 44, [96, 97, 98, 99], True, packed=pk)
        a("v_cndmask_b32_e64 v99, v99, 0, s[28:29]")
        s.mfma(104, 96, 48); s.mfma(108, 96, 52)
        s.twiddle(112, 116, 40, 44, [100, 101, 102, 103], True, packed=pk)
        a("v_cndmask_b32_e64 v103, v103, 0, s[28:29]")
        s.mfma(112, 100, 48); s.mfma(116, 100, 52)
        for t, (d0, d1, P, so) in enumerate(((104, 108, 120, "s64"), (112, 116, 124, "s65"))):
            a(f"""v_cvt_pk_bf16_f32 v{P}, v{d0}, v{d0+1}
v_cvt_pk_bf16_f32 v{P+1}, v{d0+2}, v{d0+3}
v_cvt_pk_bf16_f32 v{P+2}, v{d1}, v{d1+1}
v_cvt_pk_bf16_f32 v{P+3}, v{d1+2}, v{d1+3}
v_permlane16_swap_b32 v{P}, v{P+2}
v_permlane16_swap_b32 v{P+1}, v{P+3}
buffer_store_dwordx4 {V(P,4)}, v30, s[44:47], {so} offen""")
        s.stamp(8)
        a("s_branch L_exit")
    def t_y(s):
        a = s.a
        a(f"""
L_Ty:
s_add_u32 s64, s29, 8192
v_mov_b32 v103, v31
""")
        s.gate_issue("y", 4, 64 * 53, 60, "s29", 14)
        s.gate_wait("y", 4, 64 * 53, 60, "s29", 14)
        a(f"""
s_barrier
L_poll_y:
buffer_load_dwordx4 v[96:99], v30, s[32:35], s29 offen sc1
s_mov_b64 exec, s[30:31]
s_cbranch_execz L_y1
buffer_load_dwordx4 v[100:103], v30, s[32:35], s64 offen sc1
L_y1:
s_mov_b64 exec, -1
s_waitcnt vmcnt(0)
""")
        s.tagcheck([99, 103], "y", s.o.get("sl", 4), mask="s[56:57]")
        s.stamp(7)
        for r in range(4): a(f"ds_write_b32 v50, v{96+r} offset:{912*r}")
        a("s_mov_b64 exec, s[30:31]")
        for r in range(4): a(f"ds_write_b32 v50, v{100+r} offset:{912*r+512}")
        a(f"""
s_mov_b64 exec, -1
s_waitcnt lgkmcnt(0)
s_barrier
ds_read_b128 v[96:99], v25
ds_read_b128 v[100:103], v26
""")
        for it in range(2):
            a(f"s_waitcnt lgkmcnt({1-it})")
            for j in range(4):
                y, o = 96 + 4*it + j, 88 + 4*it + j
                a(f"""v_lshlrev_b32 v8, 16, v{y}
v_lshlrev_b32 v9, 16, v{o}
v_and_b32 v10, 0xffff0000, v{y}
v_and_b32 v11, 0xffff0000, v{o}
v_add_f32 v8, v8, v9
v_add_f32 v10, v10, v11
v_cvt_pk_bf16_f32 v{104+4*it+j}, v8, v10""")
            a(f"buffer_store_dwordx4 {V(104+4*it,4)}, v{48+it}, s[44:47], s28 offen")
        a(f"""
s_add_u32 s64, s71, s3
s_cmp_lg_u32 s64, 0
s_cbranch_scc1 L_noep
s_mov_b32 s61, {EPOCH}
s_mov_b64 exec, 1
buffer_store_dword v31, off, s[32:35], s61
s_mov_b64 exec, -1
L_noep:""")
        s.stamp(8)
        a("s_branch L_exit")
    def cmuls(s, lst):
        for d, x, e, t in lst:
            s.a(f"v_pk_mul_f32 {V(t,2)}, {V(x,2)}, {V(e,2)} op_sel:[1,1] op_sel_hi:[1,0] neg_lo:[1,0]")
        for d, x, e, t in lst:
            s.a(f"v_pk_fma_f32 {V(d,2)}, {V(x,2)}, {V(e,2)}, {V(t,2)} op_sel_hi:[0,1,1]")
    def exp2_bf16(s, pairs):
        L_HI = 1.4426950216293335; L_LO = 1.4426950408889634 - L_HI
        for fmt in (f"v_mul_f32 v{{t}}, {f2h(L_HI)}, v{{x}}", "v_exp_f32 v{d}, v{t}", "v_fma_f32 v{u}, v{x}, s71, -v{t}",
                    f"v_fmac_f32 v{{u}}, {f2h(L_LO)}, v{{x}}", f"v_mul_f32 v{{u}}, {f2h(math.log(2))}, v{{u}}",
                    "v_fma_f32 v{d}, v{d}, v{u}, v{d}", "v_cvt_pk_bf16_f32 v{d}, v{d}, v{d}", "v_and_b32 v{d}, 0xffff0000, v{d}"):
            for d, x, t in pairs: s.a(fmt.format(d=d, x=x, t=t, u=t + 1))
    def a_path(s):
        a = s.a
        a(f"""
L_A:
s_cmp_ge_u32 s2, {NWG}
s_cbranch_scc1 L_end
s_sub_u32 s66, s2, {NA0}           ; pair
s_lshl_b32 s64, s66, 10
v_lshl_add_u32 v24, v0, 1, s64
s_lshl_b32 s64, s66, 1
v_lshrrev_b32 v25, 8, v0
v_add_lshl_u32 v25, v25, s64, 1
s_waitcnt lgkmcnt(0)
global_load_short_d16_hi v114, v25, s[14:15]
global_load_short_d16_hi v4, v24, s[6:7]
global_load_short_d16_hi v5, v24, s[8:9]
global_load_short_d16_hi v6, v24, s[10:11]
global_load_short_d16_hi v7, v24, s[12:13]
""")
        s.stamp(1)
        s.a("v_lshrrev_b32 v32, 6, v0\nv_and_b32 v3, 63, v0\nv_readfirstlane_b32 s3, v32\nv_and_b32 v1, 15, v0\nv_bfe_u32 v2, v0, 4, 2\ns_mov_b32 s70, 0")
        s.srd(32, "0x10000000")
        s.tbl_srd()
        s.prefetch("a")
        s.nonce_issue(115)
        a(f"""
s_lshr_b32 s67, s3, 2              ; ch
s_and_b32 s68, s3, 3               ; q4
v_and_b32 v32, 255, v0
v_lshlrev_b32 v32, 4, v32          ; 16*tau
v_lshlrev_b32 v25, 4, v3           ; 16*lane
""")
        nl = 1
        def addr_pairs(fl, dst):
            for i in range(0, len(fl), 2):
                a(f"v_cvt_pk_bf16_f32 v{fl[i]}, v{fl[i]}, v{fl[min(i+1, len(fl)-1)]}")
            for i in range(0, len(fl), 2):
                a(f"v_lshlrev_b32 v{fl[i]}, 1, v{fl[i]}")
            for i in range(len(fl)):
                a(f"v_add_u32_sdwa v{dst[i]}, s64, v{fl[i & ~1]} dst_sel:DWORD dst_unused:UNUSED_PAD src0_sel:DWORD src1_sel:WORD_{i & 1}")
        a(f"""
s_mul_i32 s72, s67, {KCH}
s_add_u32 s72, s72, {KC}
s_sub_u32 s64, s72, {2*KB}
v_lshrrev_b32 v33, 1, v32
v_sub_u32 v33, 2047, v33
v_cvt_f32_i32 v40, v33
""")
        for e in range(1, 11):
            a(f"v_add_f32 v{40+e}, {f2h(-float(e))}, v40")
        a(f"v_mov_b32 v34, {f2h(2064.0)}")
        for e in (8, 9, 10):
            a(f"v_cmp_gt_f32 vcc, 0, v{40+e}\nv_cndmask_b32 v{40+e}, v{40+e}, v34, vcc")
        addr_pairs(list(range(40, 51)), list(range(8, 19)))
        a("v_max_i32 v15, s72, v15")
        a(f"""
v_lshrrev_b32 v34, 1, v2           ; g>>1
v_and_b32 v35, 1, v2               ; g&1
s_cmp_eq_u32 s68, 1
s_cbranch_scc1 L_sc1
s_cmp_eq_u32 s68, 2
s_cbranch_scc1 L_sc2
v_lshlrev_b32 v36, 7, v34
v_lshl_add_u32 v36, v35, 2, v36    ; 128(g>>1) + 4(g&1) + r
v_mov_b32 v37, 1
v_mov_b32 v38, 2
s_branch L_scd
L_sc1:
v_lshlrev_b32 v36, 7, v2
v_add_u32 v36, 256, v36            ; g<2: 256+128g + 2r
v_lshlrev_b32 v37, 8, v2           ; g>=2: 256g + 128(r>>1) + 4(r&1)
v_cmp_lt_u32 vcc, 1, v2
v_cndmask_b32 v36, v36, v37, vcc
v_cndmask_b32_e64 v37, 2, 4, vcc
v_mov_b32 v38, 128
v_cndmask_b32 v38, 4, v38, vcc
s_branch L_scd
L_sc2:
v_lshlrev_b32 v36, 9, v2
v_add_u32 v36, 1024, v36           ; 1024 + 128(4g+r)
v_mov_b32 v37, 128
v_mov_b32 v38, 256
L_scd:
v_lshl_add_u32 v36, v1, 3, v36
v_add_u32 v37, v36, v37
v_sub_u32 v39, v37, v36
v_add_u32 v38, v36, v38
v_add_u32 v39, v38, v39
v_mov_b32 v34, 2080
v_cmp_lt_u32 vcc, 2048, v36
v_cndmask_b32 v36, v36, v34, vcc
v_cmp_lt_u32 vcc, 2048, v37
v_cndmask_b32 v37, v37, v34, vcc
v_cmp_lt_u32 vcc, 2048, v38
v_cndmask_b32 v38, v38, v34, vcc
v_cmp_lt_u32 vcc, 2048, v39
v_cndmask_b32 v39, v39, v34, vcc
v_cvt_f32_u32 v40, v36
v_cvt_f32_u32 v41, v37
v_cvt_f32_u32 v42, v38
v_cvt_f32_u32 v43, v39
""")
        addr_pairs([40, 41, 42, 43], [20, 21, 22, 23])
        a("v_max_i32 v20, s72, v20")
        a(f"""
v_cmp_eq_u32 s[62:63], 15, v1
s_mul_i32 s69, s67, {CH}
s_add_u32 s64, s69, {KCP}
v_add_u32 v26, s64, v32
s_mul_i32 s59, s3, {WV}
v_mul_u32_u24 v24, {RS}, v1
v_lshl_add_u32 v24, v2, 4, v24
v_add_u32 v24, s59, v24
v_sub_u32 v34, 3, v1
v_and_b32 v34, 3, v34              ; s = (3-i)&3
v_mul_u32_u24 v35, 4158, v34       ; s*4160 - 2s
v_lshlrev_b32 v36, 4, v2
v_lshlrev_b32 v37, 1, v1
v_sub_u32 v36, v36, v37            ; 16g - 2i
s_lshl_b32 s64, s68, 7
s_sub_u32 s65, s69, s64
s_add_u32 s72, s65, {KCP + 2*2031 - 64 - 512*7}
v_add3_u32 v27, v35, v36, s72      ; vA
v_lshlrev_b32 v28, 5, v1
v_lshl_add_u32 v28, v2, 4, v28
s_add_u32 s72, s65, {UA + 448 - 64}
v_add_u32 v28, s72, v28            ; vB
v_lshlrev_b32 v29, 2, v3           ; 64g + 4c
s_lshl_b32 s64, s3, 7
s_add_u32 s64, s64, {UA + 480}
v_lshl_add_u32 v30, v3, 1, s64
s_lshl_b32 s64, s3, 2
v_add_u32 v34, s64, v2
v_lshlrev_b32 v34, 8, v34
v_lshl_add_u32 v34, v1, 5, v34
v_add_u32 v113, {UA + 480 + 30}, v34
v_cmp_gt_u32 vcc, 8, v1
s_cmp_lt_u32 s3, 4
s_cselect_b64 s[30:31], vcc, 0
s_cselect_b64 s[28:29], s[62:63], 0
s_mul_i32 s58, s66, {PSTR}
s_add_u32 s58, s58, {UT}
s_lshl_b32 s64, s3, 8
s_add_u32 s57, s58, s64
s_mov_b32 s71, {f2h(1.4426950216293335)}
s_mov_b32 m0, s59
s_waitcnt vmcnt({nl})
""")
        a("s_cmp_lg_u32 s3, 7\ns_cbranch_scc1 L_a_w\ns_waitcnt vmcnt(5)\nL_a_w:") if False else None
        if s.o.get("ap"): a(f"s_setprio {s.o['ap']}")
        s.stamp(2); s.stamp("k0")
        s.exp2_bf16([(31, 114, 34), (32, 4, 36)])
        a(f"""
v_mul_f32 v33, v5, v31             ; zi
v_mul_f32 v32, v32, v31            ; -zr
v_mul_f32 v33, 0.15915494, v33     ; revolutions
v_mul_f32 v32, {f2h(-1.4426950408889634)}, v32     ; zr*log2e
v_add_f32 v31, v31, v31
v_mul_f32 v35, {f2h(8.0)}, v33
v_mul_f32 v37, {f2h(128.0)}, v33
v_mul_f32 v34, {f2h(8.0)}, v32
v_mul_f32 v36, {f2h(128.0)}, v32
v_fract_f32 v35, v35
v_fract_f32 v37, v37
v_fract_f32 v33, v33
v_exp_f32 v34, v34
v_cos_f32 v58, v35
v_sin_f32 v59, v35
v_exp_f32 v36, v36
v_cos_f32 v60, v37
v_sin_f32 v61, v37
v_exp_f32 v32, v32
v_cos_f32 v56, v33
v_sin_f32 v57, v33
v_mul_f32 v42, v6, v31
v_mul_f32 v43, v7, v31             ; G0 = 2C dt
v_mul_f32 v58, v58, v34
v_mul_f32_e64 v59, v59, -v34       ; conj E8
v_mul_f32 v60, v60, v36
v_mul_f32 v61, v61, v36
v_mul_f32 v56, v56, v32
v_mul_f32 v57, v57, v32
""")
        s.stamp("k1")
        E1, E8, E128, E2, E4 = 56, 58, 60, 38, 40
        pkr = [54, 55, 62, 63, 4, 5, 6, 7]
        st = {"k": 0}
        def emit(lst):
            ps = []
            for x, buf, row in lst:
                p = pkr[st["k"] % 8]; st["k"] += 1; ps.append(p)
                a(f"v_cvt_pk_bf16_f32 v{p}, v{x}, v{x+1}")
            for p, (x, buf, row) in zip(ps, lst):
                a(f"ds_write_addtid_b32 v{p} offset:{buf*BUF + row*RS}")
        X0, X1, XV, XW, T0, T1, T2, T3 = 42, 44, 46, 32, 48, 50, 52, 108
        GA, GB = 34, 36
        E16 = 110
        a(f"v_mov_b32 v7, 0x3f80\nds_write_addtid_b32 v7 offset:0")
        s.cmuls([(X1, X0, E128, T1), (E16, E8, E8, T2)])
        emit([(E8, 0, 1), (X0, 1, 0)])
        s.cmuls([(GA, X1, E128, T0), (XW, E16, E8, T3), (XV, E16, E16, T2)])
        emit([(X1, 1, 8), (E16, 0, 2), (XW, 0, 3), (XV, 0, 4)])
        for j in range(1, 8):
            l = [(X0, X0, E1, T0), (X1, X1, E1, T1)]
            e = [(X0, 1, j), (X1, 1, 8 + j)]
            if j <= 6: l.append((XW, XW, E16, T3)); e.append((XW, 0, 3 + 2*j))
            if j <= 5: l.append((XV, XV, E16, T2)); e.append((XV, 0, 4 + 2*j))
            if j == 6: l.append((E2, E1, E1, T2))
            if j == 7: l += [(GB, GA, E128, T2), (E4, E2, E2, T3)]
            s.cmuls(l); emit(e)
        s.stamp("k2")
        a("s_waitcnt lgkmcnt(0)")
        s.stamp("k3")
        for ks in range(4): a(f"ds_read_b128 {V(64+4*ks,4)}, v24 offset:{64*ks}")
        for ks in range(4): a(f"ds_read_b128 {V(80+4*ks,4)}, v24 offset:{BUF+64*ks}")
        s.cmuls([(X0, GA, E2, T0), (X1, GB, E2, T1), (XV, GB, E128, T2), (E16, E128, E128, T3)])
        a("s_waitcnt lgkmcnt(4)")
        emit([(GA, 0, 0), (GB, 0, 4), (X0, 0, 1), (X1, 0, 5), (XV, 0, 8)])
        s.cmuls([(X0, X0, E2, T0), (X1, X1, E2, T1), (XW, XV, E128, T2), (GA, XV, E4, T3)])
        a("s_waitcnt lgkmcnt(5)")
        for ks in range(4): s.mfma(96, 80+4*ks, 64+4*ks, None if ks == 0 else 96)
        emit([(X0, 0, 2), (X1, 0, 6), (XW, 0, 10), (GA, 0, 9)])
        s.stamp("k4")
        s.gate_issue("u", 4, 64 * 43, 60, "s58", 116, wave=7)
        s.cmuls([(X0, X0, E2, T0), (X1, X1, E2, T1), (XV, XV, E16, T2), (GA, XW, E4, T3)])
        emit([(X0, 0, 3), (X1, 0, 7), (XV, 0, 12), (GA, 0, 11)])
        s.cmuls([(XW, XW, E16, T0), (GA, XV, E4, T1), (XV, XV, E16, T2)])
        emit([(XW, 0, 14), (GA, 0, 13), (XV, 1, 0)])
        s.cmuls([(GB, XW, E4, T0), (XW, XW, E16, T1), (XV, XV, E16, T2)])
        emit([(GB, 0, 15), (XW, 1, 1), (XV, 1, 2)])
        s.stamp("k5")
        a("s_waitcnt lgkmcnt(2)")
        for ks in range(4): a(f"ds_read_b128 {V(80+4*ks,4)}, v24 offset:{64*ks}")
        for h in range(3):
            s.cmuls([(XW, XW, E16, T0), (XV, XV, E16, T1)])
            emit([(XW, 1, 3 + 2*h), (XV, 1, 4 + 2*h)])
            if h == 1:
                a("s_waitcnt lgkmcnt(4)")
                for ks in range(4): s.mfma(100, 80+4*ks, 64+4*ks, None if ks == 0 else 100)
        a("s_waitcnt lgkmcnt(0)")
        for ks in range(4): a(f"ds_read_b128 {V(80+4*ks,4)}, v24 offset:{BUF+64*ks}")
        s.stamp("k6")
        a("v_add_u32 v32, s59, v25")
        a(f"ds_write_b128 v32, v[96:99]\nds_write_b128 v32, v[100:103] offset:1024")
        a("s_waitcnt vmcnt(0)")
        s.nonce_get(115)
        a("s_waitcnt lgkmcnt(2)")
        for ks in range(4): s.mfma(104, 80+4*ks, 64+4*ks, None if ks == 0 else 104)
        a(f"ds_write_b128 v32, v[104:107] offset:2048")
        s.stamp(8); s.stamp("k7")
        s.gate_wait("u", 4, 64 * 43, 60, "s58", 116, wave=7)
        a("s_add_u32 s64, s57, 4096\ns_add_u32 s65, s57, 8192\ns_waitcnt lgkmcnt(0)\ns_barrier")
        s.stamp(3); s.stamp("k8"); s.stamp("e0")
        def uloads():
            for i in range(5):
                so, of = (("s57", 0), ("s57", 2048), ("s64", 0), ("s64", 2048), ("s65", 0))[i]
                a(f"buffer_load_dword v{108+i}, v29, s[32:35], {so} offen offset:{of} sc1")
        uloads()
        a(f"""
s_cmp_eq_u32 s68, 3
s_cbranch_scc1 L_zp
s_lshl_b32 s72, s68, 10
s_mul_i32 s73, s67, {4*WV}
s_add_u32 s72, s72, s73
v_add_u32 v32, s72, v25
ds_read_b128 v[96:99], v32
ds_read_b128 v[100:103], v32 offset:{WV}
ds_read_b128 v[104:107], v32 offset:{2*WV}
ds_read_b128 v[80:83], v32 offset:{3*WV}
s_waitcnt lgkmcnt(2)
v_pk_add_f32 v[96:97], v[96:97], v[100:101]
v_pk_add_f32 v[98:99], v[98:99], v[102:103]
s_waitcnt lgkmcnt(0)
v_pk_add_f32 v[104:105], v[104:105], v[80:81]
v_pk_add_f32 v[106:107], v[106:107], v[82:83]
v_pk_add_f32 v[96:97], v[96:97], v[104:105]
v_pk_add_f32 v[98:99], v[98:99], v[106:107]
v_cvt_pk_bf16_f32 v96, v96, v97
v_cvt_pk_bf16_f32 v98, v98, v99
ds_write_b16 v20, v96
ds_write_b16_d16_hi v21, v96
ds_write_b16 v22, v98
ds_write_b16_d16_hi v23, v98
s_branch L_zpd
L_zp:
v_mov_b32 v96, 0
v_mov_b32 v97, 0
v_mov_b32 v98, 0
v_mov_b32 v99, 0
s_mul_i32 s72, s67, {KCH}
s_add_u32 s72, s72, {KC + 2*(0x4501 - KB)}
v_mov_b32 v33, s72
ds_write_b16 v33, v96
v_lshrrev_b32 v44, 1, v3
v_mul_u32_u24 v44, 4160, v44
v_and_b32 v45, 1, v3
v_lshl_add_u32 v44, v45, 4, v44
v_add_u32 v44, {KCP + 4096}, v44
v_lshlrev_b32 v45, 4, v3
v_add_u32 v45, {UA - 512}, v45
v_cmp_lt_u32 vcc, 31, v3
v_cndmask_b32 v44, v44, v45, vcc
v_add_u32 v44, s69, v44
L_zpd:
s_waitcnt lgkmcnt(0)""")
        s.stamp("e1")
        a("s_barrier")
        s.stamp("e2")
        for e in range(11): a(f"ds_read_u16 v{32+e}, v{8+e}")
        a(f"""
s_cmp_lg_u32 s68, 3
s_cbranch_scc1 L_nzt
s_mov_b32 exec_lo, 0xff
s_mov_b32 exec_hi, 0x3fffffff
ds_write_b128 v44, v[96:99]
s_mov_b64 exec, -1
L_nzt:
""")
        for cp in range(4):
            if cp < 4: a(f"s_waitcnt lgkmcnt({[3,3,3,2][cp] if False else 0})") if cp == 0 else None
            for j in range(4):
                x = cp + 2*j
                a(f"v_lshl_or_b32 v{48+4*cp+j}, v{33+x}, 16, v{32+x}")
            a(f"ds_write_b128 v26, {V(48+4*cp,4)} offset:{4160*cp}")
        s.stamp("e3")
        a("s_branch L_chk_u\nL_poll_u:")
        uloads()
        a("L_chk_u:\ns_waitcnt vmcnt(0)")
        a(f"""v_cmp_ne_u32 vcc, s60, v108
v_cmp_ne_u32 s[72:73], s60, v109
v_cmp_ne_u32 s[74:75], s60, v110
v_cmp_ne_u32 s[76:77], s60, v111
v_cmp_ne_u32 s[78:79], s60, v112
s_or_b64 vcc, vcc, s[72:73]
s_or_b64 vcc, vcc, s[74:75]
s_or_b64 vcc, vcc, s[76:77]
s_and_b64 vcc, vcc, s[62:63]
s_and_b64 s[78:79], s[78:79], s[28:29]
s_or_b64 vcc, vcc, s[78:79]
s_cbranch_scc0 L_got_u""")
        s.spin("u", s.o.get("sl", 4))
        a("L_got_u:")
        s.stamp(4); s.stamp("e4")
        a("s_andn2_b64 exec, -1, s[62:63]")
        for i in range(5):
            if i == 4: a("s_mov_b64 exec, s[30:31]")
            ad, of = (30, 1024*i) if i < 4 else (113, 0)
            a(f"ds_write_b16 v{ad}, v{108+i} offset:{of}")
            a(f"ds_write_b16_d16_hi v{ad}, v{108+i} offset:{of + CH}")
        a(f"""
s_mov_b64 exec, -1
v_lshrrev_b32 v4, 1, v1
v_and_b32 v4, 3, v4
v_xor_b32 v4, v4, v2
v_lshlrev_b32 v4, 4, v4
v_lshl_add_u32 v4, v1, 6, v4
s_lshl_b32 s64, s68, 13
s_add_u32 s65, s64, {XP[1] - 8192}
s_cmp_eq_u32 s3, 0
s_cselect_b32 s65, 0, s65
s_add_u32 s64, s64, {YP}
s_cmp_eq_u32 s67, 0
s_cselect_b32 s64, s65, s64
v_add_u32 v4, s64, v4
v_lshrrev_b32 v5, 3, v3
v_xor_b32 v5, v5, v3
v_and_b32 v5, 3, v5
v_lshlrev_b32 v5, 4, v5
v_and_b32 v6, 0x3c, v3
v_lshl_add_u32 v5, v6, 4, v5
s_lshl_b32 s64, s3, 10
v_add_u32 v5, s64, v5
v_add_u32 v8, {XP[1]}, v5
v_lshrrev_b32 v6, 2, v3
v_mul_u32_u24 v6, 14336, v6
v_and_b32 v7, 3, v3
v_lshl_add_u32 v6, v7, 4, v6
s_mul_i32 s64, s3, {16*14336}
s_lshl_b32 s65, s66, 6
s_add_u32 s64, s64, s65
s_add_u32 s64, s64, {YT}
v_cmp_eq_u32 s[56:57], 3, v7
v_mov_b32 v11, s60
v_and_b32 v9, 7, v1
v_lshl_add_u32 v9, v2, 3, v9
v_lshlrev_b32 v9, 4, v9
v_add_u32 v9, 12, v9               ; bpermute source: lane 4*(8h+j)+3
v_mul_u32_u24 v10, 14336, v2
v_lshl_add_u32 v10, v1, 2, v10
s_mul_i32 s72, s3, {2*14336}
s_add_u32 s65, s65, s72
s_add_u32 s65, s65, {YT + 128*14336}
s_waitcnt lgkmcnt(0)
s_barrier""")
        s.stamp(5); s.stamp("e5")
        free = [64 + 4*i for i in range(16)]
        Areg, Breg = {}, {}
        pend = []
        def load(cl, d):
            off = 64 if cl == 0 else 0
            ra = free.pop(0); rb = free.pop(0)
            Areg[(cl, d)] = ra; Breg[(cl, d)] = rb
            a(f"ds_read_b128 {V(rb,4)}, v28 offset:{512*d + off}")
            a(f"ds_read_b64 {V(ra,2)}, v27 offset:{512*(7-d) + off}")
            a(f"ds_read_b64 {V(ra+2,2)}, v27 offset:{512*(7-d) + off + 8}")
            pend.extend([(cl, d)] * 3)
        def wait(cl, d):
            idx = max(i for i, k in enumerate(pend) if k == (cl, d)) if (cl, d) in pend else -1
            if idx >= 0:
                a(f"s_waitcnt lgkmcnt({len(pend) - 1 - idx})")
                del pend[:idx + 1]
        first = set()
        def mm(cl, p, q):
            T = p + q
            s.mfma(32 + 4*T, Areg[(cl, p)], Breg[(cl, q)], None if T not in first else 32 + 4*T)
            first.add(T)
        def group(cl, d):
            prs = [(d, j) for j in range(d) if d + j <= 7] + [(j, d) for j in range(d) if d + j <= 7]
            if 2*d <= 7: prs.append((d, d))
            for p, q in prs: mm(cl, p, q)
        for d in range(5): load(0, d)
        nextload = [(0, 5), (0, 6), (0, 7)] + [(1, d) for d in range(8)]
        for cl in range(2):
            for d in range(8):
                wait(cl, d)
                while nextload and len(free) >= 2 and len(pend) <= 12:
                    load(*nextload.pop(0))
                group(cl, d)
                if d >= 4:
                    for k in (7 - d, d):
                        free.append(Areg[(cl, k)]); free.append(Breg[(cl, k)])
                    while nextload and len(free) >= 2 and len(pend) <= 12:
                        load(*nextload.pop(0))
        assert not nextload
        s.stamp(6); s.stamp("e6")
        def wr():
            for T in range(8): a(f"ds_write_b128 v4, {V(32+4*T,4)} offset:{1024*T}")
        a("s_cmp_lg_u32 s67, 0\ns_cbranch_scc1 L_tY")
        wr()
        a("s_waitcnt lgkmcnt(0)\ns_barrier\ns_branch L_tC\nL_tY:\ns_nop 7\ns_barrier")
        wr()
        a("L_tC:")
        s.stamp("e7")
        a(f"ds_read_b128 v[64:67], v5")
        for q in range(3): a(f"ds_read_b128 {V(68+4*q,4)}, v8 offset:{8192*q}")
        a("s_waitcnt lgkmcnt(0)\ns_barrier")
        s.stamp("e8")
        for q in range(4): a(f"ds_read_b128 {V(80+4*q,4)}, v5 offset:{YP + 8192*q}")
        def add4(d, x):
            a(f"v_pk_add_f32 {V(d,2)}, {V(d,2)}, {V(x,2)}\nv_pk_add_f32 {V(d+2,2)}, {V(d+2,2)}, {V(x+2,2)}")
        add4(64, 68); add4(72, 76); add4(64, 72)
        a("s_waitcnt lgkmcnt(2)"); add4(80, 84)
        a("s_waitcnt lgkmcnt(0)"); add4(88, 92); add4(80, 88)
        for r in range(4): a(f"v_cvt_pk_bf16_f32 v{96+r}, v{64+r}, v{80+r}")
        a("""ds_bpermute_b32 v100, v9, v99
v_cndmask_b32 v99, v99, v11, s[56:57]
buffer_store_dwordx4 v[96:99], v6, s[32:35], s64 offen sc1
s_waitcnt lgkmcnt(0)
v_cndmask_b32 v100, v100, v11, s[62:63]
s_mov_b32 exec_hi, 0
buffer_store_dword v100, v10, s[32:35], s65 offen sc1
s_mov_b64 exec, -1""")
        s.stamp(7); s.stamp("e9")
    def table(s):
        T = tables.b_tables()
        buf = np.zeros(TB_SIZE // 4, np.uint32)
        for n, off in TB.items(): buf[off // 4: off // 4 + 256] = T[n].reshape(-1)
        out = [".p2align 8", ".type L_tbl,@object", "L_tbl:"]
        for i in range(0, len(buf), 8):
            out.append(".long " + ",".join(("0x%x" % x) if x else "0" for x in buf[i:i + 8]))
        out.append("L_tbl_end:")
        out.append(f".size L_tbl, {TB_SIZE}")
        return "\n".join(out)
    def build(s):
        a = s.a
        hdr = open("concat_heads__ssm_conv_s4d__spectral_gfnet__prompt.s.ref").read().split("; Override launch")[0]
        a.raw(hdr + f"; @launch grid=({NWG},1,1) block=(512,1,1) lds={LDS_BYTES}")
        a.raw(f'.amdgcn_target "amdgcn-amd-amdhsa--gfx950"\n.text\n.globl {KNAME}\n.p2align 8\n.type {KNAME},@function\n{KNAME}:')
        s.entry(); s.row_s1(); s.t_u(); s.column(); s.row_inv(); s.t_y(); s.a_path()
        a("L_exit:")
        s.stamp(9)
        s.stamp_flush()
        a("L_end:\ns_endpgm")
        a.raw(s.table())
        a.raw(f""".section .rodata,"a"
.p2align 6
.amdhsa_kernel {KNAME}
  .amdhsa_next_free_vgpr 128
  .amdhsa_next_free_sgpr 102
  .amdhsa_accum_offset 128
  .amdhsa_group_segment_fixed_size 0
  .amdhsa_kernarg_size 104
  .amdhsa_user_sgpr_count 2
  .amdhsa_user_sgpr_kernarg_segment_ptr 1
  .amdhsa_system_sgpr_workgroup_id_x 1
.end_amdhsa_kernel""")
        return a.text().replace("BPRIO", str(s.o.get("bp", 2)))
if __name__ == "__main__":
    out = sys.argv[1]; stamps = len(sys.argv) > 2 and sys.argv[2] == "1"
    opts = json.loads(sys.argv[3]) if len(sys.argv) > 3 else {}
    g = G(stamps, opts); t = g.build(); open(out, "w").write(t)
    print("lines", t.count("\n"), "bytes", len(t), "nops", g.a.nops)
```

```python
import sys, math, json
import numpy as np
from asmlib import Asm, f2h
import tables
KNAME = "concat_heads__ssm_conv_s4d__spectral_gfnet__prompt_kernel"
Z1, Z2, UT, YT, STAMP = 0x010000, 0x220000, 0x430000, 0x640000, 0x1000000
EPOCH = 0x630000
HB = {'z1': 0x900000, 'u': 0x980000, 'z2': 0xA00000, 'y': 0xA80000}; HP = {'z1': 128, 'u': 144, 'z2': 256, 'y': 224}
CB = {'z1': 0x900000, 'z2': 0x920000, 'y': 0x940000}; CT_ = {'z1': 16, 'z2': 32, 'y': 28}
PSTR = 9216
NR0, NT0, NA0, NWG = 16, 144, 272, 496
LDS_BYTES = 78336
SPIN_MAX = 200000
WV, BUF, RS = 9216, 4608, 288
KC, KCH = 3072, 3072
KB = 0x3F7F
ZS = 0x4502 - KB
KCP, CHK, UA, CHU = 9216, 16640, 69120, 4608
XP = [0, 43008, 51200, 59392]
TB = {n: 1024 * i for i, n in enumerate(["COS28", "NSIN28", "R2RE", "R2IM", "TWRC", "TWRS", "F8RE", "F8IM", "G8RE", "G8IM",
                                          "R2BRE", "R2BIM", "TWIC", "TWIS", "R1B0", "R1B1"])}
TB_SIZE = 16384
T1, EB, CT = 16896, 37376, 49664

def V(a, n=1): return f"v{a}" if n == 1 else f"v[{a}:{a+n-1}]"
def S(a, n=1): return f"s{a}" if n == 1 else f"s[{a}:{a+n-1}]"

class G:
    def __init__(s, stamps=False, opts=None):
        s.a = Asm(); s.stamps = stamps; s.o = opts or {}
    def stamp(s, i):
        if not s.stamps: return
        prof = s.o.get("prof")
        if prof:
            if isinstance(i, str):
                if i[:len(prof)] == prof: s.a(f"s_memtime {S(80+2*int(i[len(prof):]),2)}")
            return
        if isinstance(i, int): s.a(f"s_memrealtime {S(80+2*i,2)}")
    def stamp_flush(s):
        if not s.stamps: return
        a = s.a
        a("s_waitcnt lgkmcnt(0) vmcnt(0)")
        for i in range(10): a(f"v_mov_b32 v{4+i}, s{80+2*i}")
        a(f"""v_mov_b32 v14, 0
v_mov_b32 v15, s70
v_mov_b32 v2, 0
s_lshl_b32 s64, s2, 3
s_add_u32 s64, s64, s3
s_lshl_b32 s64, s64, 6
s_add_u32 s64, s64, {STAMP}
buffer_store_dwordx4 v[4:7], v2, s[32:35], s64 offen
buffer_store_dwordx4 v[8:11], v2, s[32:35], s64 offen offset:16
buffer_store_dwordx4 v[12:15], v2, s[32:35], s64 offen offset:32
s_waitcnt vmcnt(0)""")
    def srd(s, base, size):
        s.a(f"s_mov_b32 s{base+2}, {size}\ns_mov_b32 s{base+3}, 0x20000")
    def mfma(s, d, A, B, c=None):
        s.a(f"v_mfma_f32_16x16x32_bf16 {V(d,4)}, {V(A,4)}, {V(B,4)}, {'0' if c is None else V(c,4)}")
    def twiddle(s, dre, dim, co, si, P, conj, T=8, packed=False):
        a = s.a
        if packed:
            for h in (0, 2):
                a(f"v_pk_mul_f32 {V(T+h,2)}, {V(dim+h,2)}, {V(si+h,2)}")
                a(f"v_pk_mul_f32 {V(T+4+h,2)}, {V(dre+h,2)}, {V(si+h,2)}")
            for h in (0, 2):
                n = " neg_lo:[0,0,1] neg_hi:[0,0,1]"
                a(f"v_pk_fma_f32 {V(dre+h,2)}, {V(dre+h,2)}, {V(co+h,2)}, {V(T+h,2)}{n if conj else ''}")
                a(f"v_pk_fma_f32 {V(dim+h,2)}, {V(dim+h,2)}, {V(co+h,2)}, {V(T+4+h,2)}{'' if conj else n}")
        else:
            for r in range(4):
                a(f"v_mul_f32 v{T+r}, v{dim+r}, v{si+r}")
                a(f"v_mul_f32 v{T+4+r}, v{dre+r}, v{si+r}")
            for r in range(4):
                a(f"v_fma_f32 v{dre+r}, v{dre+r}, v{co+r}, {'-' if conj else ''}v{T+r}")
                a(f"v_fma_f32 v{dim+r}, v{dim+r}, v{co+r}, {'' if conj else '-'}v{T+4+r}")
        s.pack(dre, dim, P)
    def pack(s, dre, dim, P):
        for r in range(4): s.a(f"v_cvt_pk_bf16_f32 v{P[r]}, v{dre+r}, v{dim+r}")
    def sincos4(s, a0, step, co, si, T=8):
        a = s.a
        a(f"v_add_f32 v{T+1}, v{a0}, v{step}")
        a(f"v_fma_f32 v{T+2}, v{step}, 2.0, v{a0}")
        a(f"v_add_f32 v{T+3}, v{T+2}, v{step}")
        regs = [a0, T+1, T+2, T+3]
        for r in range(4):
            a(f"v_cos_f32 v{co+r}, v{regs[r]}")
            a(f"v_sin_f32 v{si+r}, v{regs[r]}")
    def tbl_srd(s):
        s.a("s_getpc_b64 s[36:37]")
        n = s.a.uid()
        s.a.raw(f"L_pc{n}:")
        s.a(f"s_add_u32 s36, s36, L_tbl-L_pc{n}\ns_addc_u32 s37, s37, 0")
        s.srd(36, TB_SIZE)
    def tload(s, items, vaddr, sbase=None):
        cur = None
        for r, off in items:
            b = off & ~4095
            if b != cur:
                if sbase is None: s.a(f"s_mov_b32 s61, {b}")
                else: s.a(f"s_add_u32 s61, {sbase}, {b}")
                cur = b
            s.a(f"buffer_load_dwordx4 {V(r,4)}, v{vaddr}, s[36:39], s61 offen offset:{off - b}")
        return len(items)
    def nonce_issue(s, vn):
        s.a(f"s_mov_b32 s61, {EPOCH}\nbuffer_load_dword v{vn}, off, s[32:35], s61 NTE")
    def nonce_get(s, vn):
        s.a(f"v_add_u32 v{vn}, 1, v{vn}\nv_readfirstlane_b32 s60, v{vn}")
    def spin(s, tag, sleep):
        s.a(f"""s_add_u32 s70, s70, 1
s_cmp_gt_u32 s70, {SPIN_MAX}
s_cbranch_scc1 L_exit
s_sleep {sleep}
s_branch L_poll_{tag}""")
    def gate_issue(s, tag, K, stride, off, sreg, vt, wave=0):
        s.a(f"""
v_mul_u32_u24 v{vt+1}, {stride}, v3
s_cmp_lg_u32 s3, {wave}
s_cbranch_scc1 L_gi_{tag}
v_mov_b32 v{vt}, 0
s_mov_b64 exec, {hex((1<<K)-1)}
buffer_atomic_or v{vt}, v{vt+1}, s[32:35], {sreg} offen offset:{off} sc0 sc1
s_mov_b64 exec, -1
L_gi_{tag}:""")
    def gate_wait(s, tag, K, stride, off, sreg, vt, wave=0, sentinel=False):
        a = s.a
        a(f"""
s_cmp_lg_u32 s3, {wave}
s_cbranch_scc1 L_gd_{tag}
s_mov_b64 exec, {hex((1<<K)-1)}
s_branch L_gc_{tag}
L_poll_g{tag}:
v_mov_b32 v{vt}, 0
buffer_atomic_or v{vt}, v{vt+1}, s[32:35], {sreg} offen offset:{off} sc0 sc1
L_gc_{tag}:
s_waitcnt vmcnt(0)
v_cmp_{'eq' if sentinel else 'ne'}_u32 vcc, {'-1' if sentinel else 's60'}, v{vt}
s_cbranch_vccz L_gok_{tag}""")
        s.spin("g" + tag, s.o.get("gsl", 1))
        a(f"""L_gok_{tag}:
s_mov_b64 exec, -1
L_gd_{tag}:""")
    def hint_send(s, e, preg, wave=0, tag=""):
        R = s.o.get("R", 16)
        s.a(f"""
s_cmp_lg_u32 s3, {wave}
s_cbranch_scc1 L_hs_{e}{tag}
s_and_b32 s61, {preg}, 7
s_lshl_b32 s61, s61, 10
s_add_u32 s61, s61, {CB[e]}
s_add_u32 s76, s32, s61
s_addc_u32 s77, s33, 0
s_mov_b32 s26, 1""")
        for r in range(R): s.a(f"s_atomic_add s26, s[76:77], {hex(8192*r)}")
        s.a(f"L_hs_{e}{tag}:")
    def hint_zero(s):
        s.a(f"""
s_cmp_lg_u32 s3, 7
s_cbranch_scc1 L_hz
s_lshl_b32 s61, s2, 13
s_add_u32 s61, s61, {CB['z1']}
s_add_u32 s76, s32, s61
s_addc_u32 s77, s33, 0
s_mov_b32 s26, 0""")
        for e in ("z1", "z2", "y"):
            for x in range(8): s.a(f"s_atomic_swap s26, s[76:77], {hex(CB[e] - CB['z1'] + 1024*x)}")
        s.a("L_hz:")
    def g_wait(s, e, creg):
        a = s.a
        R = s.o.get("R", 16); dl = s.o.get("dl", {}); tg = CT_[e]
        a(f"""s_cmp_lg_u32 s3, 0
s_cbranch_scc1 L_hd_{e}
s_lshr_b32 s61, {creg}, 3
s_and_b32 s61, s61, {R-1}
s_lshl_b32 s61, s61, 13
s_add_u32 s61, s61, {CB[e]}
s_add_u32 s24, s32, s61
s_addc_u32 s25, s33, 0
s_mov_b32 s27, 0""")
        for k in range(8): a(f"s_mov_b32 s{72+k}, 0")
        if e == "z1" and dl.get("z1t"):
            a(f"s_cmp_ge_u32 s2, {NT0}\ns_cbranch_scc1 L_dlt\ns_sleep {dl.get('z1r', 0)}\ns_branch L_dlr\nL_dlt:\ns_sleep {dl['z1t']}\nL_dlr:")
        elif dl.get(e): a(f"s_sleep {dl[e]}")
        a(f"L_poll_h{e}:")
        for k in range(8):
            a(f"""s_cmp_eq_u32 s{72+k}, {tg}
s_cbranch_scc1 L_hp{k}_{e}
s_mov_b32 s{72+k}, 0
s_atomic_add s{72+k}, s[24:25], {hex(1024*k)} glc
L_hp{k}_{e}:""")
        a("s_add_u32 s27, s27, 1\ns_add_u32 s70, s70, 1\ns_waitcnt lgkmcnt(0)")
        a(f"s_xor_b32 s26, s72, {tg}")
        for k in range(1, 8): a(f"s_xor_b32 s61, s{72+k}, {tg}\ns_or_b32 s26, s26, s61")
        a(f"""s_cbranch_scc0 L_hd_{e}
s_sleep {s.o.get("gsl", 1)}
s_cmp_lt_u32 s27, {s.o.get("NF", 32)}
s_cbranch_scc1 L_poll_h{e}
L_hd_{e}:""")
    def w_sprefetch(s, tag):
        a = s.a
        a(f"""s_cmp_eq_u32 s3, 0
s_cbranch_scc1 L_sp_{tag}
s_mov_b32 s27, s3
L_sp1_{tag}:
s_lshl_b32 s61, s67, 3
s_add_u32 s61, s61, s27
s_lshl_b32 s61, s61, 4
s_add_u32 s61, s61, s66
s_mul_i32 s61, s61, 450
s_and_b32 s61, s61, -4
s_min_u32 s61, s61, {921600 - 452}
s_add_u32 s24, s48, s61
s_addc_u32 s25, s49, 0""")
        st = s.o.get("pst", 128)
        offs = list(range(0, 449, st)) + ([448] if 448 % st else [])
        for o in offs: a(f"s_load_dword s23, s[24:25], {o}")
        a("s_add_u32 s24, s52, s61\ns_addc_u32 s25, s53, 0")
        for o in offs: a(f"s_load_dword s23, s[24:25], {o}")
        a(f"""s_cmp_lg_u32 s27, 4
s_mov_b32 s27, 0
s_cbranch_scc0 L_sp1_{tag}
L_sp_{tag}:""")
    def check(s, tag, items):
        a = s.a
        m = [S(r, 2) for r in (72, 74, 76, 78, 48, 50, 52, 40)[:len(items)]]
        for mi, it in zip(m, items): a(f"v_cmp_ne_u32 {mi}, s60, v{it[0]}")
        same = len({it[4] for it in items}) == 1
        def merge(pre):
            if pre:
                for mi, it in zip(m, items): a(f"s_and_b64 {mi}, {mi}, {it[4]}")
            a(f"s_or_b64 vcc, {m[0]}, {m[1]}")
            for mi in m[2:]: a(f"s_or_b64 vcc, vcc, {mi}")
        if same:
            merge(False); a(f"s_and_b64 vcc, vcc, {items[0][4]}\ns_cbranch_scc0 L_got_{tag}")
            for mi, it in zip(m, items): a(f"s_and_b64 {mi}, {mi}, {it[4]}")
        else:
            merge(True); a(f"s_cbranch_scc0 L_got_{tag}")
        if s.o.get("aonly") or s.o.get("loud"):
            if s.o.get("aonly"): a(f"s_branch L_got_{tag}")
            else: s.spin(tag, s.o.get("sl", 4))
            a(f"L_got_{tag}:"); return
        a(f"""L_q_{tag}:
s_add_u32 s70, s70, 1
s_cmp_gt_u32 s70, {SPIN_MAX}
s_cbranch_scc1 L_exit""")
        for k, (mi, it) in enumerate(zip(m, items)):
            a(f"""s_mov_b64 exec, {mi}
s_cbranch_execz L_q{k}_{tag}
v_mov_b32 v{it[0]}, 0
buffer_atomic_or v{it[0]}, v{it[1]}, s[32:35], {it[2]} offen offset:{it[3]} sc0 sc1
L_q{k}_{tag}:""")
        a("s_mov_b64 exec, -1\ns_waitcnt vmcnt(0)")
        for mi, it in zip(m, items):
            a(f"v_cmp_ne_u32 vcc, s60, v{it[0]}\ns_and_b64 {mi}, {mi}, vcc")
        merge(False)
        a(f"""s_cbranch_scc0 L_poll_{tag}
s_sleep {s.o.get("qsl", 2)}
s_branch L_q_{tag}
L_got_{tag}:""")
    def gk(s, n):
        K = s.o.get("K", 8)
        st = (n - 1) // (K - 1) if K > 1 else 1
        if st % 2 == 0: st -= 1
        return K, 64 * st
    def lanes(s):
        s.a("""v_lshrrev_b32 v4, 6, v0
v_and_b32 v3, 63, v0
v_readfirstlane_b32 s3, v4
v_and_b32 v1, 15, v0
v_bfe_u32 v2, v0, 4, 2
s_mov_b32 s70, 0""")
    def prefetch(s, tag):
        if s.o.get("nopf"): return
        s.a(f"""
s_cmp_lg_u32 s3, 7
s_cbranch_scc1 L_nopf_{tag}
s_lshr_b32 s64, s2, 3
s_and_b32 s64, s64, 1
s_lshl_b32 s64, s64, 13
s_sub_u32 s74, s36, L_tbl-{KNAME}
s_subb_u32 s75, s37, 0
v_lshl_add_u32 v124, v3, 7, s64
v_min_u32 v124, L_tbl-{KNAME}-4, v124
global_load_dword v124, v124, s[74:75]
L_nopf_{tag}:""")

    def entry(s):
        a = s.a
        s.stamp(0); s.stamp("p0")
        a(f"""
s_load_dwordx16 s[4:19], s[0:1], 0
s_load_dwordx8 s[20:27], s[0:1], 64
s_load_dwordx2 s[32:33], s[0:1], 96
s_getpc_b64 s[36:37]
L_pc:
v_cmp_gt_u32 vcc, 8, v0
s_bfe_u32 s66, s2, 0x40003
s_lshl_b32 s66, s66, 10
s_and_saveexec_b64 s[64:65], vcc
s_cbranch_execz L_nopf
v_lshl_add_u32 v124, v0, 7, s66
{'s_nop 0' if s.o.get('nopf') else 'global_load_dword v124, v124, s[36:37] NTP'}    ; pull 1 KiB of the code into this XCD's L2 (speed only)
L_nopf:
s_mov_b64 exec, -1
s_cmp_ge_u32 s2, {NWG}
s_cbranch_scc1 L_end
REMAP
s_cmp_lt_u32 s2, {NA0}
s_cbranch_scc1 L_B
s_sub_u32 s66, s2, {NA0}           ; pair
s_lshl_b32 s64, s66, 10
v_lshl_add_u32 v24, v0, 1, s64
s_lshl_b32 s64, s66, 1
v_lshrrev_b32 v25, 8, v0
v_add_lshl_u32 v25, v25, s64, 1
s_waitcnt lgkmcnt(0)
global_load_short_d16_hi v114, v25, s[14:15] NTF
global_load_short_d16_hi v4, v24, s[6:7] NTF
global_load_short_d16_hi v5, v24, s[8:9] NTF
global_load_short_d16_hi v6, v24, s[10:11] NTF
global_load_short_d16_hi v7, v24, s[12:13] NTF
s_branch L_A
L_B:
AONLY
v_lshrrev_b32 v4, 6, v0
v_and_b32 v3, 63, v0
v_readfirstlane_b32 s3, v4
v_lshlrev_b32 v7, 4, v3            ; lane*16
s_sub_u32 s58, s2, {NR0}
s_add_u32 s36, s36, L_tbl-L_pc
s_addc_u32 s37, s37, 0
s_mov_b32 s38, {TB_SIZE}
s_mov_b32 s39, 0x20000
s_mov_b32 s42, 1835008
s_mov_b32 s43, 0x20000
s_cmp_lt_u32 s58, 128
s_cbranch_scc0 L_pT
s_mov_b32 s71, s58
s_lshl_b32 s64, s3, 8
s_add_u32 s64, s64, s58
s_mov_b32 s66, {128*896}
s_lshl_b32 s65, s3, 11
s_movk_i32 s67, 1024
s_lshl_b32 s68, s3, 10
s_waitcnt lgkmcnt(0)
s_mov_b64 s[40:41], s[18:19]
s_branch L_pC
L_pT:
s_sub_u32 s71, s2, {NT0}
s_lshl_b32 s28, s71, 4
s_lshl_b32 s64, s2, 7
s_add_u32 s64, s64, 15
s_add_u32 s65, s2, 128
s_cmp_lt_u32 s2, {NR0}
s_cselect_b32 s28, s64, s28
s_cselect_b32 s71, s65, s71
s_cselect_b32 s59, 16, 1
s_cselect_b32 s66, 0, {8*896}
s_mul_i32 s64, s59, s3
s_add_u32 s64, s64, s28
s_mul_i32 s65, s3, 1040
s_movk_i32 s67, {8*1040}
s_and_b32 s68, s3, 3
s_lshl_b32 s68, s68, 10
s_add_u32 s68, s68, {TB["F8RE"]}
s_waitcnt lgkmcnt(0)
s_mov_b64 s[40:41], s[4:5]
L_pC:
s_mul_i32 s64, s64, 896
s_mov_b32 m0, s65
s_add_u32 s66, s66, s64
buffer_load_dwordx4 v7, s[40:43], s64 offen NTF lds
s_add_u32 m0, s65, s67
s_mov_b32 s61, {EPOCH}
buffer_load_dwordx4 v7, s[40:43], s66 offen NTF lds
s_add_u32 m0, s68, {CT}
s_mov_b32 s34, 0x10000000
s_mov_b32 s35, 0x20000
{'s_nop 0' if s.o.get('nocd') else 'buffer_load_dwordx4 v7, s[36:39], s68 offen NTC lds'}
buffer_load_dword v31, off, s[32:35], s61 NTE
v_and_b32 v1, 15, v0
v_bfe_u32 v2, v0, 4, 2
s_mov_b32 s70, 0
""")
        s.stamp(1); s.stamp("p1")
        a("s_cmp_lt_u32 s58, 128\ns_cbranch_scc0 L_T")
    def cread(s, items):
        for r, n in items: s.a(f"ds_read_b128 {V(r,4)}, v7 offset:{CT + TB[n]}")
    def matrix(s, a0, step, re, im, conj):
        s.sincos4(a0, step, 96, 100)
        for j in range(4):
            s.a(f"v_cvt_pk_bf16_f32 v{re+j}, v{96+j}, {'-' if conj else ''}v{100+j}")
            s.a(f"v_cvt_pk_bf16_f32 v{im+j}, {'' if conj else '-'}v{100+j}, v{96+j}")
    def b0(s):
        a = s.a
        s.srd(44, 3670016); s.srd(48, 921600); s.srd(52, 921600)
        a(f"""
v_cmp_eq_u32 s[62:63], 15, v1
s_mov_b64 s[44:45], s[24:25]
s_mov_b64 s[48:49], s[20:21]
s_mov_b64 s[52:53], s[22:23]
s_and_b32 s66, s58, 15         ; f1
s_lshr_b32 s67, s58, 4         ; k2
v_lshlrev_b32 v10, 2, v1
v_lshl_add_u32 v24, v2, 19, v10    ; g*524288 + 4c
v_cvt_f32_u32 v4, v1
v_lshlrev_b32 v5, 2, v2
v_cvt_f32_u32 v5, v5
v_mul_f32 v4, {f2h(1/16)}, v4          ; c/16
""")
    def bw(s):
        s.a(f"""
s_mul_i32 s64, s67, 56
s_sub_u32 s65, 896, s64
s_cmp_lt_u32 s67, 8
s_cselect_b32 s64, s64, s65
s_cselect_b32 s65, 2, -2
v_and_b32 v8, 1, v2
v_lshrrev_b32 v9, 1, v2
v_mul_i32_i24 v6, s65, v1
v_mul_u32_u24 v10, {1024*450}, v8
v_mul_u32_u24 v11, {16*450}, v9
v_add_u32 v6, s64, v6
v_add3_u32 v6, v6, v10, v11
s_lshl_b32 s64, s3, 5
s_add_u32 s64, s64, s66
s_mul_i32 s68, s64, 450        ; W soffset r=0
""")
    def bc(s):
        a = s.a
        a(f"""
v_and_b32 v8, 1, v2
v_lshrrev_b32 v9, 1, v2
v_lshlrev_b32 v10, 2, v1
v_lshl_add_u32 v27, v2, 11, v10    ; Z1 poll: g*2048 + 4c
v_mul_u32_u24 v12, 48, v1
v_mul_u32_u24 v28, 3072, v2
s_lshl_b32 s64, s3, 2
s_add_u32 s64, s64, {EB}
v_add3_u32 v28, v28, v12, s64          ; E b32: 4g*768 + 48c + 4w
v_mul_u32_u24 v9, 768, v9
v_lshl_add_u32 v9, v8, 4, v9
s_mul_i32 s64, s3, 1536
s_add_u32 s64, s64, {EB}
v_add3_u32 v29, v9, v12, s64           ; E b128
v_cvt_f32_u32 v8, s3
v_mul_f32 v8, {f2h(1/8)}, v8           ; b/8
v_add_f32 v13, v5, v8
v_mul_f32 v13, v13, v4
v_fmamk_f32 v12, v8, {f2h(1/16)}, v4
""")
        s.matrix(13, 4, 64, 68, False)
        a("v_mul_f32 v13, v12, v5")
        s.matrix(13, 12, 72, 76, True)
    def w_prefetch(s, d):
        s.a(f"""
s_lshl_b32 s64, s67, 3
s_add_u32 s64, s64, s3
s_lshl_b32 s64, s64, 4
s_add_u32 s64, s64, s66
s_mul_i32 s64, s64, 450
v_lshlrev_b32 v8, 7, v3
v_min_u32 v8, 448, v8
buffer_load_ushort v{d}, v8, s[48:51], s64 offen NTW
buffer_load_ushort v{d+1}, v8, s[52:55], s64 offen NTW
""")
        return 2
    def w_early(s, tag):
        a = s.a
        a(f"s_cmp_eq_u32 s3, 0\ns_cbranch_scc1 L_we_{tag}")
        s.w_loads()
        a(f"s_cmp_lg_u32 s3, 1\ns_cbranch_scc1 L_we_{tag}\ns_mul_i32 s61, s66, 450")
        for r in range(4):
            a(f"buffer_load_ushort v{88+r}, v6, s[48:51], s61 offen NTG")
            a(f"buffer_load_ushort v{92+r}, v6, s[52:55], s61 offen NTG")
            if r < 3: a(f"s_add_u32 s61, s61, {256*450}")
        a(f"L_we_{tag}:")
    def w_loads(s):
        a = s.a
        if s.o.get("now"):
            for r in range(8): a(f"buffer_load_dword v{16+r}, off, s[36:39], 0")
            return
        for r in range(4):
            a(f"buffer_load_short_d16_hi v{16+r}, v6, s[48:51], s68 offen NTG")
            a(f"buffer_load_short_d16_hi v{20+r}, v6, s[52:55], s68 offen NTG")
            if r < 3: a(f"s_add_u32 s68, s68, {256*450}")
    def row_s1(s):
        a = s.a
        s.b0()
        wp = s.o.get("wp", 5)
        a(f"""
v_cvt_f32_u32 v8, s71
v_mul_f32 v8, {f2h(1/128)}, v8             ; sigma/128
v_add_f32 v13, v5, v8
v_mul_f32 v13, v13, v4
""")
        s.matrix(13, 4, 56, 60, False)
        a(f"""
v_mul_u32_u24 v25, 5120, v2
v_mul_u32_u24 v8, 80, v1
s_lshl_b32 s64, s3, 3
s_add_u32 s64, s64, {T1}
v_add3_u32 v25, v25, v8, s64          ; T write: g*5120 + 80c + 8w
s_mul_i32 s64, s3, 2560
s_add_u32 s64, s64, {T1}
v_lshl_add_u32 v26, v2, 4, v8
v_add_u32 v26, s64, v26               ; T read: 2w*1280 + 80c + 16g
s_lshl_b32 s65, s3, 11
v_lshl_add_u32 v120, v3, 3, s65
""")
        s.bw()
        if s.o.get("bce"): s.bc()
        if s.o.get("wd"): a(f"s_sleep {s.o['wd']}")
        if wp == 1: s.w_prefetch(94)
        s.stamp("p2")
        a(f"s_setprio BPRIO\ns_waitcnt vmcnt({2 if wp < 2 else 0})")
        s.stamp(2); s.stamp("s0"); s.stamp("p3")
        if s.o.get("stop"): a("s_branch L_exit")
        a("s_barrier")
        s.stamp("s1")
        pk = s.o.get("pk", True)
        a(f"""
ds_read_b64_tr_b16 v[96:97], v120
ds_read_b64_tr_b16 v[98:99], v120 offset:512
""")
        s.cread([(32, "COS28"), (36, "NSIN28")])
        a(f"""
ds_read_b64_tr_b16 v[100:101], v120 offset:1024
ds_read_b64_tr_b16 v[102:103], v120 offset:1536
""")
        s.cread([(48, "TWRC"), (52, "TWRS"), (40, "R2RE"), (44, "R2IM")])
        if s.o.get("wg", 1) == 0: s.w_loads()
        if wp == 3: s.w_prefetch(94)
        s.stamp("s2")
        s.nonce_get(31)
        a("s_waitcnt lgkmcnt(6)")
        s.mfma(104, 96, 32); s.mfma(108, 96, 36)
        a("s_waitcnt lgkmcnt(4)")
        s.mfma(112, 100, 32); s.mfma(116, 100, 36)
        a("s_waitcnt lgkmcnt(0)")
        s.stamp("s3")
        s.twiddle(104, 108, 48, 52, [96, 97, 98, 99], False, packed=pk)
        s.mfma(104, 40, 96); s.mfma(108, 44, 96)
        s.twiddle(112, 116, 48, 52, [100, 101, 102, 103], False, packed=pk)
        s.mfma(112, 40, 100); s.mfma(116, 44, 100)
        s.stamp("s4")
        s.pack(104, 108, [120, 122, 124, 126]); s.pack(112, 116, [121, 123, 125, 127])
        for r in range(4): a(f"ds_write_b64 v25, {V(120+2*r,2)} offset:{1280*r}")
        a(f"""
s_lshl_b32 s64, s71, 6
s_lshl_b32 s65, s3, 14
s_add_u32 s64, s64, s65            ; sigma*64 + 2w*8192
s_waitcnt lgkmcnt(0)""")
        s.stamp("s5")
        a("s_barrier")
        s.stamp("s6")
        a(f"""
ds_read_b128 v[96:99], v26
ds_read_b128 v[100:103], v26 offset:1280
s_waitcnt lgkmcnt(1)
""")
        s.mfma(104, 56, 96); s.mfma(108, 60, 96)
        a("s_waitcnt lgkmcnt(0)")
        s.mfma(112, 56, 100); s.mfma(116, 60, 100)
        if s.o.get("hp", 0) == 0: s.hint_send("z1", "s71", s.o.get("hw", 0))
        s.stamp("s7")
        for t, (dr, di, P) in enumerate(((104, 108, 120), (112, 116, 124))):
            s.pack(dr, di, [P, P+1, P+2, P+3])
            for r in range(4): a(f"v_cndmask_b32 v{P+r}, v{P+r}, v31, s[62:63]")
            for r in range(4):
                a(f"s_add_u32 s65, s64, {Z1 + t*8192 + r*131072}")
                a(f"buffer_store_dword v{P+r}, v24, s[32:35], s65 offen sc1")
        if s.o.get("hp", 0) == 1: s.hint_send("z1", "s71", s.o.get("hw", 0))
        s.stamp(3); s.stamp("s8")
        s.z1_gate_issue("r")
        a(f"""s_barrier
s_lshl_b32 s64, s3, 10
s_add_u32 s64, s64, 8192
s_add_u32 m0, s64, {CT}
buffer_load_dwordx4 v7, s[36:39], s64 offen lds""")
        if s.o.get("wg", 1) == 1: s.w_loads()
        if s.o.get("wg", 1) == 3: s.w_early("r")
        if wp == 4: s.w_prefetch(94)
        if wp == 6: s.w_sprefetch("r")
        if not s.o.get("bce"):
            a("s_setprio 0"); s.bc(); a("s_setprio BPRIO")
        a("s_branch L_col")
    def z1_gate_issue(s, tag):
        s.a(f"""
s_lshl_b32 s64, s66, 4
s_add_u32 s64, s64, s67
s_lshl_b32 s64, s64, 13
s_lshl_b32 s65, s3, 6
s_add_u32 s69, s64, s65
s_add_u32 s69, s69, {Z1}           ; Z1 + unit*8192 + w*64
""")
    def t_u(s):
        a = s.a
        a(f"L_T:\ns_cmp_ge_u32 s2, {NR0}\ns_cbranch_scc1 L_hz")
        s.hint_zero()
        a(f"""
v_and_b32 v10, 3, v3
v_lshrrev_b32 v11, 2, v3
v_cmp_eq_u32 s[56:57], 3, v10
v_mul_u32_u24 v120, 4160, v10
v_lshl_add_u32 v120, v11, 2, v120
s_lshl_b32 s64, s3, 6
v_add_u32 v120, s64, v120          ; LDS: 4160e + 4q + 64w
v_mul_u32_u24 v121, {PSTR}, v11
v_lshl_add_u32 v121, v10, 4, v121  ; q*PSTR + 16e
""")
        s.b0(); s.bw()
        if s.o.get("tce", 1): s.bc()
        wp = s.o.get("wp", 5)
        if s.o.get("wdt"): a(f"s_sleep {s.o['wdt']}")
        if wp < 2: s.w_prefetch(62)
        a(f"""
s_mul_i32 s64, s3, {16*PSTR}
s_lshl_b32 s65, s71, 6
s_add_u32 s64, s64, s65
s_add_u32 s64, s64, {UT}
s_add_u32 s65, s64, {128*PSTR}
""")
        s.stamp("p2")
        a(f"s_setprio BPRIO\ns_waitcnt vmcnt({2 if wp < 2 else 0})")
        s.stamp(2); s.stamp("p3")
        if s.o.get("stop"): a("s_branch L_exit")
        a("s_barrier")
        for k in range(2):
            for i in range(4): a(f"ds_read_b32 v{96+4*k+i}, v120 offset:{1040*i + 512*k}")
        s.nonce_get(31)
        a(f"""
s_waitcnt lgkmcnt(4)
v_cndmask_b32 v99, v99, v31, s[56:57]
buffer_store_dwordx4 v[96:99], v121, s[32:35], s64 offen sc1
s_cmp_ge_u32 s3, 6
s_cbranch_scc1 L_T_p2
s_waitcnt lgkmcnt(0)
v_cndmask_b32 v103, v103, v31, s[56:57]
buffer_store_dwordx4 v[100:103], v121, s[32:35], s65 offen sc1
L_T_p2:
""")
        s.stamp(3)
        a(f"""
s_cmp_lt_u32 s2, {NR0}
s_cbranch_scc1 L_Ty
""")
        s.z1_gate_issue("t")
        if wp in (3, 4): s.w_prefetch(62)
        if wp == 6: s.w_sprefetch("t")
        if wp == 5:
            a(f"""
s_barrier
s_sub_u32 s65, s3, 1
s_cmp_ge_u32 s65, 4
s_cbranch_scc1 L_nwp
s_sub_u32 s64, s67, 8
s_lshl_b32 s64, s64, 2
s_add_u32 s64, s64, s65
s_lshl_b32 s64, s64, 6
s_add_u32 s64, s64, s66
s_mul_i32 s64, s64, 450
v_lshlrev_b32 v8, 7, v1
v_min_u32 v8, 448, v8
v_mul_u32_u24 v9, {16*450}, v2
v_add_u32 v8, v8, v9
buffer_load_ushort v60, v8, s[48:51], s64 offen NTW
buffer_load_ushort v61, v8, s[52:55], s64 offen NTW
L_nwp:
""")
        if s.o.get("wg", 1) < 2:
            a("s_barrier")
            s.w_loads()
        if s.o.get("wg", 1) == 3:
            a("s_barrier")
            s.w_early("t")
        if not s.o.get("tce", 1):
            a("s_setprio 0"); s.bc(); a("s_setprio BPRIO")
    def column(s):
        a = s.a
        a("L_col:")
        s.stamp(4)
        a(f"s_cmp_eq_u32 s3, 0\ns_cbranch_scc1 L_nw0\ns_cmp_ge_u32 s2, {NT0}\ns_cbranch_scc1 L_nw0\ns_waitcnt vmcnt({8 if s.o.get('wg', 1) in (1, 3) else 0})\nL_nw0:")
        s.g_wait("z1", "s58")
        if s.o.get("zs") == 1: s.stamp(7)
        wg = s.o.get("wg", 1)
        a("s_barrier")
        if s.o.get("zs") == 1: s.stamp(1)
        def zl():
            for j in range(4): a(f"buffer_load_dword v{96+j}, v27, s[32:35], s69 offen offset:{512*j} sc1")
        zl()
        if wg == 2: s.w_loads()
        if wg == 3:
            a("s_cmp_lg_u32 s3, 0\ns_cbranch_scc1 L_wl0"); s.w_loads(); a("s_waitcnt vmcnt(8)\ns_branch L_wl1\nL_wl0:\ns_waitcnt vmcnt(0)\nL_wl1:")
        s.cread([(32, "F8RE"), (36, "F8IM"), (40, "G8RE"), (44, "G8IM")])
        if wg != 3: a(f"s_waitcnt vmcnt({8 if wg == 2 else 0})")
        if s.o.get("zs") == 1: s.stamp(2)
        a("s_branch L_chk_z1\nL_poll_z1:")
        zl()
        a("s_waitcnt vmcnt(0)\nL_chk_z1:")
        s.check("z1", [(96 + j, 27, "s69", 512 * j, "s[62:63]") for j in range(4)])
        s.stamp(5)
        s.mfma(104, 64, 96); s.mfma(108, 68, 96)
        s.pack(104, 108, [120, 121, 122, 123])
        for r in range(4): a(f"ds_write_b32 v28, v{120+r} offset:{768*r}")
        a("s_waitcnt lgkmcnt(0)\ns_barrier\nds_read_b128 v[96:99], v29\ns_waitcnt lgkmcnt(0)")
        s.mfma(104, 32, 96); s.mfma(108, 36, 96)
        a("s_waitcnt vmcnt(0)")
        s.twiddle(104, 108, 16, 20, [96, 97, 98, 99], True)
        s.mfma(104, 40, 96); s.mfma(108, 44, 96)
        s.pack(104, 108, [120, 121, 122, 123])
        a("ds_write_b128 v29, v[120:123]\ns_waitcnt lgkmcnt(0)\ns_barrier")
        for j in range(4): a(f"ds_read_b32 v{96+j}, v28 offset:{768*j}")

        a(f"""
s_lshl_b32 s64, s3, 14
s_lshl_b32 s65, s67, 10
s_add_u32 s64, s64, s65
s_lshl_b32 s65, s66, 6
s_add_u32 s64, s64, s65
s_waitcnt lgkmcnt(0)
""")
        s.mfma(104, 72, 96); s.mfma(108, 76, 96)
        if s.o.get("hp", 0) == 0: s.hint_send("z2", "s58", s.o.get("hw", 0))
        s.pack(104, 108, [120, 121, 122, 123])
        for r in range(4): a(f"v_cndmask_b32 v{120+r}, v{120+r}, v31, s[62:63]")
        for r in range(4):
            a(f"s_add_u32 s65, s64, {Z2 + r*131072}")
            a(f"buffer_store_dword v{120+r}, v24, s[32:35], s65 offen sc1")
        if s.o.get("hp", 0) == 1: s.hint_send("z2", "s58", s.o.get("hw", 0))
        s.stamp(6)
        a(f"s_cmp_ge_u32 s2, {NT0}\ns_cbranch_scc1 L_Ty")
    def row_inv(s):
        a = s.a
        a(f"""
s_lshl_b32 s64, s71, 14
s_lshl_b32 s65, s3, 11
s_add_u32 s69, s64, s65
s_add_u32 s69, s69, {Z2}
""")
        s.cread([(32, "R2BRE"), (36, "R2BIM"), (40, "TWIC"), (44, "TWIS"), (48, "R1B0"), (52, "R1B1")])
        a(f"""
v_cvt_f32_u32 v8, s71
v_fmamk_f32 v12, v8, {f2h(1/2048)}, v4
v_mul_f32 v13, v12, v5
""")
        s.matrix(13, 12, 80, 84, True)
        a(f"""
v_and_b32 v10, 1, v2
v_lshl_add_u32 v11, v10, 4, v1        ; n1 = c + 16(g&1)
v_lshlrev_b32 v30, 5, v11
v_lshrrev_b32 v12, 1, v2
v_lshl_add_u32 v30, v12, 4, v30
v_cmp_lt_u32 vcc, 27, v11
v_mov_b32 v12, 0x10000000
v_cndmask_b32 v30, v30, v12, vcc
v_lshlrev_b32 v5, 8, v2
v_lshl_add_u32 v5, v1, 2, v5
v_cmp_eq_u32 s[28:29], 3, v2
""")
        s.g_wait("z2", "s71")
        a("s_waitcnt lgkmcnt(0)\ns_barrier\nL_poll_z2:")
        for t in range(2):
            for j in range(4): a(f"buffer_load_dword v{96+4*t+j}, v5, s[32:35], s69 offen offset:{1024*t+64*j} sc1")
        a("s_waitcnt vmcnt(0)")
        s.check("z2", [(96 + 4 * t + j, 5, "s69", 1024 * t + 64 * j, "s[62:63]") for t in range(2) for j in range(4)])
        if s.o.get("zs") != 1: s.stamp(7)
        pk = s.o.get("pk2", True)
        s.mfma(104, 80, 96); s.mfma(108, 84, 96); s.mfma(112, 80, 100); s.mfma(116, 84, 100)
        s.pack(104, 108, [120, 122, 124, 126]); s.pack(112, 116, [121, 123, 125, 127])
        for r in range(4): a(f"ds_write_b64 v25, {V(120+2*r,2)} offset:{1280*r}")
        a(f"""
s_lshl_b32 s64, s3, 8
s_add_u32 s64, s64, s71
s_mul_i32 s64, s64, 1792
s_add_u32 s64, s64, 896
s_add_u32 s65, s64, {128*1792}
s_waitcnt lgkmcnt(0)
s_barrier
ds_read_b128 v[96:99], v26
ds_read_b128 v[100:103], v26 offset:1280
s_waitcnt lgkmcnt(1)
""")
        s.mfma(104, 96, 32); s.mfma(108, 96, 36)
        a("s_waitcnt lgkmcnt(0)")
        s.mfma(112, 100, 32); s.mfma(116, 100, 36)
        s.twiddle(104, 108, 40, 44, [96, 97, 98, 99], True, packed=pk)
        a("v_cndmask_b32_e64 v99, v99, 0, s[28:29]")
        s.mfma(104, 96, 48); s.mfma(108, 96, 52)
        s.twiddle(112, 116, 40, 44, [100, 101, 102, 103], True, packed=pk)
        a("v_cndmask_b32_e64 v103, v103, 0, s[28:29]")
        s.mfma(112, 100, 48); s.mfma(116, 100, 52)
        for t, (d0, d1, P, so) in enumerate(((104, 108, 120, "s64"), (112, 116, 124, "s65"))):
            a(f"""v_cvt_pk_bf16_f32 v{P}, v{d0}, v{d0+1}
v_cvt_pk_bf16_f32 v{P+1}, v{d0+2}, v{d0+3}
v_cvt_pk_bf16_f32 v{P+2}, v{d1}, v{d1+1}
v_cvt_pk_bf16_f32 v{P+3}, v{d1+2}, v{d1+3}
v_permlane16_swap_b32 v{P}, v{P+2}
v_permlane16_swap_b32 v{P+1}, v{P+3}
buffer_store_dwordx4 {V(P,4)}, v30, s[44:47], {so} offen OUTF""")
        s.stamp(8)
        a("s_branch L_exit")
    def t_y(s):
        a = s.a
        a(f"""
L_Ty:
s_setprio 0
s_mul_i32 s29, s71, 14336
s_add_u32 s29, s29, {YT}
s_mul_i32 s72, s59, 1792
s_movk_i32 s73, 840
s_cmp_eq_u32 s59, 1
s_cselect_b32 s59, s73, 448
s_mul_i32 s28, s28, 1792
v_mul_u32_u24 v8, {(1<<20)//56+1}, v0
v_lshrrev_b32 v8, 20, v8
v_mul_u32_u24 v9, 56, v8
v_sub_u32 v9, v0, v9               ; grp0
v_add_u32 v10, 512, v0
v_mul_u32_u24 v11, {(1<<20)//56+1}, v10
v_lshrrev_b32 v11, 20, v11         ; row1
v_mul_u32_u24 v12, 56, v11
v_sub_u32 v12, v10, v12            ; grp1
v_lshlrev_b32 v9, 4, v9
v_lshlrev_b32 v12, 4, v12
global_load_dwordx4 v[112:115], v9, s[16:17]
global_load_dwordx4 v[116:119], v12, s[16:17]
v_min_u32 v11, 15, v11
v_mul_u32_u24 v25, 912, v8
v_add_u32 v25, v25, v9
v_mul_u32_u24 v26, 912, v11
v_add_u32 v26, v26, v12
v_lshl_add_u32 v104, v8, 7, v25
v_lshl_add_u32 v108, v11, 7, v26
ds_read_b128 v[104:107], v104
ds_read_b128 v[108:111], v108
v_mul_u32_u24 v48, s72, v8
v_add_u32 v48, v48, v9
v_mul_u32_u24 v49, s72, v11
v_add_u32 v49, v49, v12
v_mov_b32 v13, 0x10000000
v_cmp_gt_u32 vcc, s59, v0
v_cndmask_b32 v48, v13, v48, vcc
v_cmp_gt_u32 vcc, s59, v10
v_cndmask_b32 v49, v13, v49, vcc
v_and_b32 v10, 3, v0
v_mul_u32_u24 v10, 3648, v10
v_and_b32 v11, 0xfffffffc, v0
v_add_u32 v50, v10, v11
v_lshlrev_b32 v30, 4, v0           ; tid*16
v_cmp_gt_u32 vcc, 384, v0
s_mov_b64 s[30:31], vcc
s_add_u32 s64, s29, 8192
v_mov_b32 v103, v31
s_waitcnt vmcnt(0) lgkmcnt(0)
""")
        for it in range(2):
            for j in range(4):
                u, d, o = 104 + 4*it + j, 112 + 4*it + j, 80 + 8*it + 2*j
                a(f"""v_lshlrev_b32 v8, 16, v{u}
v_lshlrev_b32 v9, 16, v{d}
v_and_b32 v10, 0xffff0000, v{u}
v_and_b32 v11, 0xffff0000, v{d}
v_mul_f32 v8, v8, v9
v_mul_f32 v10, v10, v11
v_cvt_pk_bf16_f32 v8, v8, v10
v_lshlrev_b32 v{o}, 16, v8
v_and_b32 v{o+1}, 0xffff0000, v8""")
        a("s_setprio BPRIO")
        s.g_wait("y", "s71")
        a(f"""
s_barrier
L_poll_y:
buffer_load_dwordx4 v[96:99], v30, s[32:35], s29 offen sc1
s_mov_b64 exec, s[30:31]
s_cbranch_execz L_y1
buffer_load_dwordx4 v[100:103], v30, s[32:35], s64 offen sc1
L_y1:
s_mov_b64 exec, -1
s_waitcnt vmcnt(0)
""")
        s.check("y", [(99, 30, "s29", 12, "s[56:57]"), (103, 30, "s64", 12, "s[56:57]")])
        if s.o.get("zs") != 1: s.stamp(7)
        for r in range(4): a(f"ds_write_b32 v50, v{96+r} offset:{912*r}")
        a("s_mov_b64 exec, s[30:31]")
        for r in range(4): a(f"ds_write_b32 v50, v{100+r} offset:{912*r+512}")
        a(f"""
s_mov_b64 exec, -1
s_waitcnt lgkmcnt(0)
s_barrier
ds_read_b128 v[96:99], v25
ds_read_b128 v[100:103], v26
""")
        for it in range(2):
            a(f"s_waitcnt lgkmcnt({1-it})")
            for j in range(4):
                y = 96 + 4*it + j
                a(f"v_lshlrev_b32 v{8+2*j}, 16, v{y}\nv_and_b32 v{9+2*j}, 0xffff0000, v{y}")
            for j in range(4): a(f"v_pk_add_f32 {V(8+2*j,2)}, {V(8+2*j,2)}, {V(80+8*it+2*j,2)}")
            for j in range(4): a(f"v_cvt_pk_bf16_f32 v{104+4*it+j}, v{8+2*j}, v{9+2*j}")
            a(f"buffer_store_dwordx4 {V(104+4*it,4)}, v{48+it}, s[44:47], s28 offen OUTF")
        a(f"""
s_add_u32 s64, s71, s3
s_cmp_lg_u32 s64, 0
s_cbranch_scc1 L_noep
s_mov_b32 s61, {EPOCH}
s_mov_b64 exec, 1
buffer_store_dword v31, off, s[32:35], s61
s_mov_b64 exec, -1
L_noep:""")
        s.stamp(8)
        a("s_branch L_exit")
    def cmuls(s, lst):
        for d, x, e, t in lst:
            s.a(f"v_pk_mul_f32 {V(t,2)}, {V(x,2)}, {V(e,2)} op_sel:[1,1] op_sel_hi:[1,0] neg_lo:[1,0]")
        for d, x, e, t in lst:
            s.a(f"v_pk_fma_f32 {V(d,2)}, {V(x,2)}, {V(e,2)}, {V(t,2)} op_sel_hi:[0,1,1]")
    def exp2_bf16(s, pairs):
        L_HI = 1.4426950216293335; L_LO = 1.4426950408889634 - L_HI
        for fmt in (f"v_mul_f32 v{{t}}, {f2h(L_HI)}, v{{x}}", "v_exp_f32 v{d}, v{t}", "v_fma_f32 v{u}, v{x}, s71, -v{t}",
                    f"v_fmac_f32 v{{u}}, {f2h(L_LO)}, v{{x}}", f"v_mul_f32 v{{u}}, {f2h(math.log(2))}, v{{u}}",
                    "v_fma_f32 v{d}, v{d}, v{u}, v{d}", "v_cvt_pk_bf16_f32 v{d}, v{d}, v{d}", "v_and_b32 v{d}, 0xffff0000, v{d}"):
            for d, x, t in pairs: s.a(fmt.format(d=d, x=x, t=t, u=t + 1))
    def a_path(s):
        a = s.a
        a("L_A:")
        if s.o.get("ap", 1): a(f"s_setprio {s.o.get('ap', 1)}")
        s.stamp(1); s.stamp("p1")
        s.a("v_lshrrev_b32 v32, 6, v0\nv_and_b32 v3, 63, v0\nv_readfirstlane_b32 s3, v32\nv_and_b32 v1, 15, v0\nv_bfe_u32 v2, v0, 4, 2\ns_mov_b32 s70, 0")
        s.srd(32, "0x10000000")
        s.nonce_issue(115)
        a(f"""
s_lshr_b32 s67, s3, 2              ; ch
s_and_b32 s68, s3, 3               ; q4
v_lshlrev_b32 v25, 4, v3           ; 16*lane
""")
        nl = 1
        def addr_pairs(fl, dst):
            for i in range(0, len(fl), 2):
                a(f"v_cvt_pk_bf16_f32 v{fl[i]}, v{fl[i]}, v{fl[min(i+1, len(fl)-1)]}")
            for i in range(0, len(fl), 2):
                a(f"v_lshlrev_b32 v{fl[i]}, 1, v{fl[i]}")
            for i in range(len(fl)):
                a(f"v_add_u32_sdwa v{dst[i]}, s64, v{fl[i & ~1]} dst_sel:DWORD dst_unused:UNUSED_PAD src0_sel:DWORD src1_sel:WORD_{i & 1}")
        def AG():
            a(f"""
s_mul_i32 s72, s67, {KCH}
s_add_u32 s72, s72, {KC}
s_sub_u32 s64, s72, {2*KB}
v_and_b32 v33, 255, v0
v_lshlrev_b32 v33, 3, v33
v_sub_u32 v33, 2047, v33
v_cvt_f32_i32 v40, v33             ; lag of element 0
""")
            for e in range(1, 11):
                a(f"v_add_f32 v{40+e}, {f2h(-float(e))}, v40")
            a(f"v_mov_b32 v34, {f2h(2064.0)}")
            for e in (8, 9, 10):
                a(f"v_cmp_gt_f32 vcc, 0, v{40+e}\nv_cndmask_b32 v{40+e}, v{40+e}, v34, vcc")
            addr_pairs(list(range(40, 51)), list(range(8, 19)))
            a("v_max_i32 v15, s72, v15")
        def AS():
            a(f"""
s_mul_i32 s72, s67, {KCH}
s_add_u32 s72, s72, {KC}
s_sub_u32 s64, s72, {2*KB}
""")
            a(f"""
v_lshrrev_b32 v34, 1, v2           ; g>>1
v_and_b32 v35, 1, v2               ; g&1
s_cmp_eq_u32 s68, 1
s_cbranch_scc1 L_sc1
s_cmp_eq_u32 s68, 2
s_cbranch_scc1 L_sc2
v_lshlrev_b32 v36, 7, v34
v_lshl_add_u32 v36, v35, 2, v36    ; 128(g>>1) + 4(g&1) + r
v_mov_b32 v37, 1
v_mov_b32 v38, 2
s_branch L_scd
L_sc1:
v_lshlrev_b32 v36, 7, v2
v_add_u32 v36, 256, v36            ; g<2: 256+128g + 2r
v_lshlrev_b32 v37, 8, v2           ; g>=2: 256g + 128(r>>1) + 4(r&1)
v_cmp_lt_u32 vcc, 1, v2
v_cndmask_b32 v36, v36, v37, vcc
v_cndmask_b32_e64 v37, 2, 4, vcc
v_mov_b32 v38, 128
v_cndmask_b32 v38, 4, v38, vcc
s_branch L_scd
L_sc2:
v_lshlrev_b32 v36, 9, v2
v_add_u32 v36, 1024, v36           ; 1024 + 128(4g+r)
v_mov_b32 v37, 128
v_mov_b32 v38, 256
L_scd:
v_lshl_add_u32 v36, v1, 3, v36
v_add_u32 v37, v36, v37
v_sub_u32 v39, v37, v36
v_add_u32 v38, v36, v38
v_add_u32 v39, v38, v39
v_mov_b32 v34, 2080
v_cmp_lt_u32 vcc, 2048, v36
v_cndmask_b32 v36, v36, v34, vcc
v_cmp_lt_u32 vcc, 2048, v37
v_cndmask_b32 v37, v37, v34, vcc
v_cmp_lt_u32 vcc, 2048, v38
v_cndmask_b32 v38, v38, v34, vcc
v_cmp_lt_u32 vcc, 2048, v39
v_cndmask_b32 v39, v39, v34, vcc
v_cvt_f32_u32 v40, v36
v_cvt_f32_u32 v41, v37
v_cvt_f32_u32 v42, v38
v_cvt_f32_u32 v43, v39
""")
            addr_pairs([40, 41, 42, 43], [20, 21, 22, 23])
            a("v_max_i32 v20, s72, v20")
        def AC():
            a(f"""
v_cmp_eq_u32 s[62:63], 15, v1
s_mul_i32 s69, s67, {CHK}
s_add_u32 s64, s69, {KCP}
v_and_b32 v26, 255, v0
v_lshl_add_u32 v26, v26, 4, s64
v_sub_u32 v34, 3, v1
v_and_b32 v34, 3, v34              ; s = (3-i)&3
v_mul_u32_u24 v35, 4158, v34       ; s*4160 - 2s
v_lshlrev_b32 v36, 4, v2
v_lshlrev_b32 v37, 1, v1
v_sub_u32 v36, v36, v37            ; 16g - 2i
s_bfe_u32 s73, s3, 0x10001
s_and_b32 s64, s3, 1
s_lshl_b32 s64, s64, 8              ; 64*4h
s_mul_i32 s65, s73, {CHK}
s_sub_u32 s65, s65, s64
s_add_u32 s72, s65, {KCP + 2*2031 - 192 - 512*7}
v_add3_u32 v27, v35, v36, s72      ; vA
v_lshlrev_b32 v28, 5, v1
v_lshl_add_u32 v28, v2, 4, v28
s_mul_i32 s72, s73, {CHU}
s_sub_u32 s72, s72, s64
s_add_u32 s72, s72, {UA + 448 - 192}
v_add_u32 v28, s72, v28            ; vB
v_lshlrev_b32 v29, 2, v3           ; 64g + 4c
s_lshl_b32 s64, s3, 7
s_add_u32 s64, s64, {UA + 480}
v_lshl_add_u32 v30, v3, 1, s64
s_lshl_b32 s64, s3, 2
v_add_u32 v34, s64, v2
v_lshlrev_b32 v34, 8, v34
v_lshl_add_u32 v34, v1, 5, v34
v_add_u32 v113, {UA + 480 + 30}, v34
v_cmp_gt_u32 vcc, 8, v1
s_cmp_lt_u32 s3, 4
s_cselect_b64 s[30:31], vcc, 0
s_cselect_b64 s[28:29], s[62:63], 0
s_mul_i32 s58, s66, {PSTR}
s_add_u32 s58, s58, {UT}
s_lshl_b32 s64, s3, 8
s_add_u32 s57, s58, s64
s_add_u32 s54, s57, 4096
s_add_u32 s55, s57, 8192
""")
        a(f"""
s_mul_i32 s59, s3, {WV}
v_mul_u32_u24 v24, {RS}, v1
v_lshl_add_u32 v24, v2, 4, v24
v_add_u32 v24, s59, v24
s_mov_b32 s71, {f2h(1.4426950216293335)}
s_mov_b32 m0, s59
""")
        def uloads():
            for i in range(5):
                so, of = (("s57", 0), ("s57", 2048), ("s54", 0), ("s54", 2048), ("s55", 0))[i]
                a(f"buffer_load_dword v{118+i}, v29, s[32:35], {so} offen offset:{of} sc1")
        early = s.o.get("ae", "SGC")
        for ch in early: {"S": AS, "G": AG, "C": AC}[ch]()
        s.stamp("p2")
        a(f"s_waitcnt vmcnt({nl})")
        s.stamp("p3")
        a("s_cmp_lg_u32 s3, 7\ns_cbranch_scc1 L_a_w\ns_waitcnt vmcnt(5)\nL_a_w:") if False else None
        if s.o.get("bal", 1): a(f"s_cmp_eq_u32 s67, 0\ns_cbranch_scc1 L_bal0\ns_setprio {s.o.get('ap', 1) + 1}\nL_bal0:")
        s.stamp(2); s.stamp("k0")
        if s.o.get("stop"): a("s_branch L_exit")
        s.exp2_bf16([(31, 114, 34), (32, 4, 36)])
        a(f"""
v_mul_f32 v33, v5, v31             ; zi
v_mul_f32 v32, v32, v31            ; -zr
v_mul_f32 v33, 0.15915494, v33     ; revolutions
v_mul_f32 v32, {f2h(-1.4426950408889634)}, v32     ; zr*log2e
v_add_f32 v31, v31, v31
v_mul_f32 v35, {f2h(8.0)}, v33
v_mul_f32 v37, {f2h(128.0)}, v33
v_mul_f32 v34, {f2h(8.0)}, v32
v_mul_f32 v36, {f2h(128.0)}, v32
v_fract_f32 v35, v35
v_fract_f32 v37, v37
v_fract_f32 v33, v33
v_exp_f32 v34, v34
v_cos_f32 v58, v35
v_sin_f32 v59, v35
v_exp_f32 v36, v36
v_cos_f32 v60, v37
v_sin_f32 v61, v37
v_exp_f32 v32, v32
v_cos_f32 v56, v33
v_sin_f32 v57, v33
v_mul_f32 v42, v6, v31
v_mul_f32 v43, v7, v31             ; G0 = 2C dt
v_mul_f32 v58, v58, v34
v_mul_f32_e64 v59, v59, -v34       ; conj E8
v_mul_f32 v60, v60, v36
v_mul_f32 v61, v61, v36
v_mul_f32 v56, v56, v32
v_mul_f32 v57, v57, v32
""")
        s.stamp("k1")
        E1, E8, E128, E2, E4 = 56, 58, 60, 38, 40
        pkr = [54, 55, 62, 63, 4, 5, 6, 7]
        st = {"k": 0}
        def emit(lst):
            ps = []
            for x, buf, row in lst:
                p = pkr[st["k"] % 8]; st["k"] += 1; ps.append(p)
                a(f"v_cvt_pk_bf16_f32 v{p}, v{x}, v{x+1}")
            for p, (x, buf, row) in zip(ps, lst):
                a(f"ds_write_addtid_b32 v{p} offset:{buf*BUF + row*RS}")
        X0, X1, XV, XW, T0, T1, T2, T3 = 42, 44, 46, 32, 48, 50, 52, 108
        GA, GB = 34, 36
        E16 = 110
        a(f"v_mov_b32 v7, 0x3f80\nds_write_addtid_b32 v7 offset:0")
        s.cmuls([(X1, X0, E128, T1), (E16, E8, E8, T2)])
        emit([(E8, 0, 1), (X0, 1, 0)])
        s.cmuls([(GA, X1, E128, T0), (XW, E16, E8, T3), (XV, E16, E16, T2)])
        emit([(X1, 1, 8), (E16, 0, 2), (XW, 0, 3), (XV, 0, 4)])
        for j in range(1, 8):
            l = [(X0, X0, E1, T0), (X1, X1, E1, T1)]
            e = [(X0, 1, j), (X1, 1, 8 + j)]
            if j <= 6: l.append((XW, XW, E16, T3)); e.append((XW, 0, 3 + 2*j))
            if j <= 5: l.append((XV, XV, E16, T2)); e.append((XV, 0, 4 + 2*j))
            if j == 6: l.append((E2, E1, E1, T2))
            if j == 7: l += [(GB, GA, E128, T2), (E4, E2, E2, T3)]
            s.cmuls(l); emit(e)
        s.stamp("k2")
        if s.o.get("bal", 1): a(f"s_setprio {s.o.get('ap', 1)}")
        a("s_waitcnt lgkmcnt(0)")
        s.stamp("k3")
        for ks in range(4): a(f"ds_read_b128 {V(64+4*ks,4)}, v24 offset:{64*ks}")
        for ks in range(4): a(f"ds_read_b128 {V(80+4*ks,4)}, v24 offset:{BUF+64*ks}")
        s.cmuls([(X0, GA, E2, T0), (X1, GB, E2, T1), (XV, GB, E128, T2), (E16, E128, E128, T3)])
        a("s_waitcnt lgkmcnt(4)")
        emit([(GA, 0, 0), (GB, 0, 4), (X0, 0, 1), (X1, 0, 5), (XV, 0, 8)])
        s.cmuls([(X0, X0, E2, T0), (X1, X1, E2, T1), (XW, XV, E128, T2), (GA, XV, E4, T3)])
        a("s_waitcnt lgkmcnt(5)")
        for ks in range(4): s.mfma(96, 80+4*ks, 64+4*ks, None if ks == 0 else 96)
        emit([(X0, 0, 2), (X1, 0, 6), (XW, 0, 10), (GA, 0, 9)])
        s.stamp("k4")
        ug = False
        a("s_waitcnt vmcnt(0)")
        s.nonce_get(115)
        if ug: s.hint_issue("u", "s66", 123, wave=7)
        s.cmuls([(X0, X0, E2, T0), (X1, X1, E2, T1), (XV, XV, E16, T2), (GA, XW, E4, T3)])
        emit([(X0, 0, 3), (X1, 0, 7), (XV, 0, 12), (GA, 0, 11)])
        s.cmuls([(XW, XW, E16, T0), (GA, XV, E4, T1), (XV, XV, E16, T2)])
        emit([(XW, 0, 14), (GA, 0, 13), (XV, 1, 0)])
        s.cmuls([(GB, XW, E4, T0), (XW, XW, E16, T1), (XV, XV, E16, T2)])
        emit([(GB, 0, 15), (XW, 1, 1), (XV, 1, 2)])
        s.stamp("k5")
        if s.o.get("ul", 1) == 2: uloads()
        a("s_waitcnt lgkmcnt(2)")
        for ks in range(4): a(f"ds_read_b128 {V(80+4*ks,4)}, v24 offset:{64*ks}")
        for h in range(3):
            s.cmuls([(XW, XW, E16, T0), (XV, XV, E16, T1)])
            emit([(XW, 1, 3 + 2*h), (XV, 1, 4 + 2*h)])
            if h == 1:
                a("s_waitcnt lgkmcnt(4)")
                for ks in range(4): s.mfma(100, 80+4*ks, 64+4*ks, None if ks == 0 else 100)
        a("s_waitcnt lgkmcnt(0)")
        for ks in range(4): a(f"ds_read_b128 {V(80+4*ks,4)}, v24 offset:{BUF+64*ks}")
        s.stamp("k6")
        if s.o.get("ul", 1) == 3: uloads()
        a("v_add_u32 v32, s59, v25")
        a(f"ds_write_b128 v32, v[96:99]\nds_write_b128 v32, v[100:103] offset:1024")
        a("s_waitcnt lgkmcnt(2)")
        for ks in range(4): s.mfma(104, 80+4*ks, 64+4*ks, None if ks == 0 else 104)
        a(f"ds_write_b128 v32, v[104:107] offset:2048")
        s.stamp(8); s.stamp("k7"); s.stamp("p4")
        for ch in "SC":
            if ch not in early: {"S": AS, "C": AC}[ch]()
        a("s_waitcnt lgkmcnt(0)\ns_barrier")
        s.stamp(3); s.stamp("k8"); s.stamp("e0")
        if s.o.get("ul", 1) == 0: uloads()
        a(f"""
s_cmp_eq_u32 s68, 3
s_cbranch_scc1 L_zp
s_lshl_b32 s72, s68, 10
s_mul_i32 s73, s67, {4*WV}
s_add_u32 s72, s72, s73
v_add_u32 v32, s72, v25
ds_read_b128 v[96:99], v32
ds_read_b128 v[100:103], v32 offset:{WV}
ds_read_b128 v[104:107], v32 offset:{2*WV}
ds_read_b128 v[80:83], v32 offset:{3*WV}
s_waitcnt lgkmcnt(2)
v_pk_add_f32 v[96:97], v[96:97], v[100:101]
v_pk_add_f32 v[98:99], v[98:99], v[102:103]
s_waitcnt lgkmcnt(0)
v_pk_add_f32 v[104:105], v[104:105], v[80:81]
v_pk_add_f32 v[106:107], v[106:107], v[82:83]
v_pk_add_f32 v[96:97], v[96:97], v[104:105]
v_pk_add_f32 v[98:99], v[98:99], v[106:107]
v_cvt_pk_bf16_f32 v96, v96, v97
v_cvt_pk_bf16_f32 v98, v98, v99
ds_write_b16 v20, v96
ds_write_b16_d16_hi v21, v96
ds_write_b16 v22, v98
ds_write_b16_d16_hi v23, v98
s_branch L_zpd
L_zp:
v_mov_b32 v96, 0
v_mov_b32 v97, 0
v_mov_b32 v98, 0
v_mov_b32 v99, 0
s_mul_i32 s72, s67, {KCH}
s_add_u32 s72, s72, {KC + 2*(0x4501 - KB)}
v_mov_b32 v33, s72
ds_write_b16 v33, v96
s_mul_i32 s72, s67, {CHU}
s_add_u32 s72, s72, {UA}
v_add_u32 v33, s72, v25
s_mov_b64 exec, 0x3fffffff
ds_write_b128 v33, v[96:99]          ; zero pad in front of u
s_mov_b64 exec, -1
v_lshrrev_b32 v64, 1, v3
v_mul_u32_u24 v64, 4160, v64
v_and_b32 v65, 1, v3
v_lshl_add_u32 v64, v65, 4, v64
s_add_u32 s72, s69, {KCP + 4096}
v_add_u32 v64, s72, v64""")
        if ug: s.hint_wait("u", 123, wave=7)
        a("L_zpd:")
        if s.o.get("ul", 1) == 1 and not ug: uloads()
        if "G" not in early: AG()
        a("s_waitcnt lgkmcnt(0)")
        s.stamp("e1")
        a("s_barrier")
        s.stamp("e2")
        if ug: uloads()
        for e in range(11): a(f"ds_read_u16 v{32+e}, v{8+e}")
        a(f"""
s_cmp_lg_u32 s68, 3
s_cbranch_scc1 L_nzt
s_mov_b64 exec, 0xff
ds_write_b128 v64, v[96:99]
s_mov_b64 exec, -1
L_nzt:
s_waitcnt lgkmcnt(0)
""")
        for cp in range(4):
            for j in range(4):
                x = cp + 2*j
                a(f"v_lshl_or_b32 v{48+4*cp+j}, v{33+x}, 16, v{32+x}")
            a(f"ds_write_b128 v26, {V(48+4*cp,4)} offset:{4160*cp}")
        s.stamp("e3")
        a("s_branch L_chk_u\nL_poll_u:")
        uloads()
        a("L_chk_u:\ns_waitcnt vmcnt(0)")
        s.check("u", [(118, 29, "s57", 0, "s[62:63]"), (119, 29, "s57", 2048, "s[62:63]"), (120, 29, "s54", 0, "s[62:63]"),
                      (121, 29, "s54", 2048, "s[62:63]"), (122, 29, "s55", 0, "s[28:29]")])
        s.stamp(4); s.stamp("e4")
        a("s_andn2_b64 exec, -1, s[62:63]")
        for i in range(5):
            if i == 4: a("s_mov_b64 exec, s[30:31]")
            ad, of = (30, 1024*i) if i < 4 else (113, 0)
            a(f"ds_write_b16 v{ad}, v{118+i} offset:{of}")
            a(f"ds_write_b16_d16_hi v{ad}, v{118+i} offset:{of + CHU}")
        a("s_mov_b64 exec, -1\ns_waitcnt lgkmcnt(0)\ns_barrier")
        fill_w = f"""v_lshrrev_b32 v4, 1, v1
v_and_b32 v4, 3, v4
v_xor_b32 v4, v4, v2
v_lshlrev_b32 v4, 4, v4
v_lshl_add_u32 v4, v1, 6, v4
s_lshl_b32 s64, s3, 13
s_add_u32 s65, s64, {XP[1] - 8192}
s_cmp_eq_u32 s3, 0
s_cselect_b32 s64, 0, s65
v_add_u32 v4, s64, v4""".split("\n")
        fill_r = f"""v_lshrrev_b32 v5, 3, v3
v_xor_b32 v5, v5, v3
v_and_b32 v5, 3, v5
v_lshlrev_b32 v5, 4, v5
v_and_b32 v6, 0x3c, v3
v_lshl_add_u32 v5, v6, 4, v5
s_lshl_b32 s64, s3, 10
v_add_u32 v5, s64, v5
v_lshrrev_b32 v6, 2, v3
v_mul_u32_u24 v6, 14336, v6
v_and_b32 v7, 3, v3
v_lshl_add_u32 v6, v7, 4, v6
s_mul_i32 s64, s3, {16*14336}
s_lshl_b32 s65, s66, 6
s_add_u32 s64, s64, s65
s_add_u32 s64, s64, {YT}
v_cmp_eq_u32 s[56:57], 3, v7
v_mov_b32 v11, s60
v_and_b32 v9, 7, v1
v_lshl_add_u32 v9, v2, 3, v9
v_lshlrev_b32 v9, 4, v9
v_add_u32 v9, 12, v9
v_mul_u32_u24 v10, 14336, v2
v_lshl_add_u32 v10, v1, 2, v10
s_mul_i32 s72, s3, {2*14336}
s_add_u32 s65, s65, s72
s_add_u32 s65, s65, {YT + 128*14336}""".split("\n")
        s.stamp(5); s.stamp("e5")
        a("s_cmp_lt_u32 s3, 4\ns_cbranch_scc1 L_conv")
        a("\n".join(fill_r))
        s.stamp(6); s.stamp("e6")
        a("s_branch L_tC\nL_conv:")
        filler = fill_w + fill_r
        free = [64 + 4*i for i in range(16)]
        Areg, Breg = {}, {}
        pend = []
        q = []
        exports = []
        NC = 4
        def assign(cl, d):
            off = 64 * (NC - 1 - cl)
            ra = free.pop(0); rb = free.pop(0)
            Areg[(cl, d)] = ra; Breg[(cl, d)] = rb
            q.append(((cl, d), f"ds_read_b128 {V(rb,4)}, v28 offset:{512*d + off}"))
            q.append(((cl, d), f"ds_read_b64 {V(ra,2)}, v27 offset:{512*(7-d) + off}"))
            q.append(((cl, d), f"ds_read_b64 {V(ra+2,2)}, v27 offset:{512*(7-d) + off + 8}"))
        def issue1():
            k, t = q.pop(0); a(t); pend.append(k)
        def wait(cl, d):
            while any(k == (cl, d) for k, _ in q): issue1()
            if (cl, d) in pend:
                idx = max(i for i, k in enumerate(pend) if k == (cl, d))
                a(f"s_waitcnt lgkmcnt({len(pend) - 1 - idx})")
                del pend[:idx + 1]
        first = set(); n = [0]
        left = {T: (T + 1) * NC for T in range(8)}
        def export(T):
            a(f"ds_write_b128 v4, {V(32+4*T,4)} offset:{1024*T}"); pend.append("x")
        def mm(cl, p, qq):
            T = p + qq
            s.mfma(32 + 4*T, Areg[(cl, p)], Breg[(cl, qq)], None if T not in first else 32 + 4*T)
            first.add(T); n[0] += 1
            left[T] -= 1
            if left[T] == 0: exports.append((n[0] + 5, T))
            if q and len(pend) < 15: issue1()
            elif exports and exports[0][0] <= n[0] and len(pend) < 15: export(exports.pop(0)[1])
            elif filler:
                a(filler.pop(0))
                while filler and filler[0].startswith("s_"): a(filler.pop(0))
        todo = [(cl, d) for cl in range(NC) for d in range(8)]
        def refill():
            while todo and len(free) >= 2: assign(*todo.pop(0))
        refill()
        for _ in range(9): issue1()
        for cl in range(NC):
            for d in range(8):
                wait(cl, d)
                prs = [(d, j) for j in range(d) if d + j <= 7] + [(j, d) for j in range(d) if d + j <= 7]
                if 2*d <= 7: prs.append((d, d))
                if cl == NC - 1: prs.sort(key=lambda x: x[0] + x[1])
                for p, qq in prs: mm(cl, p, qq)
                if d >= 4:
                    for k in (7 - d, d):
                        free.append(Areg[(cl, k)]); free.append(Breg[(cl, k)])
                    refill()
        assert not todo and not q and not filler
        s.stamp(6); s.stamp("e6")
        for _, T in exports: export(T)
        a("L_tC:\ns_waitcnt lgkmcnt(0)")
        s.stamp("e7")
        a("s_barrier")
        s.stamp("e8")
        for qq in range(4): a(f"ds_read_b128 {V(64+8*qq,4)}, v5 offset:{XP[qq]}")

        def add4(d, x):
            a(f"v_pk_add_f32 {V(d,2)}, {V(d,2)}, {V(x,2)}\nv_pk_add_f32 {V(d+2,2)}, {V(d+2,2)}, {V(x+2,2)}")
        a("s_waitcnt lgkmcnt(2)"); add4(64, 72)
        a("s_waitcnt lgkmcnt(0)"); add4(80, 88)
        for r in range(4): a(f"v_cvt_pk_bf16_f32 v{96+r}, v{64+r}, v{80+r}")
        a("""ds_bpermute_b32 v100, v9, v99
v_cndmask_b32 v99, v99, v11, s[56:57]
buffer_store_dwordx4 v[96:99], v6, s[32:35], s64 offen sc1
s_waitcnt lgkmcnt(0)""")
        s.hint_send("y", "s66", 0)
        a("""v_cndmask_b32 v100, v100, v11, s[62:63]
s_mov_b32 exec_hi, 0
buffer_store_dword v100, v10, s[32:35], s65 offen sc1
s_mov_b64 exec, -1""")
        s.stamp(7); s.stamp("e9")
    def table(s):
        T = tables.b_tables()
        buf = np.zeros(TB_SIZE // 4, np.uint32)
        for n, off in TB.items(): buf[off // 4: off // 4 + 256] = T[n].reshape(-1)
        out = [".p2align 8", ".type L_tbl,@object", "L_tbl:"]
        for i in range(0, len(buf), 8):
            out.append(".long " + ",".join(("0x%x" % x) if x else "0" for x in buf[i:i + 8]))
        out.append("L_tbl_end:")
        out.append(f".size L_tbl, {TB_SIZE}")
        return "\n".join(out)
    def build(s):
        a = s.a
        hdr = open("concat_heads__ssm_conv_s4d__spectral_gfnet__prompt.s.ref").read().split("; Override launch")[0]
        a.raw(hdr + f"; @launch grid=({NWG},1,1) block=(512,1,1) lds={LDS_BYTES}")
        a.raw(f'.amdgcn_target "amdgcn-amd-amdhsa--gfx950"\n.text\n.globl {KNAME}\n.p2align 8\n.type {KNAME},@function\n{KNAME}:')
        s.entry(); s.row_s1(); s.t_u(); s.column(); s.row_inv(); s.t_y(); s.a_path()
        a("L_exit:")
        s.stamp(9)
        s.stamp_flush()
        a("L_end:\ns_endpgm")
        a.raw(s.table())
        a.raw(f""".section .rodata,"a"
.p2align 6
.amdhsa_kernel {KNAME}
  .amdhsa_next_free_vgpr 128
  .amdhsa_next_free_sgpr 102
  .amdhsa_accum_offset 128
  .amdhsa_group_segment_fixed_size 0
  .amdhsa_kernarg_size 104
  .amdhsa_user_sgpr_count 2
  .amdhsa_user_sgpr_kernarg_segment_ptr 1
  .amdhsa_system_sgpr_workgroup_id_x 1
.end_amdhsa_kernel""")
        return a.text().replace("BPRIO", str(s.o.get("bp", 2))).replace("    REMAP\n", {0: "", 1: "    s_add_u32 s64, s2, 272\n    s_sub_u32 s2, s2, 224\n    s_cselect_b32 s2, s64, s2\n",
            2: "    s_add_u32 s64, s2, 128\n    s_sub_u32 s65, s2, 352\n    s_cmp_lt_u32 s2, 16\n    s_cselect_b32 s64, s2, s64\n    s_cmp_ge_u32 s2, 368\n    s_cselect_b32 s2, s65, s64\n"}[s.o.get("ord", 0)]).replace("    AONLY\n", "    s_endpgm\n" if s.o.get("aonly") else "").replace(" NTC", " nt" if s.o.get("ntc") else "").replace(" NTE", " nt" if s.o.get("nte") else "").replace(" NTP", " nt" if s.o.get("ntp") else "").replace(" NTF", " nt" if s.o.get("nt", 1) else "").replace(" NTW", " nt" if s.o.get("ntw", 1) else "").replace(" NTG", " nt" if s.o.get("ntg", 1) else "").replace(" OUTF", (" " + s.o["outf"]) if s.o.get("outf") else "")
if __name__ == "__main__":
    out = sys.argv[1]; stamps = len(sys.argv) > 2 and sys.argv[2] == "1"
    opts = json.loads(sys.argv[3]) if len(sys.argv) > 3 else {}
    g = G(stamps, opts); t = g.build(); open(out, "w").write(t)
    print("lines", t.count("\n"), "bytes", len(t), "nops", g.a.nops)
```

```python
import sys, math, json
import numpy as np
from asmlib import Asm, f2h
import tables
KNAME = "concat_heads__ssm_conv_s4d__spectral_gfnet__prompt_kernel"
Z1, Z2, UT, YT, STAMP = 0x010000, 0x220000, 0x430000, 0x640000, 0x1000000
EPOCH = 0x630000
HB = {'z1': 0x900000, 'u': 0x980000, 'z2': 0xA00000, 'y': 0xA80000}; HP = {'z1': 128, 'u': 144, 'z2': 256, 'y': 224}
CB = {'z1': 0x900000, 'z2': 0x920000, 'y': 0x940000}; CT_ = {'z1': 16, 'z2': 32, 'y': 28}
PSTR = 9216
NR0, NT0, NA0, NWG = 16, 144, 272, 496
LDS_BYTES = 78336
SPIN_MAX = 200000
WV, BUF, RS = 9216, 4608, 288
KC, KCH = 3072, 3072
KB = 0x3F7F
ZS = 0x4502 - KB
KCP, CHK, UA, CHU = 9216, 16640, 69120, 4608
XP = [0, 43008, 51200, 59392]
TB = {n: 1024 * i for i, n in enumerate(["COS28", "NSIN28", "R2RE", "R2IM", "TWRC", "TWRS", "F8RE", "F8IM", "G8RE", "G8IM",
                                          "R2BRE", "R2BIM", "TWIC", "TWIS", "R1B0", "R1B1"])}
TB_SIZE = 16384
T1, EB, CT = 16896, 37376, 49664

def V(a, n=1): return f"v{a}" if n == 1 else f"v[{a}:{a+n-1}]"
def S(a, n=1): return f"s{a}" if n == 1 else f"s[{a}:{a+n-1}]"

class G:
    def __init__(s, stamps=False, opts=None):
        s.a = Asm(); s.stamps = stamps; s.o = opts or {}
    def stamp(s, i):
        if not s.stamps: return
        prof = s.o.get("prof")
        if prof:
            if isinstance(i, str):
                if i[:len(prof)] == prof: s.a(f"s_memtime {S(80+2*int(i[len(prof):]),2)}")
            return
        if isinstance(i, int): s.a(f"s_memrealtime {S(80+2*i,2)}")
    def stamp_flush(s):
        if not s.stamps: return
        a = s.a
        if s.o.get("dbg"):
            a("""s_memtime s[22:23]
s_mov_b32 s20, s101
s_load_dwordx2 s[100:101], s[0:1], 88
s_waitcnt lgkmcnt(0) vmcnt(0)
s_cmp_lg_u32 s3, 0
s_cbranch_scc1 L_end""")
            for k, (wg, idx) in enumerate(((150, (1, 2, 3, 5, 7, 9)), (60, (2, 3, 5, 7, 9)), (400, (2, 3, 5, 7)))):
                base = (1, 7, 12)[k]
                a(f"s_cmp_lg_u32 s2, {wg}\ns_cbranch_scc1 L_dbg{k}")
                if k == 0: a("s_sub_u32 s22, s22, s20\nv_mov_b32 v4, s22\nv_mov_b32 v5, 0\nglobal_store_dword v5, v4, s[100:101]")
                for j, i in enumerate(idx):
                    a(f"s_sub_u32 s64, s{80+2*i}, s80\nv_mov_b32 v4, s64\nv_mov_b32 v5, {4*(base+j)}\nglobal_store_dword v5, v4, s[100:101]")
                a(f"L_dbg{k}:")
            a("s_waitcnt vmcnt(0)")
            return
        a("s_waitcnt lgkmcnt(0) vmcnt(0)")
        for i in range(10): a(f"v_mov_b32 v{4+i}, s{80+2*i}")
        a(f"""v_mov_b32 v14, 0
v_mov_b32 v15, s70
v_mov_b32 v2, 0
s_lshl_b32 s64, s2, 3
s_add_u32 s64, s64, s3
s_lshl_b32 s64, s64, 6
s_add_u32 s64, s64, {STAMP}
buffer_store_dwordx4 v[4:7], v2, s[32:35], s64 offen
buffer_store_dwordx4 v[8:11], v2, s[32:35], s64 offen offset:16
buffer_store_dwordx4 v[12:15], v2, s[32:35], s64 offen offset:32
s_waitcnt vmcnt(0)""")
    def srd(s, base, size):
        s.a(f"s_mov_b32 s{base+2}, {size}\ns_mov_b32 s{base+3}, 0x20000")
    def mfma(s, d, A, B, c=None):
        s.a(f"v_mfma_f32_16x16x32_bf16 {V(d,4)}, {V(A,4)}, {V(B,4)}, {'0' if c is None else V(c,4)}")
    def twiddle(s, dre, dim, co, si, P, conj, T=8, packed=False):
        a = s.a
        if packed:
            for h in (0, 2):
                a(f"v_pk_mul_f32 {V(T+h,2)}, {V(dim+h,2)}, {V(si+h,2)}")
                a(f"v_pk_mul_f32 {V(T+4+h,2)}, {V(dre+h,2)}, {V(si+h,2)}")
            for h in (0, 2):
                n = " neg_lo:[0,0,1] neg_hi:[0,0,1]"
                a(f"v_pk_fma_f32 {V(dre+h,2)}, {V(dre+h,2)}, {V(co+h,2)}, {V(T+h,2)}{n if conj else ''}")
                a(f"v_pk_fma_f32 {V(dim+h,2)}, {V(dim+h,2)}, {V(co+h,2)}, {V(T+4+h,2)}{'' if conj else n}")
        else:
            for r in range(4):
                a(f"v_mul_f32 v{T+r}, v{dim+r}, v{si+r}")
                a(f"v_mul_f32 v{T+4+r}, v{dre+r}, v{si+r}")
            for r in range(4):
                a(f"v_fma_f32 v{dre+r}, v{dre+r}, v{co+r}, {'-' if conj else ''}v{T+r}")
                a(f"v_fma_f32 v{dim+r}, v{dim+r}, v{co+r}, {'' if conj else '-'}v{T+4+r}")
        s.pack(dre, dim, P)
    def pack(s, dre, dim, P):
        for r in range(4): s.a(f"v_cvt_pk_bf16_f32 v{P[r]}, v{dre+r}, v{dim+r}")
    def sincos4(s, a0, step, co, si, T=8):
        a = s.a
        a(f"v_add_f32 v{T+1}, v{a0}, v{step}")
        a(f"v_fma_f32 v{T+2}, v{step}, 2.0, v{a0}")
        a(f"v_add_f32 v{T+3}, v{T+2}, v{step}")
        regs = [a0, T+1, T+2, T+3]
        for r in range(4):
            a(f"v_cos_f32 v{co+r}, v{regs[r]}")
            a(f"v_sin_f32 v{si+r}, v{regs[r]}")
    def tbl_srd(s):
        s.a("s_getpc_b64 s[36:37]")
        n = s.a.uid()
        s.a.raw(f"L_pc{n}:")
        s.a(f"s_add_u32 s36, s36, L_tbl-L_pc{n}\ns_addc_u32 s37, s37, 0")
        s.srd(36, TB_SIZE)
    def tload(s, items, vaddr, sbase=None):
        cur = None
        for r, off in items:
            b = off & ~4095
            if b != cur:
                if sbase is None: s.a(f"s_mov_b32 s61, {b}")
                else: s.a(f"s_add_u32 s61, {sbase}, {b}")
                cur = b
            s.a(f"buffer_load_dwordx4 {V(r,4)}, v{vaddr}, s[36:39], s61 offen offset:{off - b}")
        return len(items)
    def nonce_issue(s, vn):
        s.a(f"s_mov_b32 s61, {EPOCH}\nbuffer_load_dword v{vn}, off, s[32:35], s61 NTE")
    def nonce_get(s, vn):
        s.a(f"v_add_u32 v{vn}, 1, v{vn}\nv_readfirstlane_b32 s60, v{vn}")
    def spin(s, tag, sleep):
        s.a(f"""s_add_u32 s70, s70, 1
s_cmp_gt_u32 s70, {SPIN_MAX}
s_cbranch_scc1 L_exit
s_sleep {sleep}
s_branch L_poll_{tag}""")
    def gate_issue(s, tag, K, stride, off, sreg, vt, wave=0):
        s.a(f"""
v_mul_u32_u24 v{vt+1}, {stride}, v3
s_cmp_lg_u32 s3, {wave}
s_cbranch_scc1 L_gi_{tag}
v_mov_b32 v{vt}, 0
s_mov_b64 exec, {hex((1<<K)-1)}
buffer_atomic_or v{vt}, v{vt+1}, s[32:35], {sreg} offen offset:{off} sc0 sc1
s_mov_b64 exec, -1
L_gi_{tag}:""")
    def gate_wait(s, tag, K, stride, off, sreg, vt, wave=0, sentinel=False):
        a = s.a
        a(f"""
s_cmp_lg_u32 s3, {wave}
s_cbranch_scc1 L_gd_{tag}
s_mov_b64 exec, {hex((1<<K)-1)}
s_branch L_gc_{tag}
L_poll_g{tag}:
v_mov_b32 v{vt}, 0
buffer_atomic_or v{vt}, v{vt+1}, s[32:35], {sreg} offen offset:{off} sc0 sc1
L_gc_{tag}:
s_waitcnt vmcnt(0)
v_cmp_{'eq' if sentinel else 'ne'}_u32 vcc, {'-1' if sentinel else 's60'}, v{vt}
s_cbranch_vccz L_gok_{tag}""")
        s.spin("g" + tag, s.o.get("gsl", 1))
        a(f"""L_gok_{tag}:
s_mov_b64 exec, -1
L_gd_{tag}:""")
    def hint_send(s, e, preg, wave=0, tag=""):
        R = s.o.get("R", 16)
        s.a(f"""
s_cmp_lg_u32 s3, {wave}
s_cbranch_scc1 L_hs_{e}{tag}
s_and_b32 s61, {preg}, 7
s_lshl_b32 s61, s61, 10
s_add_u32 s61, s61, {CB[e]}
s_add_u32 s76, s32, s61
s_addc_u32 s77, s33, 0
s_mov_b32 s26, 1""")
        for r in range(R): s.a(f"s_atomic_add s26, s[76:77], {hex(8192*r)}")
        s.a(f"L_hs_{e}{tag}:")
    def hint_zero(s):
        s.a(f"""
s_cmp_lg_u32 s3, 7
s_cbranch_scc1 L_hz
s_lshl_b32 s61, s2, 13
s_add_u32 s61, s61, {CB['z1']}
s_add_u32 s76, s32, s61
s_addc_u32 s77, s33, 0
s_mov_b32 s26, 0""")
        for e in ("z1", "z2", "y"):
            for x in range(8): s.a(f"s_atomic_swap s26, s[76:77], {hex(CB[e] - CB['z1'] + 1024*x)}")
        s.a("L_hz:")
    def g_wait(s, e, creg):
        a = s.a
        R = s.o.get("R", 16); dl = s.o.get("dl", {}); tg = CT_[e]
        a(f"""s_cmp_lg_u32 s3, 0
s_cbranch_scc1 L_hd_{e}
s_lshr_b32 s61, {creg}, 3
s_and_b32 s61, s61, {R-1}
s_lshl_b32 s61, s61, 13
s_add_u32 s61, s61, {CB[e]}
s_add_u32 s24, s32, s61
s_addc_u32 s25, s33, 0
s_mov_b32 s27, 0""")
        for k in range(8): a(f"s_mov_b32 s{72+k}, 0")
        if e == "z1" and dl.get("z1t"):
            a(f"s_cmp_ge_u32 s2, {NT0}\ns_cbranch_scc1 L_dlt\ns_sleep {dl.get('z1r', 0)}\ns_branch L_dlr\nL_dlt:\ns_sleep {dl['z1t']}\nL_dlr:")
        elif dl.get(e): a(f"s_sleep {dl[e]}")
        a(f"L_poll_h{e}:")
        for k in range(8):
            a(f"""s_cmp_eq_u32 s{72+k}, {tg}
s_cbranch_scc1 L_hp{k}_{e}
s_mov_b32 s{72+k}, 0
s_atomic_add s{72+k}, s[24:25], {hex(1024*k)} glc
L_hp{k}_{e}:""")
        a("s_add_u32 s27, s27, 1\ns_add_u32 s70, s70, 1\ns_waitcnt lgkmcnt(0)")
        a(f"s_xor_b32 s26, s72, {tg}")
        for k in range(1, 8): a(f"s_xor_b32 s61, s{72+k}, {tg}\ns_or_b32 s26, s26, s61")
        a(f"""s_cbranch_scc0 L_hd_{e}
s_sleep {s.o.get("gsl", 1)}
s_cmp_lt_u32 s27, {s.o.get("NF", 32)}
s_cbranch_scc1 L_poll_h{e}
L_hd_{e}:""")
    def w_sprefetch(s, tag):
        a = s.a
        a(f"""s_cmp_eq_u32 s3, 0
s_cbranch_scc1 L_sp_{tag}
s_mov_b32 s27, s3
L_sp1_{tag}:
s_lshl_b32 s61, s67, 3
s_add_u32 s61, s61, s27
s_lshl_b32 s61, s61, 4
s_add_u32 s61, s61, s66
s_mul_i32 s61, s61, 450
s_and_b32 s61, s61, -4
s_min_u32 s61, s61, {921600 - 452}
s_add_u32 s24, s48, s61
s_addc_u32 s25, s49, 0""")
        st = s.o.get("pst", 128)
        offs = list(range(0, 449, st)) + ([448] if 448 % st else [])
        for o in offs: a(f"s_load_dword s23, s[24:25], {o}")
        a("s_add_u32 s24, s52, s61\ns_addc_u32 s25, s53, 0")
        for o in offs: a(f"s_load_dword s23, s[24:25], {o}")
        a(f"""s_cmp_lg_u32 s27, 4
s_mov_b32 s27, 0
s_cbranch_scc0 L_sp1_{tag}
L_sp_{tag}:""")
    def check(s, tag, items):
        a = s.a
        m = [S(r, 2) for r in (72, 74, 76, 78, 48, 50, 52, 40)[:len(items)]]
        for mi, it in zip(m, items): a(f"v_cmp_ne_u32 {mi}, s60, v{it[0]}")
        same = len({it[4] for it in items}) == 1
        def merge(pre):
            if pre:
                for mi, it in zip(m, items): a(f"s_and_b64 {mi}, {mi}, {it[4]}")
            a(f"s_or_b64 vcc, {m[0]}, {m[1]}")
            for mi in m[2:]: a(f"s_or_b64 vcc, vcc, {mi}")
        if same:
            merge(False); a(f"s_and_b64 vcc, vcc, {items[0][4]}\ns_cbranch_scc0 L_got_{tag}")
            for mi, it in zip(m, items): a(f"s_and_b64 {mi}, {mi}, {it[4]}")
        else:
            merge(True); a(f"s_cbranch_scc0 L_got_{tag}")
        if s.o.get("aonly") or s.o.get("loud"):
            if s.o.get("aonly"): a(f"s_branch L_got_{tag}")
            else: s.spin(tag, s.o.get("sl", 4))
            a(f"L_got_{tag}:"); return
        a(f"""L_q_{tag}:
s_add_u32 s70, s70, 1
s_cmp_gt_u32 s70, {SPIN_MAX}
s_cbranch_scc1 L_exit""")
        for k, (mi, it) in enumerate(zip(m, items)):
            a(f"""s_mov_b64 exec, {mi}
s_cbranch_execz L_q{k}_{tag}
v_mov_b32 v{it[0]}, 0
buffer_atomic_or v{it[0]}, v{it[1]}, s[32:35], {it[2]} offen offset:{it[3]} sc0 sc1
L_q{k}_{tag}:""")
        a("s_mov_b64 exec, -1\ns_waitcnt vmcnt(0)")
        for mi, it in zip(m, items):
            a(f"v_cmp_ne_u32 vcc, s60, v{it[0]}\ns_and_b64 {mi}, {mi}, vcc")
        merge(False)
        a(f"""s_cbranch_scc0 L_poll_{tag}
s_sleep {s.o.get("qsl", 2)}
s_branch L_q_{tag}
L_got_{tag}:""")
    def gk(s, n):
        K = s.o.get("K", 8)
        st = (n - 1) // (K - 1) if K > 1 else 1
        if st % 2 == 0: st -= 1
        return K, 64 * st
    def lanes(s):
        s.a("""v_lshrrev_b32 v4, 6, v0
v_and_b32 v3, 63, v0
v_readfirstlane_b32 s3, v4
v_and_b32 v1, 15, v0
v_bfe_u32 v2, v0, 4, 2
s_mov_b32 s70, 0""")
    def prefetch(s, tag):
        if s.o.get("nopf"): return
        s.a(f"""
s_cmp_lg_u32 s3, 7
s_cbranch_scc1 L_nopf_{tag}
s_lshr_b32 s64, s2, 3
s_and_b32 s64, s64, 1
s_lshl_b32 s64, s64, 13
s_sub_u32 s74, s36, L_tbl-{KNAME}
s_subb_u32 s75, s37, 0
v_lshl_add_u32 v124, v3, 7, s64
v_min_u32 v124, L_tbl-{KNAME}-4, v124
global_load_dword v124, v124, s[74:75]
L_nopf_{tag}:""")

    def entry(s):
        a = s.a
        s.stamp(0); s.stamp("p0")
        if s.o.get("s0"): a(f"s_sleep {s.o['s0']}")
        if s.o.get("dbg"): a("s_memtime s[78:79]\ns_waitcnt lgkmcnt(0)\ns_mov_b32 s101, s78")
        a(f"""
s_load_dwordx16 s[4:19], s[0:1], 0
s_load_dwordx8 s[20:27], s[0:1], 64
s_load_dwordx2 s[32:33], s[0:1], 96
s_getpc_b64 s[36:37]
L_pc:
v_cmp_gt_u32 vcc, 8, v0
s_bfe_u32 s66, s2, 0x40003
s_lshl_b32 s66, s66, 10
s_and_saveexec_b64 s[64:65], vcc
s_cbranch_execz L_nopf
v_lshl_add_u32 v124, v0, 7, s66
{'s_nop 0' if s.o.get('nopf') else 'global_load_dword v124, v124, s[36:37] NTP'}    ; pull 1 KiB of the code into this XCD's L2 (speed only)
L_nopf:
s_mov_b64 exec, -1
s_cmp_ge_u32 s2, {NWG}
s_cbranch_scc1 L_end
REMAP
s_cmp_lt_u32 s2, {NA0}
s_cbranch_scc1 L_B
s_sub_u32 s66, s2, {NA0}           ; pair
s_lshl_b32 s64, s66, 10
v_lshl_add_u32 v24, v0, 1, s64
s_lshl_b32 s64, s66, 1
v_lshrrev_b32 v25, 8, v0
v_add_lshl_u32 v25, v25, s64, 1
s_waitcnt lgkmcnt(0)
global_load_short_d16_hi v114, v25, s[14:15] NTF
global_load_short_d16_hi v4, v24, s[6:7] NTF
global_load_short_d16_hi v5, v24, s[8:9] NTF
global_load_short_d16_hi v6, v24, s[10:11] NTF
global_load_short_d16_hi v7, v24, s[12:13] NTF
s_branch L_A
L_B:
AONLY
v_lshrrev_b32 v4, 6, v0
v_and_b32 v3, 63, v0
v_readfirstlane_b32 s3, v4
v_lshlrev_b32 v7, 4, v3            ; lane*16
s_sub_u32 s58, s2, {NR0}
s_add_u32 s36, s36, L_tbl-L_pc
s_addc_u32 s37, s37, 0
s_mov_b32 s38, {TB_SIZE}
s_mov_b32 s39, 0x20000
s_mov_b32 s42, 1835008
s_mov_b32 s43, 0x20000
s_cmp_lt_u32 s58, 128
s_cbranch_scc0 L_pT
s_mov_b32 s71, s58
s_lshl_b32 s64, s3, 8
s_add_u32 s64, s64, s58
s_mov_b32 s66, {128*896}
s_lshl_b32 s65, s3, 11
s_movk_i32 s67, 1024
s_lshl_b32 s68, s3, 10
s_waitcnt lgkmcnt(0)
s_mov_b64 s[40:41], s[18:19]
s_branch L_pC
L_pT:
s_sub_u32 s71, s2, {NT0}
s_lshl_b32 s28, s71, 4
s_lshl_b32 s64, s2, 7
s_add_u32 s64, s64, 15
s_add_u32 s65, s2, 128
s_cmp_lt_u32 s2, {NR0}
s_cselect_b32 s28, s64, s28
s_cselect_b32 s71, s65, s71
s_cselect_b32 s59, 16, 1
s_cselect_b32 s66, 0, {8*896}
s_mul_i32 s64, s59, s3
s_add_u32 s64, s64, s28
s_mul_i32 s65, s3, 1040
s_movk_i32 s67, {8*1040}
s_and_b32 s68, s3, 3
s_lshl_b32 s68, s68, 10
s_add_u32 s68, s68, {TB["F8RE"]}
s_waitcnt lgkmcnt(0)
s_mov_b64 s[40:41], s[4:5]
L_pC:
s_mul_i32 s64, s64, 896
s_mov_b32 m0, s65
s_add_u32 s66, s66, s64
buffer_load_dwordx4 v7, s[40:43], s64 offen NTF lds
s_add_u32 m0, s65, s67
s_mov_b32 s61, {EPOCH}
buffer_load_dwordx4 v7, s[40:43], s66 offen NTF lds
s_add_u32 m0, s68, {CT}
s_mov_b32 s34, 0x10000000
s_mov_b32 s35, 0x20000
{'s_nop 0' if s.o.get('nocd') else 'buffer_load_dwordx4 v7, s[36:39], s68 offen NTC lds'}
buffer_load_dword v31, off, s[32:35], s61 NTE
v_and_b32 v1, 15, v0
v_bfe_u32 v2, v0, 4, 2
s_mov_b32 s70, 0
""")
        s.stamp(1); s.stamp("p1")
        a("s_cmp_lt_u32 s58, 128\ns_cbranch_scc0 L_T")
    def cread(s, items):
        for r, n in items: s.a(f"ds_read_b128 {V(r,4)}, v7 offset:{CT + TB[n]}")
    def matrix(s, a0, step, re, im, conj):
        s.sincos4(a0, step, 96, 100)
        for j in range(4):
            s.a(f"v_cvt_pk_bf16_f32 v{re+j}, v{96+j}, {'-' if conj else ''}v{100+j}")
            s.a(f"v_cvt_pk_bf16_f32 v{im+j}, {'' if conj else '-'}v{100+j}, v{96+j}")
    def b0(s):
        a = s.a
        s.srd(44, 3670016); s.srd(48, 921600); s.srd(52, 921600)
        a(f"""
v_cmp_eq_u32 s[62:63], 15, v1
s_mov_b64 s[44:45], s[24:25]
s_mov_b64 s[48:49], s[20:21]
s_mov_b64 s[52:53], s[22:23]
s_and_b32 s66, s58, 15         ; f1
s_lshr_b32 s67, s58, 4         ; k2
v_lshlrev_b32 v10, 2, v1
v_lshl_add_u32 v24, v2, 19, v10    ; g*524288 + 4c
v_cvt_f32_u32 v4, v1
v_lshlrev_b32 v5, 2, v2
v_cvt_f32_u32 v5, v5
v_mul_f32 v4, {f2h(1/16)}, v4          ; c/16
""")
    def bw(s):
        s.a(f"""
s_mul_i32 s64, s67, 56
s_sub_u32 s65, 896, s64
s_cmp_lt_u32 s67, 8
s_cselect_b32 s64, s64, s65
s_cselect_b32 s65, 2, -2
v_and_b32 v8, 1, v2
v_lshrrev_b32 v9, 1, v2
v_mul_i32_i24 v6, s65, v1
v_mul_u32_u24 v10, {1024*450}, v8
v_mul_u32_u24 v11, {16*450}, v9
v_add_u32 v6, s64, v6
v_add3_u32 v6, v6, v10, v11
s_lshl_b32 s64, s3, 5
s_add_u32 s64, s64, s66
s_mul_i32 s68, s64, 450        ; W soffset r=0
""")
    def bc(s):
        a = s.a
        a(f"""
v_and_b32 v8, 1, v2
v_lshrrev_b32 v9, 1, v2
v_lshlrev_b32 v10, 2, v1
v_lshl_add_u32 v27, v2, 11, v10    ; Z1 poll: g*2048 + 4c
v_mul_u32_u24 v12, 48, v1
v_mul_u32_u24 v28, 3072, v2
s_lshl_b32 s64, s3, 2
s_add_u32 s64, s64, {EB}
v_add3_u32 v28, v28, v12, s64          ; E b32: 4g*768 + 48c + 4w
v_mul_u32_u24 v9, 768, v9
v_lshl_add_u32 v9, v8, 4, v9
s_mul_i32 s64, s3, 1536
s_add_u32 s64, s64, {EB}
v_add3_u32 v29, v9, v12, s64           ; E b128
v_cvt_f32_u32 v8, s3
v_mul_f32 v8, {f2h(1/8)}, v8           ; b/8
v_add_f32 v13, v5, v8
v_mul_f32 v13, v13, v4
v_fmamk_f32 v12, v8, {f2h(1/16)}, v4
""")
        s.matrix(13, 4, 64, 68, False)
        a("v_mul_f32 v13, v12, v5")
        s.matrix(13, 12, 72, 76, True)
    def w_prefetch(s, d):
        s.a(f"""
s_lshl_b32 s64, s67, 3
s_add_u32 s64, s64, s3
s_lshl_b32 s64, s64, 4
s_add_u32 s64, s64, s66
s_mul_i32 s64, s64, 450
v_lshlrev_b32 v8, 7, v3
v_min_u32 v8, 448, v8
buffer_load_ushort v{d}, v8, s[48:51], s64 offen NTW
buffer_load_ushort v{d+1}, v8, s[52:55], s64 offen NTW
""")
        return 2
    def w_early(s, tag):
        a = s.a
        a(f"s_cmp_eq_u32 s3, 0\ns_cbranch_scc1 L_we_{tag}")
        s.w_loads()
        a(f"s_cmp_lg_u32 s3, 1\ns_cbranch_scc1 L_we_{tag}\ns_mul_i32 s61, s66, 450")
        for r in range(4):
            a(f"buffer_load_ushort v{88+r}, v6, s[48:51], s61 offen NTG")
            a(f"buffer_load_ushort v{92+r}, v6, s[52:55], s61 offen NTG")
            if r < 3: a(f"s_add_u32 s61, s61, {256*450}")
        a(f"L_we_{tag}:")
    def w_loads(s):
        a = s.a
        if s.o.get("now"):
            for r in range(8): a(f"buffer_load_dword v{16+r}, off, s[36:39], 0")
            return
        for r in range(4):
            a(f"buffer_load_short_d16_hi v{16+r}, v6, s[48:51], s68 offen NTG")
            a(f"buffer_load_short_d16_hi v{20+r}, v6, s[52:55], s68 offen NTG")
            if r < 3: a(f"s_add_u32 s68, s68, {256*450}")
    def row_s1(s):
        a = s.a
        s.b0()
        wp = s.o.get("wp", 5)
        a(f"""
v_cvt_f32_u32 v8, s71
v_mul_f32 v8, {f2h(1/128)}, v8             ; sigma/128
v_add_f32 v13, v5, v8
v_mul_f32 v13, v13, v4
""")
        s.matrix(13, 4, 56, 60, False)
        a(f"""
v_mul_u32_u24 v25, 5120, v2
v_mul_u32_u24 v8, 80, v1
s_lshl_b32 s64, s3, 3
s_add_u32 s64, s64, {T1}
v_add3_u32 v25, v25, v8, s64          ; T write: g*5120 + 80c + 8w
s_mul_i32 s64, s3, 2560
s_add_u32 s64, s64, {T1}
v_lshl_add_u32 v26, v2, 4, v8
v_add_u32 v26, s64, v26               ; T read: 2w*1280 + 80c + 16g
s_lshl_b32 s65, s3, 11
v_lshl_add_u32 v120, v3, 3, s65
""")
        s.bw()
        if s.o.get("bce"): s.bc()
        if s.o.get("wd"): a(f"s_sleep {s.o['wd']}")
        if wp == 1: s.w_prefetch(94)
        s.stamp("p2")
        a(f"s_setprio BPRIO\ns_waitcnt vmcnt({2 if wp < 2 else 0})")
        s.stamp(2); s.stamp("s0"); s.stamp("p3")
        if s.o.get("stop"): a("s_branch L_exit")
        a("s_barrier")
        s.stamp("s1")
        pk = s.o.get("pk", True)
        a(f"""
ds_read_b64_tr_b16 v[96:97], v120
ds_read_b64_tr_b16 v[98:99], v120 offset:512
""")
        s.cread([(32, "COS28"), (36, "NSIN28")])
        a(f"""
ds_read_b64_tr_b16 v[100:101], v120 offset:1024
ds_read_b64_tr_b16 v[102:103], v120 offset:1536
""")
        s.cread([(48, "TWRC"), (52, "TWRS"), (40, "R2RE"), (44, "R2IM")])
        if s.o.get("wg", 1) == 0: s.w_loads()
        if wp == 3: s.w_prefetch(94)
        s.stamp("s2")
        s.nonce_get(31)
        a("s_waitcnt lgkmcnt(6)")
        s.mfma(104, 96, 32); s.mfma(108, 96, 36)
        a("s_waitcnt lgkmcnt(4)")
        s.mfma(112, 100, 32); s.mfma(116, 100, 36)
        a("s_waitcnt lgkmcnt(0)")
        s.stamp("s3")
        s.twiddle(104, 108, 48, 52, [96, 97, 98, 99], False, packed=pk)
        s.mfma(104, 40, 96); s.mfma(108, 44, 96)
        s.twiddle(112, 116, 48, 52, [100, 101, 102, 103], False, packed=pk)
        s.mfma(112, 40, 100); s.mfma(116, 44, 100)
        s.stamp("s4")
        s.pack(104, 108, [120, 122, 124, 126]); s.pack(112, 116, [121, 123, 125, 127])
        for r in range(4): a(f"ds_write_b64 v25, {V(120+2*r,2)} offset:{1280*r}")
        a(f"""
s_lshl_b32 s64, s71, 6
s_lshl_b32 s65, s3, 14
s_add_u32 s64, s64, s65            ; sigma*64 + 2w*8192
s_waitcnt lgkmcnt(0)""")
        s.stamp("s5")
        a("s_barrier")
        s.stamp("s6")
        a(f"""
ds_read_b128 v[96:99], v26
ds_read_b128 v[100:103], v26 offset:1280
s_waitcnt lgkmcnt(1)
""")
        s.mfma(104, 56, 96); s.mfma(108, 60, 96)
        a("s_waitcnt lgkmcnt(0)")
        s.mfma(112, 56, 100); s.mfma(116, 60, 100)
        if s.o.get("hp", 0) == 0: s.hint_send("z1", "s71", s.o.get("hw", 0))
        s.stamp("s7")
        for t, (dr, di, P) in enumerate(((104, 108, 120), (112, 116, 124))):
            s.pack(dr, di, [P, P+1, P+2, P+3])
            for r in range(4): a(f"v_cndmask_b32 v{P+r}, v{P+r}, v31, s[62:63]")
            for r in range(4):
                a(f"s_add_u32 s65, s64, {Z1 + t*8192 + r*131072}")
                a(f"buffer_store_dword v{P+r}, v24, s[32:35], s65 offen sc1")
        if s.o.get("hp", 0) == 1: s.hint_send("z1", "s71", s.o.get("hw", 0))
        s.stamp(3); s.stamp("s8")
        s.z1_gate_issue("r")
        a(f"""s_barrier
s_lshl_b32 s64, s3, 10
s_add_u32 s64, s64, 8192
s_add_u32 m0, s64, {CT}
buffer_load_dwordx4 v7, s[36:39], s64 offen lds""")
        if s.o.get("wg", 1) == 1: s.w_loads()
        if s.o.get("wg", 1) == 3: s.w_early("r")
        if wp == 4: s.w_prefetch(94)
        if wp == 6: s.w_sprefetch("r")
        if not s.o.get("bce"):
            a("s_setprio 0"); s.bc(); a("s_setprio BPRIO")
        a("s_branch L_col")
    def z1_gate_issue(s, tag):
        s.a(f"""
s_lshl_b32 s64, s66, 4
s_add_u32 s64, s64, s67
s_lshl_b32 s64, s64, 13
s_lshl_b32 s65, s3, 6
s_add_u32 s69, s64, s65
s_add_u32 s69, s69, {Z1}           ; Z1 + unit*8192 + w*64
""")
    def t_u(s):
        a = s.a
        a(f"L_T:\ns_cmp_ge_u32 s2, {NR0}\ns_cbranch_scc1 L_hz")
        s.hint_zero()
        a(f"""
v_and_b32 v10, 3, v3
v_lshrrev_b32 v11, 2, v3
v_cmp_eq_u32 s[56:57], 3, v10
v_mul_u32_u24 v120, 4160, v10
v_lshl_add_u32 v120, v11, 2, v120
s_lshl_b32 s64, s3, 6
v_add_u32 v120, s64, v120          ; LDS: 4160e + 4q + 64w
v_mul_u32_u24 v121, {PSTR}, v11
v_lshl_add_u32 v121, v10, 4, v121  ; q*PSTR + 16e
""")
        s.b0(); s.bw()
        if s.o.get("tce", 1): s.bc()
        wp = s.o.get("wp", 5)
        if s.o.get("wdt"): a(f"s_sleep {s.o['wdt']}")
        if wp < 2: s.w_prefetch(62)
        a(f"""
s_mul_i32 s64, s3, {16*PSTR}
s_lshl_b32 s65, s71, 6
s_add_u32 s64, s64, s65
s_add_u32 s64, s64, {UT}
s_add_u32 s65, s64, {128*PSTR}
""")
        s.stamp("p2")
        a(f"s_setprio BPRIO\ns_waitcnt vmcnt({2 if wp < 2 else 0})")
        s.stamp(2); s.stamp("p3")
        if s.o.get("stop"): a("s_branch L_exit")
        a("s_barrier")
        for k in range(2):
            for i in range(4): a(f"ds_read_b32 v{96+4*k+i}, v120 offset:{1040*i + 512*k}")
        s.nonce_get(31)
        a(f"""
s_waitcnt lgkmcnt(4)
v_cndmask_b32 v99, v99, v31, s[56:57]
buffer_store_dwordx4 v[96:99], v121, s[32:35], s64 offen sc1
s_cmp_ge_u32 s3, 6
s_cbranch_scc1 L_T_p2
s_waitcnt lgkmcnt(0)
v_cndmask_b32 v103, v103, v31, s[56:57]
buffer_store_dwordx4 v[100:103], v121, s[32:35], s65 offen sc1
L_T_p2:
""")
        s.stamp(3)
        a(f"""
s_cmp_lt_u32 s2, {NR0}
s_cbranch_scc1 L_Ty
""")
        s.z1_gate_issue("t")
        if wp in (3, 4): s.w_prefetch(62)
        if wp == 6: s.w_sprefetch("t")
        if wp == 5:
            a(f"""
s_barrier
s_sub_u32 s65, s3, 1
s_cmp_ge_u32 s65, 4
s_cbranch_scc1 L_nwp
s_sub_u32 s64, s67, 8
s_lshl_b32 s64, s64, 2
s_add_u32 s64, s64, s65
s_lshl_b32 s64, s64, 6
s_add_u32 s64, s64, s66
s_mul_i32 s64, s64, 450
v_lshlrev_b32 v8, 7, v1
v_min_u32 v8, 448, v8
v_mul_u32_u24 v9, {16*450}, v2
v_add_u32 v8, v8, v9
buffer_load_ushort v60, v8, s[48:51], s64 offen NTW
buffer_load_ushort v61, v8, s[52:55], s64 offen NTW
L_nwp:
""")
        if s.o.get("wg", 1) < 2:
            a("s_barrier")
            s.w_loads()
        if s.o.get("wg", 1) == 3:
            a("s_barrier")
            s.w_early("t")
        if not s.o.get("tce", 1):
            a("s_setprio 0"); s.bc(); a("s_setprio BPRIO")
    def column(s):
        a = s.a
        a("L_col:")
        s.stamp(4)
        a(f"s_cmp_eq_u32 s3, 0\ns_cbranch_scc1 L_nw0\ns_cmp_ge_u32 s2, {NT0}\ns_cbranch_scc1 L_nw0\ns_waitcnt vmcnt({8 if s.o.get('wg', 1) in (1, 3) else 0})\nL_nw0:")
        s.g_wait("z1", "s58")
        if s.o.get("zs") == 1: s.stamp(7)
        wg = s.o.get("wg", 1)
        a("s_barrier")
        if s.o.get("zs") == 1: s.stamp(1)
        def zl():
            for j in range(4): a(f"buffer_load_dword v{96+j}, v27, s[32:35], s69 offen offset:{512*j} sc1")
        zl()
        if wg == 2: s.w_loads()
        if wg == 3:
            a("s_cmp_lg_u32 s3, 0\ns_cbranch_scc1 L_wl0"); s.w_loads(); a("s_waitcnt vmcnt(8)\ns_branch L_wl1\nL_wl0:\ns_waitcnt vmcnt(0)\nL_wl1:")
        s.cread([(32, "F8RE"), (36, "F8IM"), (40, "G8RE"), (44, "G8IM")])
        if wg != 3: a(f"s_waitcnt vmcnt({8 if wg == 2 else 0})")
        if s.o.get("zs") == 1: s.stamp(2)
        a("s_branch L_chk_z1\nL_poll_z1:")
        zl()
        a("s_waitcnt vmcnt(0)\nL_chk_z1:")
        s.check("z1", [(96 + j, 27, "s69", 512 * j, "s[62:63]") for j in range(4)])
        s.stamp(5)
        s.mfma(104, 64, 96); s.mfma(108, 68, 96)
        s.pack(104, 108, [120, 121, 122, 123])
        for r in range(4): a(f"ds_write_b32 v28, v{120+r} offset:{768*r}")
        a("s_waitcnt lgkmcnt(0)\ns_barrier\nds_read_b128 v[96:99], v29\ns_waitcnt lgkmcnt(0)")
        s.mfma(104, 32, 96); s.mfma(108, 36, 96)
        a("s_waitcnt vmcnt(0)")
        s.twiddle(104, 108, 16, 20, [96, 97, 98, 99], True)
        s.mfma(104, 40, 96); s.mfma(108, 44, 96)
        s.pack(104, 108, [120, 121, 122, 123])
        a("ds_write_b128 v29, v[120:123]\ns_waitcnt lgkmcnt(0)\ns_barrier")
        for j in range(4): a(f"ds_read_b32 v{96+j}, v28 offset:{768*j}")

        a(f"""
s_lshl_b32 s64, s3, 14
s_lshl_b32 s65, s67, 10
s_add_u32 s64, s64, s65
s_lshl_b32 s65, s66, 6
s_add_u32 s64, s64, s65
s_waitcnt lgkmcnt(0)
""")
        s.mfma(104, 72, 96); s.mfma(108, 76, 96)
        if s.o.get("hp", 0) == 0: s.hint_send("z2", "s58", s.o.get("hw", 0))
        s.pack(104, 108, [120, 121, 122, 123])
        for r in range(4): a(f"v_cndmask_b32 v{120+r}, v{120+r}, v31, s[62:63]")
        for r in range(4):
            a(f"s_add_u32 s65, s64, {Z2 + r*131072}")
            a(f"buffer_store_dword v{120+r}, v24, s[32:35], s65 offen sc1")
        if s.o.get("hp", 0) == 1: s.hint_send("z2", "s58", s.o.get("hw", 0))
        s.stamp(6)
        a(f"s_cmp_ge_u32 s2, {NT0}\ns_cbranch_scc1 L_Ty")
    def row_inv(s):
        a = s.a
        a(f"""
s_lshl_b32 s64, s71, 14
s_lshl_b32 s65, s3, 11
s_add_u32 s69, s64, s65
s_add_u32 s69, s69, {Z2}
""")
        s.cread([(32, "R2BRE"), (36, "R2BIM"), (40, "TWIC"), (44, "TWIS"), (48, "R1B0"), (52, "R1B1")])
        a(f"""
v_cvt_f32_u32 v8, s71
v_fmamk_f32 v12, v8, {f2h(1/2048)}, v4
v_mul_f32 v13, v12, v5
""")
        s.matrix(13, 12, 80, 84, True)
        a(f"""
v_and_b32 v10, 1, v2
v_lshl_add_u32 v11, v10, 4, v1        ; n1 = c + 16(g&1)
v_lshlrev_b32 v30, 5, v11
v_lshrrev_b32 v12, 1, v2
v_lshl_add_u32 v30, v12, 4, v30
v_cmp_lt_u32 vcc, 27, v11
v_mov_b32 v12, 0x10000000
v_cndmask_b32 v30, v30, v12, vcc
v_lshlrev_b32 v5, 8, v2
v_lshl_add_u32 v5, v1, 2, v5
v_cmp_eq_u32 s[28:29], 3, v2
""")
        s.g_wait("z2", "s71")
        a("s_waitcnt lgkmcnt(0)\ns_barrier\nL_poll_z2:")
        for t in range(2):
            for j in range(4): a(f"buffer_load_dword v{96+4*t+j}, v5, s[32:35], s69 offen offset:{1024*t+64*j} sc1")
        a("s_waitcnt vmcnt(0)")
        s.check("z2", [(96 + 4 * t + j, 5, "s69", 1024 * t + 64 * j, "s[62:63]") for t in range(2) for j in range(4)])
        if s.o.get("zs") != 1: s.stamp(7)
        if s.o.get("sb"): a(f"s_sleep {s.o['sb']}")
        pk = s.o.get("pk2", True)
        s.mfma(104, 80, 96); s.mfma(108, 84, 96); s.mfma(112, 80, 100); s.mfma(116, 84, 100)
        s.pack(104, 108, [120, 122, 124, 126]); s.pack(112, 116, [121, 123, 125, 127])
        for r in range(4): a(f"ds_write_b64 v25, {V(120+2*r,2)} offset:{1280*r}")
        a(f"""
s_lshl_b32 s64, s3, 8
s_add_u32 s64, s64, s71
s_mul_i32 s64, s64, 1792
s_add_u32 s64, s64, 896
s_add_u32 s65, s64, {128*1792}
s_waitcnt lgkmcnt(0)
s_barrier
ds_read_b128 v[96:99], v26
ds_read_b128 v[100:103], v26 offset:1280
s_waitcnt lgkmcnt(1)
""")
        s.mfma(104, 96, 32); s.mfma(108, 96, 36)
        a("s_waitcnt lgkmcnt(0)")
        s.mfma(112, 100, 32); s.mfma(116, 100, 36)
        s.twiddle(104, 108, 40, 44, [96, 97, 98, 99], True, packed=pk)
        a("v_cndmask_b32_e64 v99, v99, 0, s[28:29]")
        s.mfma(104, 96, 48); s.mfma(108, 96, 52)
        s.twiddle(112, 116, 40, 44, [100, 101, 102, 103], True, packed=pk)
        a("v_cndmask_b32_e64 v103, v103, 0, s[28:29]")
        s.mfma(112, 100, 48); s.mfma(116, 100, 52)
        for t, (d0, d1, P, so) in enumerate(((104, 108, 120, "s64"), (112, 116, 124, "s65"))):
            a(f"""v_cvt_pk_bf16_f32 v{P}, v{d0}, v{d0+1}
v_cvt_pk_bf16_f32 v{P+1}, v{d0+2}, v{d0+3}
v_cvt_pk_bf16_f32 v{P+2}, v{d1}, v{d1+1}
v_cvt_pk_bf16_f32 v{P+3}, v{d1+2}, v{d1+3}
v_permlane16_swap_b32 v{P}, v{P+2}
v_permlane16_swap_b32 v{P+1}, v{P+3}
buffer_store_dwordx4 {V(P,4)}, v30, s[44:47], {so} offen OUTF""")
        s.stamp(8)
        a("s_branch L_exit")
    def t_y(s):
        a = s.a
        a(f"""
L_Ty:
s_setprio 0
s_mul_i32 s29, s71, 14336
s_add_u32 s29, s29, {YT}
s_mul_i32 s72, s59, 1792
s_movk_i32 s73, 840
s_cmp_eq_u32 s59, 1
s_cselect_b32 s59, s73, 448
s_mul_i32 s28, s28, 1792
v_mul_u32_u24 v8, {(1<<20)//56+1}, v0
v_lshrrev_b32 v8, 20, v8
v_mul_u32_u24 v9, 56, v8
v_sub_u32 v9, v0, v9               ; grp0
v_add_u32 v10, 512, v0
v_mul_u32_u24 v11, {(1<<20)//56+1}, v10
v_lshrrev_b32 v11, 20, v11         ; row1
v_mul_u32_u24 v12, 56, v11
v_sub_u32 v12, v10, v12            ; grp1
v_lshlrev_b32 v9, 4, v9
v_lshlrev_b32 v12, 4, v12
global_load_dwordx4 v[112:115], v9, s[16:17]
global_load_dwordx4 v[116:119], v12, s[16:17]
v_min_u32 v11, 15, v11
v_mul_u32_u24 v25, 912, v8
v_add_u32 v25, v25, v9
v_mul_u32_u24 v26, 912, v11
v_add_u32 v26, v26, v12
v_lshl_add_u32 v104, v8, 7, v25
v_lshl_add_u32 v108, v11, 7, v26
ds_read_b128 v[104:107], v104
ds_read_b128 v[108:111], v108
v_mul_u32_u24 v48, s72, v8
v_add_u32 v48, v48, v9
v_mul_u32_u24 v49, s72, v11
v_add_u32 v49, v49, v12
v_mov_b32 v13, 0x10000000
v_cmp_gt_u32 vcc, s59, v0
v_cndmask_b32 v48, v13, v48, vcc
v_cmp_gt_u32 vcc, s59, v10
v_cndmask_b32 v49, v13, v49, vcc
v_and_b32 v10, 3, v0
v_mul_u32_u24 v10, 3648, v10
v_and_b32 v11, 0xfffffffc, v0
v_add_u32 v50, v10, v11
v_lshlrev_b32 v30, 4, v0           ; tid*16
v_cmp_gt_u32 vcc, 384, v0
s_mov_b64 s[30:31], vcc
s_add_u32 s64, s29, 8192
v_mov_b32 v103, v31
s_waitcnt vmcnt(0) lgkmcnt(0)
""")
        for it in range(2):
            for j in range(4):
                u, d, o = 104 + 4*it + j, 112 + 4*it + j, 80 + 8*it + 2*j
                a(f"""v_lshlrev_b32 v8, 16, v{u}
v_lshlrev_b32 v9, 16, v{d}
v_and_b32 v10, 0xffff0000, v{u}
v_and_b32 v11, 0xffff0000, v{d}
v_mul_f32 v8, v8, v9
v_mul_f32 v10, v10, v11
v_cvt_pk_bf16_f32 v8, v8, v10
v_lshlrev_b32 v{o}, 16, v8
v_and_b32 v{o+1}, 0xffff0000, v8""")
        a("s_setprio BPRIO")
        s.g_wait("y", "s71")
        a(f"""
s_barrier
L_poll_y:
buffer_load_dwordx4 v[96:99], v30, s[32:35], s29 offen sc1
s_mov_b64 exec, s[30:31]
s_cbranch_execz L_y1
buffer_load_dwordx4 v[100:103], v30, s[32:35], s64 offen sc1
L_y1:
s_mov_b64 exec, -1
s_waitcnt vmcnt(0)
""")
        s.check("y", [(99, 30, "s29", 12, "s[56:57]"), (103, 30, "s64", 12, "s[56:57]")])
        if s.o.get("zs") != 1: s.stamp(7)
        for r in range(4): a(f"ds_write_b32 v50, v{96+r} offset:{912*r}")
        a("s_mov_b64 exec, s[30:31]")
        for r in range(4): a(f"ds_write_b32 v50, v{100+r} offset:{912*r+512}")
        a(f"""
s_mov_b64 exec, -1
s_waitcnt lgkmcnt(0)
s_barrier
ds_read_b128 v[96:99], v25
ds_read_b128 v[100:103], v26
""")
        for it in range(2):
            a(f"s_waitcnt lgkmcnt({1-it})")
            for j in range(4):
                y = 96 + 4*it + j
                a(f"v_lshlrev_b32 v{8+2*j}, 16, v{y}\nv_and_b32 v{9+2*j}, 0xffff0000, v{y}")
            for j in range(4): a(f"v_pk_add_f32 {V(8+2*j,2)}, {V(8+2*j,2)}, {V(80+8*it+2*j,2)}")
            for j in range(4): a(f"v_cvt_pk_bf16_f32 v{104+4*it+j}, v{8+2*j}, v{9+2*j}")
            a(f"buffer_store_dwordx4 {V(104+4*it,4)}, v{48+it}, s[44:47], s28 offen OUTF")
        a(f"""
s_add_u32 s64, s71, s3
s_cmp_lg_u32 s64, 0
s_cbranch_scc1 L_noep
s_mov_b32 s61, {EPOCH}
s_mov_b64 exec, 1
buffer_store_dword v31, off, s[32:35], s61
s_mov_b64 exec, -1
L_noep:""")
        s.stamp(8)
        a("s_branch L_exit")
    def cmuls(s, lst):
        for d, x, e, t in lst:
            s.a(f"v_pk_mul_f32 {V(t,2)}, {V(x,2)}, {V(e,2)} op_sel:[1,1] op_sel_hi:[1,0] neg_lo:[1,0]")
        for d, x, e, t in lst:
            s.a(f"v_pk_fma_f32 {V(d,2)}, {V(x,2)}, {V(e,2)}, {V(t,2)} op_sel_hi:[0,1,1]")
    def exp2_bf16(s, pairs):
        L_HI = 1.4426950216293335; L_LO = 1.4426950408889634 - L_HI
        for fmt in (f"v_mul_f32 v{{t}}, {f2h(L_HI)}, v{{x}}", "v_exp_f32 v{d}, v{t}", "v_fma_f32 v{u}, v{x}, s71, -v{t}",
                    f"v_fmac_f32 v{{u}}, {f2h(L_LO)}, v{{x}}", f"v_mul_f32 v{{u}}, {f2h(math.log(2))}, v{{u}}",
                    "v_fma_f32 v{d}, v{d}, v{u}, v{d}", "v_cvt_pk_bf16_f32 v{d}, v{d}, v{d}", "v_and_b32 v{d}, 0xffff0000, v{d}"):
            for d, x, t in pairs: s.a(fmt.format(d=d, x=x, t=t, u=t + 1))
    def a_path(s):
        a = s.a
        a("L_A:")
        if s.o.get("ap", 1): a(f"s_setprio {s.o.get('ap', 1)}")
        s.stamp(1); s.stamp("p1")
        s.a("v_lshrrev_b32 v32, 6, v0\nv_and_b32 v3, 63, v0\nv_readfirstlane_b32 s3, v32\nv_and_b32 v1, 15, v0\nv_bfe_u32 v2, v0, 4, 2\ns_mov_b32 s70, 0")
        s.srd(32, "0x10000000")
        s.nonce_issue(115)
        a(f"""
s_lshr_b32 s67, s3, 2              ; ch
s_and_b32 s68, s3, 3               ; q4
v_lshlrev_b32 v25, 4, v3           ; 16*lane
""")
        nl = 1
        def addr_pairs(fl, dst):
            for i in range(0, len(fl), 2):
                a(f"v_cvt_pk_bf16_f32 v{fl[i]}, v{fl[i]}, v{fl[min(i+1, len(fl)-1)]}")
            for i in range(0, len(fl), 2):
                a(f"v_lshlrev_b32 v{fl[i]}, 1, v{fl[i]}")
            for i in range(len(fl)):
                a(f"v_add_u32_sdwa v{dst[i]}, s64, v{fl[i & ~1]} dst_sel:DWORD dst_unused:UNUSED_PAD src0_sel:DWORD src1_sel:WORD_{i & 1}")
        def AG():
            a(f"""
s_mul_i32 s72, s67, {KCH}
s_add_u32 s72, s72, {KC}
s_sub_u32 s64, s72, {2*KB}
v_and_b32 v33, 255, v0
v_lshlrev_b32 v33, 3, v33
v_sub_u32 v33, 2047, v33
v_cvt_f32_i32 v40, v33             ; lag of element 0
""")
            for e in range(1, 11):
                a(f"v_add_f32 v{40+e}, {f2h(-float(e))}, v40")
            a(f"v_mov_b32 v34, {f2h(2064.0)}")
            for e in (8, 9, 10):
                a(f"v_cmp_gt_f32 vcc, 0, v{40+e}\nv_cndmask_b32 v{40+e}, v{40+e}, v34, vcc")
            addr_pairs(list(range(40, 51)), list(range(8, 19)))
            a("v_max_i32 v15, s72, v15")
        def AS():
            a(f"""
s_mul_i32 s72, s67, {KCH}
s_add_u32 s72, s72, {KC}
s_sub_u32 s64, s72, {2*KB}
""")
            a(f"""
v_lshrrev_b32 v34, 1, v2           ; g>>1
v_and_b32 v35, 1, v2               ; g&1
s_cmp_eq_u32 s68, 1
s_cbranch_scc1 L_sc1
s_cmp_eq_u32 s68, 2
s_cbranch_scc1 L_sc2
v_lshlrev_b32 v36, 7, v34
v_lshl_add_u32 v36, v35, 2, v36    ; 128(g>>1) + 4(g&1) + r
v_mov_b32 v37, 1
v_mov_b32 v38, 2
s_branch L_scd
L_sc1:
v_lshlrev_b32 v36, 7, v2
v_add_u32 v36, 256, v36            ; g<2: 256+128g + 2r
v_lshlrev_b32 v37, 8, v2           ; g>=2: 256g + 128(r>>1) + 4(r&1)
v_cmp_lt_u32 vcc, 1, v2
v_cndmask_b32 v36, v36, v37, vcc
v_cndmask_b32_e64 v37, 2, 4, vcc
v_mov_b32 v38, 128
v_cndmask_b32 v38, 4, v38, vcc
s_branch L_scd
L_sc2:
v_lshlrev_b32 v36, 9, v2
v_add_u32 v36, 1024, v36           ; 1024 + 128(4g+r)
v_mov_b32 v37, 128
v_mov_b32 v38, 256
L_scd:
v_lshl_add_u32 v36, v1, 3, v36
v_add_u32 v37, v36, v37
v_sub_u32 v39, v37, v36
v_add_u32 v38, v36, v38
v_add_u32 v39, v38, v39
v_mov_b32 v34, 2080
v_cmp_lt_u32 vcc, 2048, v36
v_cndmask_b32 v36, v36, v34, vcc
v_cmp_lt_u32 vcc, 2048, v37
v_cndmask_b32 v37, v37, v34, vcc
v_cmp_lt_u32 vcc, 2048, v38
v_cndmask_b32 v38, v38, v34, vcc
v_cmp_lt_u32 vcc, 2048, v39
v_cndmask_b32 v39, v39, v34, vcc
v_cvt_f32_u32 v40, v36
v_cvt_f32_u32 v41, v37
v_cvt_f32_u32 v42, v38
v_cvt_f32_u32 v43, v39
""")
            addr_pairs([40, 41, 42, 43], [20, 21, 22, 23])
            a("v_max_i32 v20, s72, v20")
        def AC():
            a(f"""
v_cmp_eq_u32 s[62:63], 15, v1
s_mul_i32 s69, s67, {CHK}
s_add_u32 s64, s69, {KCP}
v_and_b32 v26, 255, v0
v_lshl_add_u32 v26, v26, 4, s64
v_sub_u32 v34, 3, v1
v_and_b32 v34, 3, v34              ; s = (3-i)&3
v_mul_u32_u24 v35, 4158, v34       ; s*4160 - 2s
v_lshlrev_b32 v36, 4, v2
v_lshlrev_b32 v37, 1, v1
v_sub_u32 v36, v36, v37            ; 16g - 2i
s_bfe_u32 s73, s3, 0x10001
s_and_b32 s64, s3, 1
s_lshl_b32 s64, s64, 8              ; 64*4h
s_mul_i32 s65, s73, {CHK}
s_sub_u32 s65, s65, s64
s_add_u32 s72, s65, {KCP + 2*2031 - 192 - 512*7}
v_add3_u32 v27, v35, v36, s72      ; vA
v_lshlrev_b32 v28, 5, v1
v_lshl_add_u32 v28, v2, 4, v28
s_mul_i32 s72, s73, {CHU}
s_sub_u32 s72, s72, s64
s_add_u32 s72, s72, {UA + 448 - 192}
v_add_u32 v28, s72, v28            ; vB
v_lshlrev_b32 v29, 2, v3           ; 64g + 4c
s_lshl_b32 s64, s3, 7
s_add_u32 s64, s64, {UA + 480}
v_lshl_add_u32 v30, v3, 1, s64
s_lshl_b32 s64, s3, 2
v_add_u32 v34, s64, v2
v_lshlrev_b32 v34, 8, v34
v_lshl_add_u32 v34, v1, 5, v34
v_add_u32 v113, {UA + 480 + 30}, v34
v_cmp_gt_u32 vcc, 8, v1
s_cmp_lt_u32 s3, 4
s_cselect_b64 s[30:31], vcc, 0
s_cselect_b64 s[28:29], s[62:63], 0
s_mul_i32 s58, s66, {PSTR}
s_add_u32 s58, s58, {UT}
s_lshl_b32 s64, s3, 8
s_add_u32 s57, s58, s64
s_add_u32 s54, s57, 4096
s_add_u32 s55, s57, 8192
""")
        a(f"""
s_mul_i32 s59, s3, {WV}
v_mul_u32_u24 v24, {RS}, v1
v_lshl_add_u32 v24, v2, 4, v24
v_add_u32 v24, s59, v24
s_mov_b32 s71, {f2h(1.4426950216293335)}
s_mov_b32 m0, s59
""")
        def uloads():
            for i in range(5):
                so, of = (("s57", 0), ("s57", 2048), ("s54", 0), ("s54", 2048), ("s55", 0))[i]
                a(f"buffer_load_dword v{118+i}, v29, s[32:35], {so} offen offset:{of} sc1")
        early = s.o.get("ae", "SGC")
        for ch in early: {"S": AS, "G": AG, "C": AC}[ch]()
        s.stamp("p2")
        a(f"s_waitcnt vmcnt({nl})")
        s.stamp("p3")
        a("s_cmp_lg_u32 s3, 7\ns_cbranch_scc1 L_a_w\ns_waitcnt vmcnt(5)\nL_a_w:") if False else None
        if s.o.get("bal", 1): a(f"s_cmp_eq_u32 s67, 0\ns_cbranch_scc1 L_bal0\ns_setprio {s.o.get('ap', 1) + 1}\nL_bal0:")
        s.stamp(2); s.stamp("k0")
        if s.o.get("stop"): a("s_branch L_exit")
        s.exp2_bf16([(31, 114, 34), (32, 4, 36)])
        a(f"""
v_mul_f32 v33, v5, v31             ; zi
v_mul_f32 v32, v32, v31            ; -zr
v_mul_f32 v33, 0.15915494, v33     ; revolutions
v_mul_f32 v32, {f2h(-1.4426950408889634)}, v32     ; zr*log2e
v_add_f32 v31, v31, v31
v_mul_f32 v35, {f2h(8.0)}, v33
v_mul_f32 v37, {f2h(128.0)}, v33
v_mul_f32 v34, {f2h(8.0)}, v32
v_mul_f32 v36, {f2h(128.0)}, v32
v_fract_f32 v35, v35
v_fract_f32 v37, v37
v_fract_f32 v33, v33
v_exp_f32 v34, v34
v_cos_f32 v58, v35
v_sin_f32 v59, v35
v_exp_f32 v36, v36
v_cos_f32 v60, v37
v_sin_f32 v61, v37
v_exp_f32 v32, v32
v_cos_f32 v56, v33
v_sin_f32 v57, v33
v_mul_f32 v42, v6, v31
v_mul_f32 v43, v7, v31             ; G0 = 2C dt
v_mul_f32 v58, v58, v34
v_mul_f32_e64 v59, v59, -v34       ; conj E8
v_mul_f32 v60, v60, v36
v_mul_f32 v61, v61, v36
v_mul_f32 v56, v56, v32
v_mul_f32 v57, v57, v32
""")
        s.stamp("k1")
        E1, E8, E128, E2, E4 = 56, 58, 60, 38, 40
        pkr = [54, 55, 62, 63, 4, 5, 6, 7]
        st = {"k": 0}
        def emit(lst):
            ps = []
            for x, buf, row in lst:
                p = pkr[st["k"] % 8]; st["k"] += 1; ps.append(p)
                a(f"v_cvt_pk_bf16_f32 v{p}, v{x}, v{x+1}")
            for p, (x, buf, row) in zip(ps, lst):
                a(f"ds_write_addtid_b32 v{p} offset:{buf*BUF + row*RS}")
        X0, X1, XV, XW, T0, T1, T2, T3 = 42, 44, 46, 32, 48, 50, 52, 108
        GA, GB = 34, 36
        E16 = 110
        a(f"v_mov_b32 v7, 0x3f80\nds_write_addtid_b32 v7 offset:0")
        s.cmuls([(X1, X0, E128, T1), (E16, E8, E8, T2)])
        emit([(E8, 0, 1), (X0, 1, 0)])
        s.cmuls([(GA, X1, E128, T0), (XW, E16, E8, T3), (XV, E16, E16, T2)])
        emit([(X1, 1, 8), (E16, 0, 2), (XW, 0, 3), (XV, 0, 4)])
        for j in range(1, 8):
            l = [(X0, X0, E1, T0), (X1, X1, E1, T1)]
            e = [(X0, 1, j), (X1, 1, 8 + j)]
            if j <= 6: l.append((XW, XW, E16, T3)); e.append((XW, 0, 3 + 2*j))
            if j <= 5: l.append((XV, XV, E16, T2)); e.append((XV, 0, 4 + 2*j))
            if j == 6: l.append((E2, E1, E1, T2))
            if j == 7: l += [(GB, GA, E128, T2), (E4, E2, E2, T3)]
            s.cmuls(l); emit(e)
        s.stamp("k2")
        if s.o.get("bal", 1): a(f"s_setprio {s.o.get('ap', 1)}")
        a("s_waitcnt lgkmcnt(0)")
        s.stamp("k3")
        for ks in range(4): a(f"ds_read_b128 {V(64+4*ks,4)}, v24 offset:{64*ks}")
        for ks in range(4): a(f"ds_read_b128 {V(80+4*ks,4)}, v24 offset:{BUF+64*ks}")
        s.cmuls([(X0, GA, E2, T0), (X1, GB, E2, T1), (XV, GB, E128, T2), (E16, E128, E128, T3)])
        a("s_waitcnt lgkmcnt(4)")
        emit([(GA, 0, 0), (GB, 0, 4), (X0, 0, 1), (X1, 0, 5), (XV, 0, 8)])
        s.cmuls([(X0, X0, E2, T0), (X1, X1, E2, T1), (XW, XV, E128, T2), (GA, XV, E4, T3)])
        a("s_waitcnt lgkmcnt(5)")
        for ks in range(4): s.mfma(96, 80+4*ks, 64+4*ks, None if ks == 0 else 96)
        emit([(X0, 0, 2), (X1, 0, 6), (XW, 0, 10), (GA, 0, 9)])
        s.stamp("k4")
        ug = False
        a("s_waitcnt vmcnt(0)")
        s.nonce_get(115)
        if ug: s.hint_issue("u", "s66", 123, wave=7)
        s.cmuls([(X0, X0, E2, T0), (X1, X1, E2, T1), (XV, XV, E16, T2), (GA, XW, E4, T3)])
        emit([(X0, 0, 3), (X1, 0, 7), (XV, 0, 12), (GA, 0, 11)])
        s.cmuls([(XW, XW, E16, T0), (GA, XV, E4, T1), (XV, XV, E16, T2)])
        emit([(XW, 0, 14), (GA, 0, 13), (XV, 1, 0)])
        s.cmuls([(GB, XW, E4, T0), (XW, XW, E16, T1), (XV, XV, E16, T2)])
        emit([(GB, 0, 15), (XW, 1, 1), (XV, 1, 2)])
        s.stamp("k5")
        if s.o.get("ul", 1) == 2: uloads()
        a("s_waitcnt lgkmcnt(2)")
        for ks in range(4): a(f"ds_read_b128 {V(80+4*ks,4)}, v24 offset:{64*ks}")
        for h in range(3):
            s.cmuls([(XW, XW, E16, T0), (XV, XV, E16, T1)])
            emit([(XW, 1, 3 + 2*h), (XV, 1, 4 + 2*h)])
            if h == 1:
                a("s_waitcnt lgkmcnt(4)")
                for ks in range(4): s.mfma(100, 80+4*ks, 64+4*ks, None if ks == 0 else 100)
        a("s_waitcnt lgkmcnt(0)")
        for ks in range(4): a(f"ds_read_b128 {V(80+4*ks,4)}, v24 offset:{BUF+64*ks}")
        s.stamp("k6")
        if s.o.get("ul", 1) == 3: uloads()
        a("v_add_u32 v32, s59, v25")
        a(f"ds_write_b128 v32, v[96:99]\nds_write_b128 v32, v[100:103] offset:1024")
        a("s_waitcnt lgkmcnt(2)")
        for ks in range(4): s.mfma(104, 80+4*ks, 64+4*ks, None if ks == 0 else 104)
        a(f"ds_write_b128 v32, v[104:107] offset:2048")
        s.stamp(8); s.stamp("k7"); s.stamp("p4")
        for ch in "SC":
            if ch not in early: {"S": AS, "C": AC}[ch]()
        a("s_waitcnt lgkmcnt(0)\ns_barrier")
        s.stamp(3); s.stamp("k8"); s.stamp("e0")
        if s.o.get("ul", 1) == 0: uloads()
        a(f"""
s_cmp_eq_u32 s68, 3
s_cbranch_scc1 L_zp
s_lshl_b32 s72, s68, 10
s_mul_i32 s73, s67, {4*WV}
s_add_u32 s72, s72, s73
v_add_u32 v32, s72, v25
ds_read_b128 v[96:99], v32
ds_read_b128 v[100:103], v32 offset:{WV}
ds_read_b128 v[104:107], v32 offset:{2*WV}
ds_read_b128 v[80:83], v32 offset:{3*WV}
s_waitcnt lgkmcnt(2)
v_pk_add_f32 v[96:97], v[96:97], v[100:101]
v_pk_add_f32 v[98:99], v[98:99], v[102:103]
s_waitcnt lgkmcnt(0)
v_pk_add_f32 v[104:105], v[104:105], v[80:81]
v_pk_add_f32 v[106:107], v[106:107], v[82:83]
v_pk_add_f32 v[96:97], v[96:97], v[104:105]
v_pk_add_f32 v[98:99], v[98:99], v[106:107]
v_cvt_pk_bf16_f32 v96, v96, v97
v_cvt_pk_bf16_f32 v98, v98, v99
ds_write_b16 v20, v96
ds_write_b16_d16_hi v21, v96
ds_write_b16 v22, v98
ds_write_b16_d16_hi v23, v98
s_branch L_zpd
L_zp:
v_mov_b32 v96, 0
v_mov_b32 v97, 0
v_mov_b32 v98, 0
v_mov_b32 v99, 0
s_mul_i32 s72, s67, {KCH}
s_add_u32 s72, s72, {KC + 2*(0x4501 - KB)}
v_mov_b32 v33, s72
ds_write_b16 v33, v96
s_mul_i32 s72, s67, {CHU}
s_add_u32 s72, s72, {UA}
v_add_u32 v33, s72, v25
s_mov_b64 exec, 0x3fffffff
ds_write_b128 v33, v[96:99]          ; zero pad in front of u
s_mov_b64 exec, -1
v_lshrrev_b32 v64, 1, v3
v_mul_u32_u24 v64, 4160, v64
v_and_b32 v65, 1, v3
v_lshl_add_u32 v64, v65, 4, v64
s_add_u32 s72, s69, {KCP + 4096}
v_add_u32 v64, s72, v64""")
        if ug: s.hint_wait("u", 123, wave=7)
        a("L_zpd:")
        if s.o.get("ul", 1) == 1 and not ug: uloads()
        if "G" not in early: AG()
        a("s_waitcnt lgkmcnt(0)")
        s.stamp("e1")
        a("s_barrier")
        s.stamp("e2")
        if ug: uloads()
        for e in range(11): a(f"ds_read_u16 v{32+e}, v{8+e}")
        a(f"""
s_cmp_lg_u32 s68, 3
s_cbranch_scc1 L_nzt
s_mov_b64 exec, 0xff
ds_write_b128 v64, v[96:99]
s_mov_b64 exec, -1
L_nzt:
s_waitcnt lgkmcnt(0)
""")
        for cp in range(4):
            for j in range(4):
                x = cp + 2*j
                a(f"v_lshl_or_b32 v{48+4*cp+j}, v{33+x}, 16, v{32+x}")
            a(f"ds_write_b128 v26, {V(48+4*cp,4)} offset:{4160*cp}")
        s.stamp("e3")
        a("s_branch L_chk_u\nL_poll_u:")
        uloads()
        a("L_chk_u:\ns_waitcnt vmcnt(0)")
        s.check("u", [(118, 29, "s57", 0, "s[62:63]"), (119, 29, "s57", 2048, "s[62:63]"), (120, 29, "s54", 0, "s[62:63]"),
                      (121, 29, "s54", 2048, "s[62:63]"), (122, 29, "s55", 0, "s[28:29]")])
        s.stamp(4); s.stamp("e4")
        a("s_andn2_b64 exec, -1, s[62:63]")
        for i in range(5):
            if i == 4: a("s_mov_b64 exec, s[30:31]")
            ad, of = (30, 1024*i) if i < 4 else (113, 0)
            a(f"ds_write_b16 v{ad}, v{118+i} offset:{of}")
            a(f"ds_write_b16_d16_hi v{ad}, v{118+i} offset:{of + CHU}")
        a("s_mov_b64 exec, -1\ns_waitcnt lgkmcnt(0)\ns_barrier")
        fill_w = f"""v_lshrrev_b32 v4, 1, v1
v_and_b32 v4, 3, v4
v_xor_b32 v4, v4, v2
v_lshlrev_b32 v4, 4, v4
v_lshl_add_u32 v4, v1, 6, v4
s_lshl_b32 s64, s3, 13
s_add_u32 s65, s64, {XP[1] - 8192}
s_cmp_eq_u32 s3, 0
s_cselect_b32 s64, 0, s65
v_add_u32 v4, s64, v4""".split("\n")
        fill_r = f"""v_lshrrev_b32 v5, 3, v3
v_xor_b32 v5, v5, v3
v_and_b32 v5, 3, v5
v_lshlrev_b32 v5, 4, v5
v_and_b32 v6, 0x3c, v3
v_lshl_add_u32 v5, v6, 4, v5
s_lshl_b32 s64, s3, 10
v_add_u32 v5, s64, v5
v_lshrrev_b32 v6, 2, v3
v_mul_u32_u24 v6, 14336, v6
v_and_b32 v7, 3, v3
v_lshl_add_u32 v6, v7, 4, v6
s_mul_i32 s64, s3, {16*14336}
s_lshl_b32 s65, s66, 6
s_add_u32 s64, s64, s65
s_add_u32 s64, s64, {YT}
v_cmp_eq_u32 s[56:57], 3, v7
v_mov_b32 v11, s60
v_and_b32 v9, 7, v1
v_lshl_add_u32 v9, v2, 3, v9
v_lshlrev_b32 v9, 4, v9
v_add_u32 v9, 12, v9
v_mul_u32_u24 v10, 14336, v2
v_lshl_add_u32 v10, v1, 2, v10
s_mul_i32 s72, s3, {2*14336}
s_add_u32 s65, s65, s72
s_add_u32 s65, s65, {YT + 128*14336}""".split("\n")
        if s.o.get("sa"): a(f"s_sleep {s.o['sa']}")
        s.stamp(5); s.stamp("e5")
        a("s_cmp_lt_u32 s3, 4\ns_cbranch_scc1 L_conv")
        a("\n".join(fill_r))
        s.stamp(6); s.stamp("e6")
        a("s_branch L_tC\nL_conv:")
        filler = fill_w + fill_r
        free = [64 + 4*i for i in range(16)]
        Areg, Breg = {}, {}
        pend = []
        q = []
        exports = []
        NC = 4
        def assign(cl, d):
            off = 64 * (NC - 1 - cl)
            ra = free.pop(0); rb = free.pop(0)
            Areg[(cl, d)] = ra; Breg[(cl, d)] = rb
            q.append(((cl, d), f"ds_read_b128 {V(rb,4)}, v28 offset:{512*d + off}"))
            q.append(((cl, d), f"ds_read_b64 {V(ra,2)}, v27 offset:{512*(7-d) + off}"))
            q.append(((cl, d), f"ds_read_b64 {V(ra+2,2)}, v27 offset:{512*(7-d) + off + 8}"))
        def issue1():
            k, t = q.pop(0); a(t); pend.append(k)
        def wait(cl, d):
            while any(k == (cl, d) for k, _ in q): issue1()
            if (cl, d) in pend:
                idx = max(i for i, k in enumerate(pend) if k == (cl, d))
                a(f"s_waitcnt lgkmcnt({len(pend) - 1 - idx})")
                del pend[:idx + 1]
        first = set(); n = [0]
        left = {T: (T + 1) * NC for T in range(8)}
        def export(T):
            a(f"ds_write_b128 v4, {V(32+4*T,4)} offset:{1024*T}"); pend.append("x")
        def mm(cl, p, qq):
            T = p + qq
            s.mfma(32 + 4*T, Areg[(cl, p)], Breg[(cl, qq)], None if T not in first else 32 + 4*T)
            first.add(T); n[0] += 1
            left[T] -= 1
            if left[T] == 0: exports.append((n[0] + 5, T))
            if q and len(pend) < 15: issue1()
            elif exports and exports[0][0] <= n[0] and len(pend) < 15: export(exports.pop(0)[1])
            elif filler:
                a(filler.pop(0))
                while filler and filler[0].startswith("s_"): a(filler.pop(0))
        todo = [(cl, d) for cl in range(NC) for d in range(8)]
        def refill():
            while todo and len(free) >= 2: assign(*todo.pop(0))
        refill()
        for _ in range(9): issue1()
        for cl in range(NC):
            for d in range(8):
                wait(cl, d)
                prs = [(d, j) for j in range(d) if d + j <= 7] + [(j, d) for j in range(d) if d + j <= 7]
                if 2*d <= 7: prs.append((d, d))
                if cl == NC - 1: prs.sort(key=lambda x: x[0] + x[1])
                for p, qq in prs: mm(cl, p, qq)
                if d >= 4:
                    for k in (7 - d, d):
                        free.append(Areg[(cl, k)]); free.append(Breg[(cl, k)])
                    refill()
        assert not todo and not q and not filler
        s.stamp(6); s.stamp("e6")
        for _, T in exports: export(T)
        a("L_tC:\ns_waitcnt lgkmcnt(0)")
        s.stamp("e7")
        a("s_barrier")
        s.stamp("e8")
        for qq in range(4): a(f"ds_read_b128 {V(64+8*qq,4)}, v5 offset:{XP[qq]}")

        def add4(d, x):
            a(f"v_pk_add_f32 {V(d,2)}, {V(d,2)}, {V(x,2)}\nv_pk_add_f32 {V(d+2,2)}, {V(d+2,2)}, {V(x+2,2)}")
        a("s_waitcnt lgkmcnt(2)"); add4(64, 72)
        a("s_waitcnt lgkmcnt(0)"); add4(80, 88)
        for r in range(4): a(f"v_cvt_pk_bf16_f32 v{96+r}, v{64+r}, v{80+r}")
        a("""ds_bpermute_b32 v100, v9, v99
v_cndmask_b32 v99, v99, v11, s[56:57]
buffer_store_dwordx4 v[96:99], v6, s[32:35], s64 offen sc1
s_waitcnt lgkmcnt(0)""")
        s.hint_send("y", "s66", 0)
        a("""v_cndmask_b32 v100, v100, v11, s[62:63]
s_mov_b32 exec_hi, 0
buffer_store_dword v100, v10, s[32:35], s65 offen sc1
s_mov_b64 exec, -1""")
        s.stamp(7); s.stamp("e9")
    def table(s):
        T = tables.b_tables()
        buf = np.zeros(TB_SIZE // 4, np.uint32)
        for n, off in TB.items(): buf[off // 4: off // 4 + 256] = T[n].reshape(-1)
        out = [".p2align 8", ".type L_tbl,@object", "L_tbl:"]
        for i in range(0, len(buf), 8):
            out.append(".long " + ",".join(("0x%x" % x) if x else "0" for x in buf[i:i + 8]))
        out.append("L_tbl_end:")
        out.append(f".size L_tbl, {TB_SIZE}")
        return "\n".join(out)
    def build(s):
        a = s.a
        hdr = open("concat_heads__ssm_conv_s4d__spectral_gfnet__prompt.s.ref").read().split("; Override launch")[0]
        a.raw(hdr + f"; @launch grid=({NWG},1,1) block=(512,1,1) lds={LDS_BYTES}")
        a.raw(f'.amdgcn_target "amdgcn-amd-amdhsa--gfx950"\n.text\n.globl {KNAME}\n.p2align 8\n.type {KNAME},@function\n{KNAME}:')
        s.entry(); s.row_s1(); s.t_u(); s.column(); s.row_inv(); s.t_y(); s.a_path()
        a("L_exit:")
        s.stamp(9)
        s.stamp_flush()
        a("L_end:\ns_endpgm")
        a.raw(s.table())
        a.raw(f""".section .rodata,"a"
.p2align 6
.amdhsa_kernel {KNAME}
  .amdhsa_next_free_vgpr 128
  .amdhsa_next_free_sgpr 102
  .amdhsa_accum_offset 128
  .amdhsa_group_segment_fixed_size 0
  .amdhsa_kernarg_size 104
  .amdhsa_user_sgpr_count 2
  .amdhsa_user_sgpr_kernarg_segment_ptr 1
  .amdhsa_system_sgpr_workgroup_id_x 1
.end_amdhsa_kernel""")
        return a.text().replace("BPRIO", str(s.o.get("bp", 2))).replace("    REMAP\n", {0: "", 1: "    s_add_u32 s64, s2, 272\n    s_sub_u32 s2, s2, 224\n    s_cselect_b32 s2, s64, s2\n",
            2: "    s_add_u32 s64, s2, 128\n    s_sub_u32 s65, s2, 352\n    s_cmp_lt_u32 s2, 16\n    s_cselect_b32 s64, s2, s64\n    s_cmp_ge_u32 s2, 368\n    s_cselect_b32 s2, s65, s64\n"}[s.o.get("ord", 0)]).replace("    AONLY\n", "    s_endpgm\n" if s.o.get("aonly") else "").replace(" NTC", " nt" if s.o.get("ntc") else "").replace(" NTE", " nt" if s.o.get("nte") else "").replace(" NTP", " nt" if s.o.get("ntp") else "").replace(" NTF", " nt" if s.o.get("nt", 0) else "").replace(" NTW", " nt" if s.o.get("ntw", 0) else "").replace(" NTG", " nt" if s.o.get("ntg", 0) else "").replace(" OUTF", (" " + s.o["outf"]) if s.o.get("outf") else "")
if __name__ == "__main__":
    out = sys.argv[1]; stamps = len(sys.argv) > 2 and sys.argv[2] == "1"
    opts = json.loads(sys.argv[3]) if len(sys.argv) > 3 else {}
    g = G(stamps, opts); t = g.build(); open(out, "w").write(t)
    print("lines", t.count("\n"), "bytes", len(t), "nops", g.a.nops)
```

```python
import sys, math, json
import numpy as np
from asmlib import Asm, f2h
import tables
KNAME = "concat_heads__ssm_conv_s4d__spectral_gfnet__prompt_kernel"
Z1, Z2, UT, YT, STAMP = 0x010000, 0x220000, 0x430000, 0x640000, 0x1000000
EPOCH = 0x630000
PSTR = 9216
NR0, NT0, NA0, NWG = 16, 144, 272, 496
LDS_BYTES = 78336
SPIN_MAX = 200000
WV, BUF, RS = 9216, 4608, 288
KC, KCH = 3072, 3072
KB = 0x3F7F
ZS = 0x4502 - KB
KCP, CHK, UA, CHU = 9216, 16640, 69120, 4608
XP = [0, 43008, 51200, 59392]
TB = {n: 1024 * i for i, n in enumerate(["COS28", "NSIN28", "R2RE", "R2IM", "TWRC", "TWRS", "F8RE", "F8IM", "G8RE", "G8IM",
                                          "R2BRE", "R2BIM", "TWIC", "TWIS", "R1B0", "R1B1"])}
TB_SIZE = 16384
T1, EB, CT = 16896, 37376, 49664

def V(a, n=1): return f"v{a}" if n == 1 else f"v[{a}:{a+n-1}]"
def S(a, n=1): return f"s{a}" if n == 1 else f"s[{a}:{a+n-1}]"

class G:
    def __init__(s, stamps=False, opts=None):
        s.a = Asm(); s.stamps = stamps; s.o = opts or {}
    def stamp(s, i):
        if not s.stamps: return
        prof = s.o.get("prof")
        if prof:
            if isinstance(i, str):
                if i[:len(prof)] == prof: s.a(f"s_memtime {S(80+2*int(i[len(prof):]),2)}")
            return
        if isinstance(i, int): s.a(f"s_memrealtime {S(80+2*i,2)}")
    def stamp_flush(s):
        if not s.stamps: return
        a = s.a
        a("s_waitcnt lgkmcnt(0) vmcnt(0)")
        for i in range(10): a(f"v_mov_b32 v{4+i}, s{80+2*i}")
        a(f"""v_mov_b32 v14, 0
v_mov_b32 v15, s70
v_mov_b32 v2, 0
s_lshl_b32 s64, s2, 3
s_add_u32 s64, s64, s3
s_lshl_b32 s64, s64, 6
s_add_u32 s64, s64, {STAMP}
buffer_store_dwordx4 v[4:7], v2, s[32:35], s64 offen
buffer_store_dwordx4 v[8:11], v2, s[32:35], s64 offen offset:16
buffer_store_dwordx4 v[12:15], v2, s[32:35], s64 offen offset:32
s_waitcnt vmcnt(0)""")
    def srd(s, base, size):
        s.a(f"s_mov_b32 s{base+2}, {size}\ns_mov_b32 s{base+3}, 0x20000")
    def mfma(s, d, A, B, c=None):
        s.a(f"v_mfma_f32_16x16x32_bf16 {V(d,4)}, {V(A,4)}, {V(B,4)}, {'0' if c is None else V(c,4)}")
    def twiddle(s, dre, dim, co, si, P, conj, T=8, packed=False):
        a = s.a
        if packed:
            for h in (0, 2):
                a(f"v_pk_mul_f32 {V(T+h,2)}, {V(dim+h,2)}, {V(si+h,2)}")
                a(f"v_pk_mul_f32 {V(T+4+h,2)}, {V(dre+h,2)}, {V(si+h,2)}")
            for h in (0, 2):
                n = " neg_lo:[0,0,1] neg_hi:[0,0,1]"
                a(f"v_pk_fma_f32 {V(dre+h,2)}, {V(dre+h,2)}, {V(co+h,2)}, {V(T+h,2)}{n if conj else ''}")
                a(f"v_pk_fma_f32 {V(dim+h,2)}, {V(dim+h,2)}, {V(co+h,2)}, {V(T+4+h,2)}{'' if conj else n}")
        else:
            for r in range(4):
                a(f"v_mul_f32 v{T+r}, v{dim+r}, v{si+r}")
                a(f"v_mul_f32 v{T+4+r}, v{dre+r}, v{si+r}")
            for r in range(4):
                a(f"v_fma_f32 v{dre+r}, v{dre+r}, v{co+r}, {'-' if conj else ''}v{T+r}")
                a(f"v_fma_f32 v{dim+r}, v{dim+r}, v{co+r}, {'' if conj else '-'}v{T+4+r}")
        s.pack(dre, dim, P)
    def pack(s, dre, dim, P):
        for r in range(4): s.a(f"v_cvt_pk_bf16_f32 v{P[r]}, v{dre+r}, v{dim+r}")
    def sincos4(s, a0, step, co, si, T=8):
        a = s.a
        a(f"v_add_f32 v{T+1}, v{a0}, v{step}")
        a(f"v_fma_f32 v{T+2}, v{step}, 2.0, v{a0}")
        a(f"v_add_f32 v{T+3}, v{T+2}, v{step}")
        regs = [a0, T+1, T+2, T+3]
        for r in range(4):
            a(f"v_cos_f32 v{co+r}, v{regs[r]}")
            a(f"v_sin_f32 v{si+r}, v{regs[r]}")
    def tbl_srd(s):
        s.a("s_getpc_b64 s[36:37]")
        n = s.a.uid()
        s.a.raw(f"L_pc{n}:")
        s.a(f"s_add_u32 s36, s36, L_tbl-L_pc{n}\ns_addc_u32 s37, s37, 0")
        s.srd(36, TB_SIZE)
    def tload(s, items, vaddr, sbase=None):
        cur = None
        for r, off in items:
            b = off & ~4095
            if b != cur:
                if sbase is None: s.a(f"s_mov_b32 s61, {b}")
                else: s.a(f"s_add_u32 s61, {sbase}, {b}")
                cur = b
            s.a(f"buffer_load_dwordx4 {V(r,4)}, v{vaddr}, s[36:39], s61 offen offset:{off - b}")
        return len(items)
    def nonce_issue(s, vn):
        s.a(f"s_mov_b32 s61, {EPOCH}\nbuffer_load_dword v{vn}, off, s[32:35], s61")
    def nonce_get(s, vn):
        s.a(f"v_add_u32 v{vn}, 1, v{vn}\nv_readfirstlane_b32 s60, v{vn}")
    def spin(s, tag, sleep):
        s.a(f"""s_add_u32 s70, s70, 1
s_cmp_gt_u32 s70, {SPIN_MAX}
s_cbranch_scc1 L_exit
s_sleep {sleep}
s_branch L_poll_{tag}""")
    def gate_issue(s, tag, K, stride, off, sreg, vt, wave=0):
        s.a(f"""
v_mul_u32_u24 v{vt+1}, {stride}, v3
s_cmp_lg_u32 s3, {wave}
s_cbranch_scc1 L_gi_{tag}
v_mov_b32 v{vt}, 0
s_mov_b64 exec, {hex((1<<K)-1)}
buffer_atomic_or v{vt}, v{vt+1}, s[32:35], {sreg} offen offset:{off} sc0 sc1
s_mov_b64 exec, -1
L_gi_{tag}:""")
    def gate_wait(s, tag, K, stride, off, sreg, vt, wave=0, sentinel=False):
        a = s.a
        a(f"""
s_cmp_lg_u32 s3, {wave}
s_cbranch_scc1 L_gd_{tag}
s_mov_b64 exec, {hex((1<<K)-1)}
s_branch L_gc_{tag}
L_poll_g{tag}:
v_mov_b32 v{vt}, 0
buffer_atomic_or v{vt}, v{vt+1}, s[32:35], {sreg} offen offset:{off} sc0 sc1
L_gc_{tag}:
s_waitcnt vmcnt(0)
v_cmp_{'eq' if sentinel else 'ne'}_u32 vcc, {'-1' if sentinel else 's60'}, v{vt}
s_cbranch_vccz L_gok_{tag}""")
        s.spin("g" + tag, s.o.get("gsl", 1))
        a(f"""L_gok_{tag}:
s_mov_b64 exec, -1
L_gd_{tag}:""")
    def tagcheck(s, regs, tag, sleep, mask="s[62:63]"):
        a = s.a
        a(f"v_cmp_ne_u32 vcc, s60, v{regs[0]}")
        for i, r in enumerate(regs[1:]):
            a(f"v_cmp_ne_u32 {S(72+2*(i%4),2)}, s60, v{r}")
            if i % 4 == 3 or i == len(regs) - 2:
                for j in range(i % 4 + 1): a(f"s_or_b64 vcc, vcc, {S(72+2*j,2)}")
        a(f"s_and_b64 vcc, vcc, {mask}\ns_cbranch_scc0 L_got_{tag}")
        s.spin(tag, sleep)
        a(f"L_got_{tag}:")
    def lanes(s):
        s.a("""v_lshrrev_b32 v4, 6, v0
v_and_b32 v3, 63, v0
v_readfirstlane_b32 s3, v4
v_and_b32 v1, 15, v0
v_bfe_u32 v2, v0, 4, 2
s_mov_b32 s70, 0""")
    def prefetch(s, tag):
        if s.o.get("nopf"): return
        s.a(f"""
s_cmp_lg_u32 s3, 7
s_cbranch_scc1 L_nopf_{tag}
s_lshr_b32 s64, s2, 3
s_and_b32 s64, s64, 1
s_lshl_b32 s64, s64, 13
s_sub_u32 s74, s36, L_tbl-{KNAME}
s_subb_u32 s75, s37, 0
v_lshl_add_u32 v124, v3, 7, s64
v_min_u32 v124, L_tbl-{KNAME}-4, v124
global_load_dword v124, v124, s[74:75]
L_nopf_{tag}:""")

    def entry(s):
        a = s.a
        s.stamp(0); s.stamp("p0")
        a(f"""
s_load_dwordx16 s[4:19], s[0:1], 0
s_load_dwordx8 s[20:27], s[0:1], 64
s_load_dwordx2 s[32:33], s[0:1], 96
s_getpc_b64 s[36:37]
L_pc:
v_cmp_gt_u32 vcc, 8, v0
s_bfe_u32 s66, s2, 0x40003
s_lshl_b32 s66, s66, 10
s_and_saveexec_b64 s[64:65], vcc
s_cbranch_execz L_nopf
v_lshl_add_u32 v124, v0, 7, s66
global_load_dword v124, v124, s[36:37] NTP    ; pull 1 KiB of the code into this XCD's L2 (speed only)
L_nopf:
s_mov_b64 exec, -1
s_cmp_lt_u32 s2, {NA0}
s_cbranch_scc1 L_B
s_cmp_ge_u32 s2, {NWG}
s_cbranch_scc1 L_end
s_sub_u32 s66, s2, {NA0}           ; pair
s_lshl_b32 s64, s66, 10
v_lshl_add_u32 v24, v0, 1, s64
s_lshl_b32 s64, s66, 1
v_lshrrev_b32 v25, 8, v0
v_add_lshl_u32 v25, v25, s64, 1
s_waitcnt lgkmcnt(0)
global_load_short_d16_hi v114, v25, s[14:15] NTF
global_load_short_d16_hi v4, v24, s[6:7] NTF
global_load_short_d16_hi v5, v24, s[8:9] NTF
global_load_short_d16_hi v6, v24, s[10:11] NTF
global_load_short_d16_hi v7, v24, s[12:13] NTF
s_branch L_A
L_B:
AONLY
v_lshrrev_b32 v4, 6, v0
v_and_b32 v3, 63, v0
v_readfirstlane_b32 s3, v4
v_lshlrev_b32 v7, 4, v3            ; lane*16
s_sub_u32 s58, s2, {NR0}
s_add_u32 s36, s36, L_tbl-L_pc
s_addc_u32 s37, s37, 0
s_mov_b32 s38, {TB_SIZE}
s_mov_b32 s39, 0x20000
s_mov_b32 s42, 1835008
s_mov_b32 s43, 0x20000
s_cmp_lt_u32 s58, 128
s_cbranch_scc0 L_pT
s_mov_b32 s71, s58
s_lshl_b32 s64, s3, 8
s_add_u32 s64, s64, s58
s_mov_b32 s66, {128*896}
s_lshl_b32 s65, s3, 11
s_movk_i32 s67, 1024
s_lshl_b32 s68, s3, 10
s_waitcnt lgkmcnt(0)
s_mov_b64 s[40:41], s[18:19]
s_branch L_pC
L_pT:
s_sub_u32 s71, s2, {NT0}
s_lshl_b32 s28, s71, 4
s_lshl_b32 s64, s2, 7
s_add_u32 s64, s64, 15
s_add_u32 s65, s2, 128
s_cmp_lt_u32 s2, {NR0}
s_cselect_b32 s28, s64, s28
s_cselect_b32 s71, s65, s71
s_cselect_b32 s59, 16, 1
s_cselect_b32 s66, 0, {8*896}
s_mul_i32 s64, s59, s3
s_add_u32 s64, s64, s28
s_mul_i32 s65, s3, 1040
s_movk_i32 s67, {8*1040}
s_and_b32 s68, s3, 3
s_lshl_b32 s68, s68, 10
s_add_u32 s68, s68, {TB["F8RE"]}
s_waitcnt lgkmcnt(0)
s_mov_b64 s[40:41], s[4:5]
L_pC:
s_mul_i32 s64, s64, 896
s_mov_b32 m0, s65
s_add_u32 s66, s66, s64
buffer_load_dwordx4 v7, s[40:43], s64 offen NTF lds
s_add_u32 m0, s65, s67
s_mov_b32 s61, {EPOCH}
buffer_load_dwordx4 v7, s[40:43], s66 offen NTF lds
s_add_u32 m0, s68, {CT}
s_mov_b32 s34, 0x10000000
s_mov_b32 s35, 0x20000
buffer_load_dwordx4 v7, s[36:39], s68 offen lds
buffer_load_dword v31, off, s[32:35], s61
v_and_b32 v1, 15, v0
v_bfe_u32 v2, v0, 4, 2
s_mov_b32 s70, 0
""")
        s.stamp(1); s.stamp("p1")
        a("s_cmp_lt_u32 s58, 128\ns_cbranch_scc0 L_T")
    def cread(s, items):
        for r, n in items: s.a(f"ds_read_b128 {V(r,4)}, v7 offset:{CT + TB[n]}")
    def matrix(s, a0, step, re, im, conj):
        s.sincos4(a0, step, 96, 100)
        for j in range(4):
            s.a(f"v_cvt_pk_bf16_f32 v{re+j}, v{96+j}, {'-' if conj else ''}v{100+j}")
            s.a(f"v_cvt_pk_bf16_f32 v{im+j}, {'' if conj else '-'}v{100+j}, v{96+j}")
    def b0(s):
        a = s.a
        s.srd(44, 3670016); s.srd(48, 921600); s.srd(52, 921600)
        a(f"""
v_cmp_eq_u32 s[62:63], 15, v1
s_mov_b64 s[44:45], s[24:25]
s_mov_b64 s[48:49], s[20:21]
s_mov_b64 s[52:53], s[22:23]
s_and_b32 s66, s58, 15         ; f1
s_lshr_b32 s67, s58, 4         ; k2
v_lshlrev_b32 v10, 2, v1
v_lshl_add_u32 v24, v2, 19, v10    ; g*524288 + 4c
v_cvt_f32_u32 v4, v1
v_lshlrev_b32 v5, 2, v2
v_cvt_f32_u32 v5, v5
v_mul_f32 v4, {f2h(1/16)}, v4          ; c/16
""")
    def bw(s):
        s.a(f"""
s_mul_i32 s64, s67, 56
s_sub_u32 s65, 896, s64
s_cmp_lt_u32 s67, 8
s_cselect_b32 s64, s64, s65
s_cselect_b32 s65, 2, -2
v_and_b32 v8, 1, v2
v_lshrrev_b32 v9, 1, v2
v_mul_i32_i24 v6, s65, v1
v_mul_u32_u24 v10, {1024*450}, v8
v_mul_u32_u24 v11, {16*450}, v9
v_add_u32 v6, s64, v6
v_add3_u32 v6, v6, v10, v11
s_lshl_b32 s64, s3, 5
s_add_u32 s64, s64, s66
s_mul_i32 s68, s64, 450        ; W soffset r=0
""")
    def bc(s):
        a = s.a
        a(f"""
v_and_b32 v8, 1, v2
v_lshrrev_b32 v9, 1, v2
v_lshlrev_b32 v10, 2, v1
v_lshl_add_u32 v27, v2, 11, v10    ; Z1 poll: g*2048 + 4c
v_mul_u32_u24 v12, 48, v1
v_mul_u32_u24 v28, 3072, v2
s_lshl_b32 s64, s3, 2
s_add_u32 s64, s64, {EB}
v_add3_u32 v28, v28, v12, s64          ; E b32: 4g*768 + 48c + 4w
v_mul_u32_u24 v9, 768, v9
v_lshl_add_u32 v9, v8, 4, v9
s_mul_i32 s64, s3, 1536
s_add_u32 s64, s64, {EB}
v_add3_u32 v29, v9, v12, s64           ; E b128
v_cvt_f32_u32 v8, s3
v_mul_f32 v8, {f2h(1/8)}, v8           ; b/8
v_add_f32 v13, v5, v8
v_mul_f32 v13, v13, v4
v_fmamk_f32 v12, v8, {f2h(1/16)}, v4
""")
        s.matrix(13, 4, 64, 68, False)
        a("v_mul_f32 v13, v12, v5")
        s.matrix(13, 12, 72, 76, True)
    def w_prefetch(s, d):
        s.a(f"""
s_lshl_b32 s64, s67, 3
s_add_u32 s64, s64, s3
s_lshl_b32 s64, s64, 4
s_add_u32 s64, s64, s66
s_mul_i32 s64, s64, 450
v_lshlrev_b32 v8, 7, v3
v_min_u32 v8, 448, v8
buffer_load_ushort v{d}, v8, s[48:51], s64 offen NTW
buffer_load_ushort v{d+1}, v8, s[52:55], s64 offen NTW
""")
        return 2
    def w_loads(s):
        a = s.a
        for r in range(4):
            a(f"buffer_load_short_d16_hi v{16+r}, v6, s[48:51], s68 offen NTG")
            a(f"buffer_load_short_d16_hi v{20+r}, v6, s[52:55], s68 offen NTG")
            if r < 3: a(f"s_add_u32 s68, s68, {256*450}")
    def row_s1(s):
        a = s.a
        s.b0()
        wp = s.o.get("wp", 3)
        a(f"""
v_cvt_f32_u32 v8, s71
v_mul_f32 v8, {f2h(1/128)}, v8             ; sigma/128
v_add_f32 v13, v5, v8
v_mul_f32 v13, v13, v4
""")
        s.matrix(13, 4, 56, 60, False)
        a(f"""
v_mul_u32_u24 v25, 5120, v2
v_mul_u32_u24 v8, 80, v1
s_lshl_b32 s64, s3, 3
s_add_u32 s64, s64, {T1}
v_add3_u32 v25, v25, v8, s64          ; T write: g*5120 + 80c + 8w
s_mul_i32 s64, s3, 2560
s_add_u32 s64, s64, {T1}
v_lshl_add_u32 v26, v2, 4, v8
v_add_u32 v26, s64, v26               ; T read: 2w*1280 + 80c + 16g
s_lshl_b32 s65, s3, 11
v_lshl_add_u32 v120, v3, 3, s65
""")
        s.bw()
        if s.o.get("bce"): s.bc()
        if s.o.get("wd"): a(f"s_sleep {s.o['wd']}")
        if wp == 1: s.w_prefetch(94)
        s.stamp("p2")
        a(f"s_setprio BPRIO\ns_waitcnt vmcnt({2 if wp < 2 else 0})")
        s.stamp(2); s.stamp("s0"); s.stamp("p3")
        a("s_barrier")
        s.stamp("s1")
        pk = s.o.get("pk", True)
        a(f"""
ds_read_b64_tr_b16 v[96:97], v120
ds_read_b64_tr_b16 v[98:99], v120 offset:512
""")
        s.cread([(32, "COS28"), (36, "NSIN28")])
        a(f"""
ds_read_b64_tr_b16 v[100:101], v120 offset:1024
ds_read_b64_tr_b16 v[102:103], v120 offset:1536
""")
        s.cread([(48, "TWRC"), (52, "TWRS"), (40, "R2RE"), (44, "R2IM")])
        if s.o.get("wg", 2) == 0: s.w_loads()
        if wp == 3: s.w_prefetch(94)
        s.stamp("s2")
        s.nonce_get(31)
        a("s_waitcnt lgkmcnt(6)")
        s.mfma(104, 96, 32); s.mfma(108, 96, 36)
        a("s_waitcnt lgkmcnt(4)")
        s.mfma(112, 100, 32); s.mfma(116, 100, 36)
        a("s_waitcnt lgkmcnt(0)")
        s.stamp("s3")
        s.twiddle(104, 108, 48, 52, [96, 97, 98, 99], False, packed=pk)
        s.mfma(104, 40, 96); s.mfma(108, 44, 96)
        s.twiddle(112, 116, 48, 52, [100, 101, 102, 103], False, packed=pk)
        s.mfma(112, 40, 100); s.mfma(116, 44, 100)
        s.stamp("s4")
        s.pack(104, 108, [120, 122, 124, 126]); s.pack(112, 116, [121, 123, 125, 127])
        for r in range(4): a(f"ds_write_b64 v25, {V(120+2*r,2)} offset:{1280*r}")
        a(f"""
s_lshl_b32 s64, s71, 6
s_lshl_b32 s65, s3, 14
s_add_u32 s64, s64, s65            ; sigma*64 + 2w*8192
s_waitcnt lgkmcnt(0)""")
        s.stamp("s5")
        a("s_barrier")
        s.stamp("s6")
        a(f"""
ds_read_b128 v[96:99], v26
ds_read_b128 v[100:103], v26 offset:1280
s_waitcnt lgkmcnt(1)
""")
        s.mfma(104, 56, 96); s.mfma(108, 60, 96)
        a("s_waitcnt lgkmcnt(0)")
        s.mfma(112, 56, 100); s.mfma(116, 60, 100)
        s.stamp("s7")
        for t, (dr, di, P) in enumerate(((104, 108, 120), (112, 116, 124))):
            s.pack(dr, di, [P, P+1, P+2, P+3])
            for r in range(4): a(f"v_cndmask_b32 v{P+r}, v{P+r}, v31, s[62:63]")
            for r in range(4):
                a(f"s_add_u32 s65, s64, {Z1 + t*8192 + r*131072}")
                a(f"buffer_store_dword v{P+r}, v24, s[32:35], s65 offen sc1")
        s.stamp(3); s.stamp("s8")
        s.z1_gate_issue("r")
        a(f"""s_barrier
s_lshl_b32 s64, s3, 10
s_add_u32 s64, s64, 8192
s_add_u32 m0, s64, {CT}
buffer_load_dwordx4 v7, s[36:39], s64 offen lds""")
        if s.o.get("wg", 2) == 1: s.w_loads()
        if wp == 4: s.w_prefetch(94)
        if not s.o.get("bce"):
            a("s_setprio 0"); s.bc(); a("s_setprio BPRIO")
        a("s_branch L_col")
    def z1_gate_issue(s, tag):
        s.a(f"""
s_lshl_b32 s64, s66, 4
s_add_u32 s64, s64, s67
s_lshl_b32 s64, s64, 13
s_lshl_b32 s65, s3, 6
s_add_u32 s69, s64, s65
s_add_u32 s69, s69, {Z1}           ; Z1 + unit*8192 + w*64
""")
        s.gate_issue("z1" + tag, 4, 2048 + 64 * 5, 60, "s69", 14)
    def t_u(s):
        a = s.a
        a(f"""
L_T:
v_and_b32 v10, 3, v3
v_lshrrev_b32 v11, 2, v3
v_cmp_eq_u32 s[56:57], 3, v10
v_mul_u32_u24 v120, 4160, v10
v_lshl_add_u32 v120, v11, 2, v120
s_lshl_b32 s64, s3, 6
v_add_u32 v120, s64, v120          ; LDS: 4160e + 4q + 64w
v_mul_u32_u24 v121, {PSTR}, v11
v_lshl_add_u32 v121, v10, 4, v121  ; q*PSTR + 16e
""")
        s.b0(); s.bw()
        if s.o.get("tce", 1): s.bc()
        wp = s.o.get("wp", 3)
        if s.o.get("wdt"): a(f"s_sleep {s.o['wdt']}")
        if wp < 2: s.w_prefetch(62)
        a(f"""
s_mul_i32 s64, s3, {16*PSTR}
s_lshl_b32 s65, s71, 6
s_add_u32 s64, s64, s65
s_add_u32 s64, s64, {UT}
s_add_u32 s65, s64, {128*PSTR}
""")
        s.stamp("p2")
        a(f"s_setprio BPRIO\ns_waitcnt vmcnt({2 if wp < 2 else 0})")
        s.stamp(2); s.stamp("p3")
        a("s_barrier")
        for k in range(2):
            for i in range(4): a(f"ds_read_b32 v{96+4*k+i}, v120 offset:{1040*i + 512*k}")
        s.nonce_get(31)
        a(f"""
s_waitcnt lgkmcnt(4)
v_cndmask_b32 v99, v99, v31, s[56:57]
buffer_store_dwordx4 v[96:99], v121, s[32:35], s64 offen sc1
s_cmp_ge_u32 s3, 6
s_cbranch_scc1 L_T_p2
s_waitcnt lgkmcnt(0)
v_cndmask_b32 v103, v103, v31, s[56:57]
buffer_store_dwordx4 v[100:103], v121, s[32:35], s65 offen sc1
L_T_p2:
""")
        s.stamp(3)
        a(f"""
s_cmp_lt_u32 s2, {NR0}
s_cbranch_scc1 L_Ty
""")
        s.z1_gate_issue("t")
        if wp >= 3: s.w_prefetch(62)
        if s.o.get("wg", 2) < 2:
            a("s_barrier")
            s.w_loads()
        if not s.o.get("tce", 1):
            a("s_setprio 0"); s.bc(); a("s_setprio BPRIO")
    def column(s):
        a = s.a
        a("L_col:")
        s.stamp(4)
        s.gate_wait("z1", 4, 2048 + 64 * 5, 60, "s69", 14)
        wg = s.o.get("wg", 2)
        a(f"s_waitcnt vmcnt({8 if wg == 1 else 0})\ns_barrier")
        def zl():
            for j in range(4): a(f"buffer_load_dword v{96+j}, v27, s[32:35], s69 offen offset:{512*j} sc1")
        zl()
        if wg == 2: s.w_loads()
        s.cread([(32, "F8RE"), (36, "F8IM"), (40, "G8RE"), (44, "G8IM")])
        a(f"s_waitcnt vmcnt({8 if wg == 2 else 0})\ns_branch L_chk_z1\nL_poll_z1:")
        zl()
        a("s_waitcnt vmcnt(0)\nL_chk_z1:")
        s.tagcheck([96, 97, 98, 99], "z1", s.o.get("sl", 4))
        s.stamp(5)
        s.mfma(104, 64, 96); s.mfma(108, 68, 96)
        s.pack(104, 108, [120, 121, 122, 123])
        for r in range(4): a(f"ds_write_b32 v28, v{120+r} offset:{768*r}")
        a("s_waitcnt lgkmcnt(0)\ns_barrier\nds_read_b128 v[96:99], v29\ns_waitcnt lgkmcnt(0)")
        s.mfma(104, 32, 96); s.mfma(108, 36, 96)
        a("s_waitcnt vmcnt(0)")
        s.twiddle(104, 108, 16, 20, [96, 97, 98, 99], True)
        s.mfma(104, 40, 96); s.mfma(108, 44, 96)
        s.pack(104, 108, [120, 121, 122, 123])
        a("ds_write_b128 v29, v[120:123]\ns_waitcnt lgkmcnt(0)\ns_barrier")
        for j in range(4): a(f"ds_read_b32 v{96+j}, v28 offset:{768*j}")
        a(f"""
s_lshl_b32 s64, s3, 14
s_lshl_b32 s65, s67, 10
s_add_u32 s64, s64, s65
s_lshl_b32 s65, s66, 6
s_add_u32 s64, s64, s65
s_waitcnt lgkmcnt(0)
""")
        s.mfma(104, 72, 96); s.mfma(108, 76, 96)
        s.pack(104, 108, [120, 121, 122, 123])
        for r in range(4): a(f"v_cndmask_b32 v{120+r}, v{120+r}, v31, s[62:63]")
        for r in range(4):
            a(f"s_add_u32 s65, s64, {Z2 + r*131072}")
            a(f"buffer_store_dword v{120+r}, v24, s[32:35], s65 offen sc1")
        s.stamp(6)
        a(f"s_cmp_ge_u32 s2, {NT0}\ns_cbranch_scc1 L_Ty")
    def row_inv(s):
        a = s.a
        a(f"""
s_lshl_b32 s64, s71, 14
s_lshl_b32 s65, s3, 11
s_add_u32 s69, s64, s65
s_add_u32 s69, s69, {Z2}
""")
        s.gate_issue("z2", 4, 4096 + 64 * 5, 60, "s69", 14)
        s.cread([(32, "R2BRE"), (36, "R2BIM"), (40, "TWIC"), (44, "TWIS"), (48, "R1B0"), (52, "R1B1")])
        a(f"""
v_cvt_f32_u32 v8, s71
v_fmamk_f32 v12, v8, {f2h(1/2048)}, v4
v_mul_f32 v13, v12, v5
""")
        s.matrix(13, 12, 80, 84, True)
        a(f"""
v_and_b32 v10, 1, v2
v_lshl_add_u32 v11, v10, 4, v1        ; n1 = c + 16(g&1)
v_lshlrev_b32 v30, 5, v11
v_lshrrev_b32 v12, 1, v2
v_lshl_add_u32 v30, v12, 4, v30
v_cmp_lt_u32 vcc, 27, v11
v_mov_b32 v12, 0x10000000
v_cndmask_b32 v30, v30, v12, vcc
v_lshlrev_b32 v5, 8, v2
v_lshl_add_u32 v5, v1, 2, v5
v_cmp_eq_u32 s[28:29], 3, v2
""")
        s.gate_wait("z2", 4, 4096 + 64 * 5, 60, "s69", 14)
        a("s_waitcnt lgkmcnt(0)\ns_barrier\nL_poll_z2:")
        for t in range(2):
            for j in range(4): a(f"buffer_load_dword v{96+4*t+j}, v5, s[32:35], s69 offen offset:{1024*t+64*j} sc1")
        a("s_waitcnt vmcnt(0)")
        s.tagcheck(list(range(96, 104)), "z2", s.o.get("sl", 4))
        s.stamp(7)
        pk = s.o.get("pk2", True)
        s.mfma(104, 80, 96); s.mfma(108, 84, 96); s.mfma(112, 80, 100); s.mfma(116, 84, 100)
        s.pack(104, 108, [120, 122, 124, 126]); s.pack(112, 116, [121, 123, 125, 127])
        for r in range(4): a(f"ds_write_b64 v25, {V(120+2*r,2)} offset:{1280*r}")
        a(f"""
s_lshl_b32 s64, s3, 8
s_add_u32 s64, s64, s71
s_mul_i32 s64, s64, 1792
s_add_u32 s64, s64, 896
s_add_u32 s65, s64, {128*1792}
s_waitcnt lgkmcnt(0)
s_barrier
ds_read_b128 v[96:99], v26
ds_read_b128 v[100:103], v26 offset:1280
s_waitcnt lgkmcnt(1)
""")
        s.mfma(104, 96, 32); s.mfma(108, 96, 36)
        a("s_waitcnt lgkmcnt(0)")
        s.mfma(112, 100, 32); s.mfma(116, 100, 36)
        s.twiddle(104, 108, 40, 44, [96, 97, 98, 99], True, packed=pk)
        a("v_cndmask_b32_e64 v99, v99, 0, s[28:29]")
        s.mfma(104, 96, 48); s.mfma(108, 96, 52)
        s.twiddle(112, 116, 40, 44, [100, 101, 102, 103], True, packed=pk)
        a("v_cndmask_b32_e64 v103, v103, 0, s[28:29]")
        s.mfma(112, 100, 48); s.mfma(116, 100, 52)
        for t, (d0, d1, P, so) in enumerate(((104, 108, 120, "s64"), (112, 116, 124, "s65"))):
            a(f"""v_cvt_pk_bf16_f32 v{P}, v{d0}, v{d0+1}
v_cvt_pk_bf16_f32 v{P+1}, v{d0+2}, v{d0+3}
v_cvt_pk_bf16_f32 v{P+2}, v{d1}, v{d1+1}
v_cvt_pk_bf16_f32 v{P+3}, v{d1+2}, v{d1+3}
v_permlane16_swap_b32 v{P}, v{P+2}
v_permlane16_swap_b32 v{P+1}, v{P+3}
buffer_store_dwordx4 {V(P,4)}, v30, s[44:47], {so} offen OUTF""")
        s.stamp(8)
        a("s_branch L_exit")
    def t_y(s):
        a = s.a
        a(f"""
L_Ty:
s_setprio 0
s_mul_i32 s29, s71, 14336
s_add_u32 s29, s29, {YT}
s_mul_i32 s72, s59, 1792
s_movk_i32 s73, 840
s_cmp_eq_u32 s59, 1
s_cselect_b32 s59, s73, 448
s_mul_i32 s28, s28, 1792
v_mul_u32_u24 v8, {(1<<20)//56+1}, v0
v_lshrrev_b32 v8, 20, v8
v_mul_u32_u24 v9, 56, v8
v_sub_u32 v9, v0, v9               ; grp0
v_add_u32 v10, 512, v0
v_mul_u32_u24 v11, {(1<<20)//56+1}, v10
v_lshrrev_b32 v11, 20, v11         ; row1
v_mul_u32_u24 v12, 56, v11
v_sub_u32 v12, v10, v12            ; grp1
v_lshlrev_b32 v9, 4, v9
v_lshlrev_b32 v12, 4, v12
global_load_dwordx4 v[112:115], v9, s[16:17]
global_load_dwordx4 v[116:119], v12, s[16:17]
v_min_u32 v11, 15, v11
v_mul_u32_u24 v25, 912, v8
v_add_u32 v25, v25, v9
v_mul_u32_u24 v26, 912, v11
v_add_u32 v26, v26, v12
v_lshl_add_u32 v104, v8, 7, v25
v_lshl_add_u32 v108, v11, 7, v26
ds_read_b128 v[104:107], v104
ds_read_b128 v[108:111], v108
v_mul_u32_u24 v48, s72, v8
v_add_u32 v48, v48, v9
v_mul_u32_u24 v49, s72, v11
v_add_u32 v49, v49, v12
v_mov_b32 v13, 0x10000000
v_cmp_gt_u32 vcc, s59, v0
v_cndmask_b32 v48, v13, v48, vcc
v_cmp_gt_u32 vcc, s59, v10
v_cndmask_b32 v49, v13, v49, vcc
v_and_b32 v10, 3, v0
v_mul_u32_u24 v10, 3648, v10
v_and_b32 v11, 0xfffffffc, v0
v_add_u32 v50, v10, v11
v_lshlrev_b32 v30, 4, v0           ; tid*16
v_cmp_gt_u32 vcc, 384, v0
s_mov_b64 s[30:31], vcc
s_add_u32 s64, s29, 8192
v_mov_b32 v103, v31
s_waitcnt vmcnt(0) lgkmcnt(0)
""")
        for it in range(2):
            for j in range(4):
                u, d, o = 104 + 4*it + j, 112 + 4*it + j, 80 + 8*it + 2*j
                a(f"""v_lshlrev_b32 v8, 16, v{u}
v_lshlrev_b32 v9, 16, v{d}
v_and_b32 v10, 0xffff0000, v{u}
v_and_b32 v11, 0xffff0000, v{d}
v_mul_f32 v8, v8, v9
v_mul_f32 v10, v10, v11
v_cvt_pk_bf16_f32 v8, v8, v10
v_lshlrev_b32 v{o}, 16, v8
v_and_b32 v{o+1}, 0xffff0000, v8""")
        a("s_setprio BPRIO")
        s.gate_issue("y", 4, 64 * 53, 60, "s29", 14)
        s.gate_wait("y", 4, 64 * 53, 60, "s29", 14)
        a(f"""
s_barrier
L_poll_y:
buffer_load_dwordx4 v[96:99], v30, s[32:35], s29 offen sc1
s_mov_b64 exec, s[30:31]
s_cbranch_execz L_y1
buffer_load_dwordx4 v[100:103], v30, s[32:35], s64 offen sc1
L_y1:
s_mov_b64 exec, -1
s_waitcnt vmcnt(0)
""")
        s.tagcheck([99, 103], "y", s.o.get("sl", 4), mask="s[56:57]")
        s.stamp(7)
        for r in range(4): a(f"ds_write_b32 v50, v{96+r} offset:{912*r}")
        a("s_mov_b64 exec, s[30:31]")
        for r in range(4): a(f"ds_write_b32 v50, v{100+r} offset:{912*r+512}")
        a(f"""
s_mov_b64 exec, -1
s_waitcnt lgkmcnt(0)
s_barrier
ds_read_b128 v[96:99], v25
ds_read_b128 v[100:103], v26
""")
        for it in range(2):
            a(f"s_waitcnt lgkmcnt({1-it})")
            for j in range(4):
                y = 96 + 4*it + j
                a(f"v_lshlrev_b32 v{8+2*j}, 16, v{y}\nv_and_b32 v{9+2*j}, 0xffff0000, v{y}")
            for j in range(4): a(f"v_pk_add_f32 {V(8+2*j,2)}, {V(8+2*j,2)}, {V(80+8*it+2*j,2)}")
            for j in range(4): a(f"v_cvt_pk_bf16_f32 v{104+4*it+j}, v{8+2*j}, v{9+2*j}")
            a(f"buffer_store_dwordx4 {V(104+4*it,4)}, v{48+it}, s[44:47], s28 offen OUTF")
        a(f"""
s_add_u32 s64, s71, s3
s_cmp_lg_u32 s64, 0
s_cbranch_scc1 L_noep
s_mov_b32 s61, {EPOCH}
s_mov_b64 exec, 1
buffer_store_dword v31, off, s[32:35], s61
s_mov_b64 exec, -1
L_noep:""")
        s.stamp(8)
        a("s_branch L_exit")
    def cmuls(s, lst):
        for d, x, e, t in lst:
            s.a(f"v_pk_mul_f32 {V(t,2)}, {V(x,2)}, {V(e,2)} op_sel:[1,1] op_sel_hi:[1,0] neg_lo:[1,0]")
        for d, x, e, t in lst:
            s.a(f"v_pk_fma_f32 {V(d,2)}, {V(x,2)}, {V(e,2)}, {V(t,2)} op_sel_hi:[0,1,1]")
    def exp2_bf16(s, pairs):
        L_HI = 1.4426950216293335; L_LO = 1.4426950408889634 - L_HI
        for fmt in (f"v_mul_f32 v{{t}}, {f2h(L_HI)}, v{{x}}", "v_exp_f32 v{d}, v{t}", "v_fma_f32 v{u}, v{x}, s71, -v{t}",
                    f"v_fmac_f32 v{{u}}, {f2h(L_LO)}, v{{x}}", f"v_mul_f32 v{{u}}, {f2h(math.log(2))}, v{{u}}",
                    "v_fma_f32 v{d}, v{d}, v{u}, v{d}", "v_cvt_pk_bf16_f32 v{d}, v{d}, v{d}", "v_and_b32 v{d}, 0xffff0000, v{d}"):
            for d, x, t in pairs: s.a(fmt.format(d=d, x=x, t=t, u=t + 1))
    def a_path(s):
        a = s.a
        a("L_A:")
        if s.o.get("ap", 1): a(f"s_setprio {s.o.get('ap', 1)}")
        s.stamp(1); s.stamp("p1")
        s.a("v_lshrrev_b32 v32, 6, v0\nv_and_b32 v3, 63, v0\nv_readfirstlane_b32 s3, v32\nv_and_b32 v1, 15, v0\nv_bfe_u32 v2, v0, 4, 2\ns_mov_b32 s70, 0")
        s.srd(32, "0x10000000")
        s.nonce_issue(115)
        a(f"""
s_lshr_b32 s67, s3, 2              ; ch
s_and_b32 s68, s3, 3               ; q4
v_lshlrev_b32 v25, 4, v3           ; 16*lane
""")
        nl = 1
        def addr_pairs(fl, dst):
            for i in range(0, len(fl), 2):
                a(f"v_cvt_pk_bf16_f32 v{fl[i]}, v{fl[i]}, v{fl[min(i+1, len(fl)-1)]}")
            for i in range(0, len(fl), 2):
                a(f"v_lshlrev_b32 v{fl[i]}, 1, v{fl[i]}")
            for i in range(len(fl)):
                a(f"v_add_u32_sdwa v{dst[i]}, s64, v{fl[i & ~1]} dst_sel:DWORD dst_unused:UNUSED_PAD src0_sel:DWORD src1_sel:WORD_{i & 1}")
        def AG():
            a(f"""
s_mul_i32 s72, s67, {KCH}
s_add_u32 s72, s72, {KC}
s_sub_u32 s64, s72, {2*KB}
v_and_b32 v33, 255, v0
v_lshlrev_b32 v33, 3, v33
v_sub_u32 v33, 2047, v33
v_cvt_f32_i32 v40, v33             ; lag of element 0
""")
            for e in range(1, 11):
                a(f"v_add_f32 v{40+e}, {f2h(-float(e))}, v40")
            a(f"v_mov_b32 v34, {f2h(2064.0)}")
            for e in (8, 9, 10):
                a(f"v_cmp_gt_f32 vcc, 0, v{40+e}\nv_cndmask_b32 v{40+e}, v{40+e}, v34, vcc")
            addr_pairs(list(range(40, 51)), list(range(8, 19)))
            a("v_max_i32 v15, s72, v15")
        def AS():
            a(f"""
s_mul_i32 s72, s67, {KCH}
s_add_u32 s72, s72, {KC}
s_sub_u32 s64, s72, {2*KB}
""")
            a(f"""
v_lshrrev_b32 v34, 1, v2           ; g>>1
v_and_b32 v35, 1, v2               ; g&1
s_cmp_eq_u32 s68, 1
s_cbranch_scc1 L_sc1
s_cmp_eq_u32 s68, 2
s_cbranch_scc1 L_sc2
v_lshlrev_b32 v36, 7, v34
v_lshl_add_u32 v36, v35, 2, v36    ; 128(g>>1) + 4(g&1) + r
v_mov_b32 v37, 1
v_mov_b32 v38, 2
s_branch L_scd
L_sc1:
v_lshlrev_b32 v36, 7, v2
v_add_u32 v36, 256, v36            ; g<2: 256+128g + 2r
v_lshlrev_b32 v37, 8, v2           ; g>=2: 256g + 128(r>>1) + 4(r&1)
v_cmp_lt_u32 vcc, 1, v2
v_cndmask_b32 v36, v36, v37, vcc
v_cndmask_b32_e64 v37, 2, 4, vcc
v_mov_b32 v38, 128
v_cndmask_b32 v38, 4, v38, vcc
s_branch L_scd
L_sc2:
v_lshlrev_b32 v36, 9, v2
v_add_u32 v36, 1024, v36           ; 1024 + 128(4g+r)
v_mov_b32 v37, 128
v_mov_b32 v38, 256
L_scd:
v_lshl_add_u32 v36, v1, 3, v36
v_add_u32 v37, v36, v37
v_sub_u32 v39, v37, v36
v_add_u32 v38, v36, v38
v_add_u32 v39, v38, v39
v_mov_b32 v34, 2080
v_cmp_lt_u32 vcc, 2048, v36
v_cndmask_b32 v36, v36, v34, vcc
v_cmp_lt_u32 vcc, 2048, v37
v_cndmask_b32 v37, v37, v34, vcc
v_cmp_lt_u32 vcc, 2048, v38
v_cndmask_b32 v38, v38, v34, vcc
v_cmp_lt_u32 vcc, 2048, v39
v_cndmask_b32 v39, v39, v34, vcc
v_cvt_f32_u32 v40, v36
v_cvt_f32_u32 v41, v37
v_cvt_f32_u32 v42, v38
v_cvt_f32_u32 v43, v39
""")
            addr_pairs([40, 41, 42, 43], [20, 21, 22, 23])
            a("v_max_i32 v20, s72, v20")
        def AC():
            a(f"""
v_cmp_eq_u32 s[62:63], 15, v1
s_mul_i32 s69, s67, {CHK}
s_add_u32 s64, s69, {KCP}
v_and_b32 v26, 255, v0
v_lshl_add_u32 v26, v26, 4, s64
v_sub_u32 v34, 3, v1
v_and_b32 v34, 3, v34              ; s = (3-i)&3
v_mul_u32_u24 v35, 4158, v34       ; s*4160 - 2s
v_lshlrev_b32 v36, 4, v2
v_lshlrev_b32 v37, 1, v1
v_sub_u32 v36, v36, v37            ; 16g - 2i
s_bfe_u32 s73, s3, 0x10001
s_and_b32 s64, s3, 1
s_lshl_b32 s64, s64, 8              ; 64*4h
s_mul_i32 s65, s73, {CHK}
s_sub_u32 s65, s65, s64
s_add_u32 s72, s65, {KCP + 2*2031 - 192 - 512*7}
v_add3_u32 v27, v35, v36, s72      ; vA
v_lshlrev_b32 v28, 5, v1
v_lshl_add_u32 v28, v2, 4, v28
s_mul_i32 s72, s73, {CHU}
s_sub_u32 s72, s72, s64
s_add_u32 s72, s72, {UA + 448 - 192}
v_add_u32 v28, s72, v28            ; vB
v_lshlrev_b32 v29, 2, v3           ; 64g + 4c
s_lshl_b32 s64, s3, 7
s_add_u32 s64, s64, {UA + 480}
v_lshl_add_u32 v30, v3, 1, s64
s_lshl_b32 s64, s3, 2
v_add_u32 v34, s64, v2
v_lshlrev_b32 v34, 8, v34
v_lshl_add_u32 v34, v1, 5, v34
v_add_u32 v113, {UA + 480 + 30}, v34
v_cmp_gt_u32 vcc, 8, v1
s_cmp_lt_u32 s3, 4
s_cselect_b64 s[30:31], vcc, 0
s_cselect_b64 s[28:29], s[62:63], 0
s_mul_i32 s58, s66, {PSTR}
s_add_u32 s58, s58, {UT}
s_lshl_b32 s64, s3, 8
s_add_u32 s57, s58, s64
s_add_u32 s54, s57, 4096
s_add_u32 s55, s57, 8192
""")
        a(f"""
s_mul_i32 s59, s3, {WV}
v_mul_u32_u24 v24, {RS}, v1
v_lshl_add_u32 v24, v2, 4, v24
v_add_u32 v24, s59, v24
s_mov_b32 s71, {f2h(1.4426950216293335)}
s_mov_b32 m0, s59
""")
        def uloads():
            for i in range(5):
                so, of = (("s57", 0), ("s57", 2048), ("s54", 0), ("s54", 2048), ("s55", 0))[i]
                a(f"buffer_load_dword v{118+i}, v29, s[32:35], {so} offen offset:{of} sc1")
        early = s.o.get("ae", "SGC")
        for ch in early: {"S": AS, "G": AG, "C": AC}[ch]()
        s.stamp("p2")
        a(f"s_waitcnt vmcnt({nl})")
        s.stamp("p3")
        a("s_cmp_lg_u32 s3, 7\ns_cbranch_scc1 L_a_w\ns_waitcnt vmcnt(5)\nL_a_w:") if False else None
        if s.o.get("bal", 1): a(f"s_cmp_eq_u32 s67, 0\ns_cbranch_scc1 L_bal0\ns_setprio {s.o.get('ap', 1) + 1}\nL_bal0:")
        s.stamp(2); s.stamp("k0")
        s.exp2_bf16([(31, 114, 34), (32, 4, 36)])
        a(f"""
v_mul_f32 v33, v5, v31             ; zi
v_mul_f32 v32, v32, v31            ; -zr
v_mul_f32 v33, 0.15915494, v33     ; revolutions
v_mul_f32 v32, {f2h(-1.4426950408889634)}, v32     ; zr*log2e
v_add_f32 v31, v31, v31
v_mul_f32 v35, {f2h(8.0)}, v33
v_mul_f32 v37, {f2h(128.0)}, v33
v_mul_f32 v34, {f2h(8.0)}, v32
v_mul_f32 v36, {f2h(128.0)}, v32
v_fract_f32 v35, v35
v_fract_f32 v37, v37
v_fract_f32 v33, v33
v_exp_f32 v34, v34
v_cos_f32 v58, v35
v_sin_f32 v59, v35
v_exp_f32 v36, v36
v_cos_f32 v60, v37
v_sin_f32 v61, v37
v_exp_f32 v32, v32
v_cos_f32 v56, v33
v_sin_f32 v57, v33
v_mul_f32 v42, v6, v31
v_mul_f32 v43, v7, v31             ; G0 = 2C dt
v_mul_f32 v58, v58, v34
v_mul_f32_e64 v59, v59, -v34       ; conj E8
v_mul_f32 v60, v60, v36
v_mul_f32 v61, v61, v36
v_mul_f32 v56, v56, v32
v_mul_f32 v57, v57, v32
""")
        s.stamp("k1")
        E1, E8, E128, E2, E4 = 56, 58, 60, 38, 40
        pkr = [54, 55, 62, 63, 4, 5, 6, 7]
        st = {"k": 0}
        def emit(lst):
            ps = []
            for x, buf, row in lst:
                p = pkr[st["k"] % 8]; st["k"] += 1; ps.append(p)
                a(f"v_cvt_pk_bf16_f32 v{p}, v{x}, v{x+1}")
            for p, (x, buf, row) in zip(ps, lst):
                a(f"ds_write_addtid_b32 v{p} offset:{buf*BUF + row*RS}")
        X0, X1, XV, XW, T0, T1, T2, T3 = 42, 44, 46, 32, 48, 50, 52, 108
        GA, GB = 34, 36
        E16 = 110
        a(f"v_mov_b32 v7, 0x3f80\nds_write_addtid_b32 v7 offset:0")
        s.cmuls([(X1, X0, E128, T1), (E16, E8, E8, T2)])
        emit([(E8, 0, 1), (X0, 1, 0)])
        s.cmuls([(GA, X1, E128, T0), (XW, E16, E8, T3), (XV, E16, E16, T2)])
        emit([(X1, 1, 8), (E16, 0, 2), (XW, 0, 3), (XV, 0, 4)])
        for j in range(1, 8):
            l = [(X0, X0, E1, T0), (X1, X1, E1, T1)]
            e = [(X0, 1, j), (X1, 1, 8 + j)]
            if j <= 6: l.append((XW, XW, E16, T3)); e.append((XW, 0, 3 + 2*j))
            if j <= 5: l.append((XV, XV, E16, T2)); e.append((XV, 0, 4 + 2*j))
            if j == 6: l.append((E2, E1, E1, T2))
            if j == 7: l += [(GB, GA, E128, T2), (E4, E2, E2, T3)]
            s.cmuls(l); emit(e)
        s.stamp("k2")
        if s.o.get("bal", 1): a(f"s_setprio {s.o.get('ap', 1)}")
        a("s_waitcnt lgkmcnt(0)")
        s.stamp("k3")
        for ks in range(4): a(f"ds_read_b128 {V(64+4*ks,4)}, v24 offset:{64*ks}")
        for ks in range(4): a(f"ds_read_b128 {V(80+4*ks,4)}, v24 offset:{BUF+64*ks}")
        s.cmuls([(X0, GA, E2, T0), (X1, GB, E2, T1), (XV, GB, E128, T2), (E16, E128, E128, T3)])
        a("s_waitcnt lgkmcnt(4)")
        emit([(GA, 0, 0), (GB, 0, 4), (X0, 0, 1), (X1, 0, 5), (XV, 0, 8)])
        s.cmuls([(X0, X0, E2, T0), (X1, X1, E2, T1), (XW, XV, E128, T2), (GA, XV, E4, T3)])
        a("s_waitcnt lgkmcnt(5)")
        for ks in range(4): s.mfma(96, 80+4*ks, 64+4*ks, None if ks == 0 else 96)
        emit([(X0, 0, 2), (X1, 0, 6), (XW, 0, 10), (GA, 0, 9)])
        s.stamp("k4")
        if s.o.get("ugate"): s.gate_issue("u", 4, 64 * 43, 60, "s58", 116, wave=7)
        s.cmuls([(X0, X0, E2, T0), (X1, X1, E2, T1), (XV, XV, E16, T2), (GA, XW, E4, T3)])
        emit([(X0, 0, 3), (X1, 0, 7), (XV, 0, 12), (GA, 0, 11)])
        s.cmuls([(XW, XW, E16, T0), (GA, XV, E4, T1), (XV, XV, E16, T2)])
        emit([(XW, 0, 14), (GA, 0, 13), (XV, 1, 0)])
        s.cmuls([(GB, XW, E4, T0), (XW, XW, E16, T1), (XV, XV, E16, T2)])
        emit([(GB, 0, 15), (XW, 1, 1), (XV, 1, 2)])
        s.stamp("k5")
        if s.o.get("ul", 1) == 2: uloads()
        a("s_waitcnt lgkmcnt(2)")
        for ks in range(4): a(f"ds_read_b128 {V(80+4*ks,4)}, v24 offset:{64*ks}")
        for h in range(3):
            s.cmuls([(XW, XW, E16, T0), (XV, XV, E16, T1)])
            emit([(XW, 1, 3 + 2*h), (XV, 1, 4 + 2*h)])
            if h == 1:
                a("s_waitcnt lgkmcnt(4)")
                for ks in range(4): s.mfma(100, 80+4*ks, 64+4*ks, None if ks == 0 else 100)
        a("s_waitcnt lgkmcnt(0)")
        for ks in range(4): a(f"ds_read_b128 {V(80+4*ks,4)}, v24 offset:{BUF+64*ks}")
        s.stamp("k6")
        if s.o.get("ul", 1) == 3: uloads()
        a("v_add_u32 v32, s59, v25")
        a(f"ds_write_b128 v32, v[96:99]\nds_write_b128 v32, v[100:103] offset:1024")
        a(f"s_waitcnt vmcnt({5 if s.o.get('ul', 1) >= 2 else 0})")
        s.nonce_get(115)
        a("s_waitcnt lgkmcnt(2)")
        for ks in range(4): s.mfma(104, 80+4*ks, 64+4*ks, None if ks == 0 else 104)
        a(f"ds_write_b128 v32, v[104:107] offset:2048")
        s.stamp(8); s.stamp("k7"); s.stamp("p4")
        if s.o.get("ugate"): s.gate_wait("u", 4, 64 * 43, 60, "s58", 116, wave=7)
        for ch in "SC":
            if ch not in early: {"S": AS, "C": AC}[ch]()
        a("s_waitcnt lgkmcnt(0)\ns_barrier")
        s.stamp(3); s.stamp("k8"); s.stamp("e0")
        if s.o.get("ul", 1) == 0: uloads()
        a(f"""
s_cmp_eq_u32 s68, 3
s_cbranch_scc1 L_zp
s_lshl_b32 s72, s68, 10
s_mul_i32 s73, s67, {4*WV}
s_add_u32 s72, s72, s73
v_add_u32 v32, s72, v25
ds_read_b128 v[96:99], v32
ds_read_b128 v[100:103], v32 offset:{WV}
ds_read_b128 v[104:107], v32 offset:{2*WV}
ds_read_b128 v[80:83], v32 offset:{3*WV}
s_waitcnt lgkmcnt(2)
v_pk_add_f32 v[96:97], v[96:97], v[100:101]
v_pk_add_f32 v[98:99], v[98:99], v[102:103]
s_waitcnt lgkmcnt(0)
v_pk_add_f32 v[104:105], v[104:105], v[80:81]
v_pk_add_f32 v[106:107], v[106:107], v[82:83]
v_pk_add_f32 v[96:97], v[96:97], v[104:105]
v_pk_add_f32 v[98:99], v[98:99], v[106:107]
v_cvt_pk_bf16_f32 v96, v96, v97
v_cvt_pk_bf16_f32 v98, v98, v99
ds_write_b16 v20, v96
ds_write_b16_d16_hi v21, v96
ds_write_b16 v22, v98
ds_write_b16_d16_hi v23, v98
s_branch L_zpd
L_zp:
v_mov_b32 v96, 0
v_mov_b32 v97, 0
v_mov_b32 v98, 0
v_mov_b32 v99, 0
s_mul_i32 s72, s67, {KCH}
s_add_u32 s72, s72, {KC + 2*(0x4501 - KB)}
v_mov_b32 v33, s72
ds_write_b16 v33, v96
s_mul_i32 s72, s67, {CHU}
s_add_u32 s72, s72, {UA}
v_add_u32 v33, s72, v25
s_mov_b64 exec, 0x3fffffff
ds_write_b128 v33, v[96:99]          ; zero pad in front of u
s_mov_b64 exec, -1
v_lshrrev_b32 v64, 1, v3
v_mul_u32_u24 v64, 4160, v64
v_and_b32 v65, 1, v3
v_lshl_add_u32 v64, v65, 4, v64
s_add_u32 s72, s69, {KCP + 4096}
v_add_u32 v64, s72, v64
L_zpd:""")
        if s.o.get("ul", 1) == 1: uloads()
        if "G" not in early: AG()
        a("s_waitcnt lgkmcnt(0)")
        s.stamp("e1")
        a("s_barrier")
        s.stamp("e2")
        for e in range(11): a(f"ds_read_u16 v{32+e}, v{8+e}")
        a(f"""
s_cmp_lg_u32 s68, 3
s_cbranch_scc1 L_nzt
s_mov_b64 exec, 0xff
ds_write_b128 v64, v[96:99]
s_mov_b64 exec, -1
L_nzt:
s_waitcnt lgkmcnt(0)
""")
        for cp in range(4):
            for j in range(4):
                x = cp + 2*j
                a(f"v_lshl_or_b32 v{48+4*cp+j}, v{33+x}, 16, v{32+x}")
            a(f"ds_write_b128 v26, {V(48+4*cp,4)} offset:{4160*cp}")
        s.stamp("e3")
        a("s_branch L_chk_u\nL_poll_u:")
        uloads()
        a("L_chk_u:\ns_waitcnt vmcnt(0)")
        a(f"""v_cmp_ne_u32 vcc, s60, v118
v_cmp_ne_u32 s[72:73], s60, v119
v_cmp_ne_u32 s[74:75], s60, v120
v_cmp_ne_u32 s[76:77], s60, v121
v_cmp_ne_u32 s[78:79], s60, v122
s_or_b64 vcc, vcc, s[72:73]
s_or_b64 vcc, vcc, s[74:75]
s_or_b64 vcc, vcc, s[76:77]
s_and_b64 vcc, vcc, s[62:63]
s_and_b64 s[78:79], s[78:79], s[28:29]
s_or_b64 vcc, vcc, s[78:79]
{"s_branch" if s.o.get("aonly") else "s_cbranch_scc0"} L_got_u""")
        s.spin("u", s.o.get("sl", 4))
        a("L_got_u:")
        s.stamp(4); s.stamp("e4")
        a("s_andn2_b64 exec, -1, s[62:63]")
        for i in range(5):
            if i == 4: a("s_mov_b64 exec, s[30:31]")
            ad, of = (30, 1024*i) if i < 4 else (113, 0)
            a(f"ds_write_b16 v{ad}, v{118+i} offset:{of}")
            a(f"ds_write_b16_d16_hi v{ad}, v{118+i} offset:{of + CHU}")
        a("s_mov_b64 exec, -1\ns_waitcnt lgkmcnt(0)\ns_barrier")
        fill_w = f"""v_lshrrev_b32 v4, 1, v1
v_and_b32 v4, 3, v4
v_xor_b32 v4, v4, v2
v_lshlrev_b32 v4, 4, v4
v_lshl_add_u32 v4, v1, 6, v4
s_lshl_b32 s64, s3, 13
s_add_u32 s65, s64, {XP[1] - 8192}
s_cmp_eq_u32 s3, 0
s_cselect_b32 s64, 0, s65
v_add_u32 v4, s64, v4""".split("\n")
        fill_r = f"""v_lshrrev_b32 v5, 3, v3
v_xor_b32 v5, v5, v3
v_and_b32 v5, 3, v5
v_lshlrev_b32 v5, 4, v5
v_and_b32 v6, 0x3c, v3
v_lshl_add_u32 v5, v6, 4, v5
s_lshl_b32 s64, s3, 10
v_add_u32 v5, s64, v5
v_lshrrev_b32 v6, 2, v3
v_mul_u32_u24 v6, 14336, v6
v_and_b32 v7, 3, v3
v_lshl_add_u32 v6, v7, 4, v6
s_mul_i32 s64, s3, {16*14336}
s_lshl_b32 s65, s66, 6
s_add_u32 s64, s64, s65
s_add_u32 s64, s64, {YT}
v_cmp_eq_u32 s[56:57], 3, v7
v_mov_b32 v11, s60
v_and_b32 v9, 7, v1
v_lshl_add_u32 v9, v2, 3, v9
v_lshlrev_b32 v9, 4, v9
v_add_u32 v9, 12, v9
v_mul_u32_u24 v10, 14336, v2
v_lshl_add_u32 v10, v1, 2, v10
s_mul_i32 s72, s3, {2*14336}
s_add_u32 s65, s65, s72
s_add_u32 s65, s65, {YT + 128*14336}""".split("\n")
        s.stamp(5); s.stamp("e5")
        a("s_cmp_lt_u32 s3, 4\ns_cbranch_scc1 L_conv")
        a("\n".join(fill_r))
        s.stamp(6); s.stamp("e6")
        a("s_branch L_tC\nL_conv:")
        filler = fill_w + fill_r
        free = [64 + 4*i for i in range(16)]
        Areg, Breg = {}, {}
        pend = []
        q = []
        exports = []
        NC = 4
        def assign(cl, d):
            off = 64 * (NC - 1 - cl)
            ra = free.pop(0); rb = free.pop(0)
            Areg[(cl, d)] = ra; Breg[(cl, d)] = rb
            q.append(((cl, d), f"ds_read_b128 {V(rb,4)}, v28 offset:{512*d + off}"))
            q.append(((cl, d), f"ds_read_b64 {V(ra,2)}, v27 offset:{512*(7-d) + off}"))
            q.append(((cl, d), f"ds_read_b64 {V(ra+2,2)}, v27 offset:{512*(7-d) + off + 8}"))
        def issue1():
            k, t = q.pop(0); a(t); pend.append(k)
        def wait(cl, d):
            while any(k == (cl, d) for k, _ in q): issue1()
            if (cl, d) in pend:
                idx = max(i for i, k in enumerate(pend) if k == (cl, d))
                a(f"s_waitcnt lgkmcnt({len(pend) - 1 - idx})")
                del pend[:idx + 1]
        first = set(); n = [0]
        left = {T: (T + 1) * NC for T in range(8)}
        def export(T):
            a(f"ds_write_b128 v4, {V(32+4*T,4)} offset:{1024*T}"); pend.append("x")
        def mm(cl, p, qq):
            T = p + qq
            s.mfma(32 + 4*T, Areg[(cl, p)], Breg[(cl, qq)], None if T not in first else 32 + 4*T)
            first.add(T); n[0] += 1
            left[T] -= 1
            if left[T] == 0: exports.append((n[0] + 5, T))
            if q and len(pend) < 15: issue1()
            elif exports and exports[0][0] <= n[0] and len(pend) < 15: export(exports.pop(0)[1])
            elif filler:
                a(filler.pop(0))
                while filler and filler[0].startswith("s_"): a(filler.pop(0))
        todo = [(cl, d) for cl in range(NC) for d in range(8)]
        def refill():
            while todo and len(free) >= 2: assign(*todo.pop(0))
        refill()
        for _ in range(9): issue1()
        for cl in range(NC):
            for d in range(8):
                wait(cl, d)
                prs = [(d, j) for j in range(d) if d + j <= 7] + [(j, d) for j in range(d) if d + j <= 7]
                if 2*d <= 7: prs.append((d, d))
                if cl == NC - 1: prs.sort(key=lambda x: x[0] + x[1])
                for p, qq in prs: mm(cl, p, qq)
                if d >= 4:
                    for k in (7 - d, d):
                        free.append(Areg[(cl, k)]); free.append(Breg[(cl, k)])
                    refill()
        assert not todo and not q and not filler
        s.stamp(6); s.stamp("e6")
        for _, T in exports: export(T)
        a("L_tC:\ns_waitcnt lgkmcnt(0)")
        s.stamp("e7")
        a("s_barrier")
        s.stamp("e8")
        for qq in range(4): a(f"ds_read_b128 {V(64+8*qq,4)}, v5 offset:{XP[qq]}")
        def add4(d, x):
            a(f"v_pk_add_f32 {V(d,2)}, {V(d,2)}, {V(x,2)}\nv_pk_add_f32 {V(d+2,2)}, {V(d+2,2)}, {V(x+2,2)}")
        a("s_waitcnt lgkmcnt(2)"); add4(64, 72)
        a("s_waitcnt lgkmcnt(0)"); add4(80, 88)
        for r in range(4): a(f"v_cvt_pk_bf16_f32 v{96+r}, v{64+r}, v{80+r}")
        a("""ds_bpermute_b32 v100, v9, v99
v_cndmask_b32 v99, v99, v11, s[56:57]
buffer_store_dwordx4 v[96:99], v6, s[32:35], s64 offen sc1
s_waitcnt lgkmcnt(0)
v_cndmask_b32 v100, v100, v11, s[62:63]
s_mov_b32 exec_hi, 0
buffer_store_dword v100, v10, s[32:35], s65 offen sc1
s_mov_b64 exec, -1""")
        s.stamp(7); s.stamp("e9")
    def table(s):
        T = tables.b_tables()
        buf = np.zeros(TB_SIZE // 4, np.uint32)
        for n, off in TB.items(): buf[off // 4: off // 4 + 256] = T[n].reshape(-1)
        out = [".p2align 8", ".type L_tbl,@object", "L_tbl:"]
        for i in range(0, len(buf), 8):
            out.append(".long " + ",".join(("0x%x" % x) if x else "0" for x in buf[i:i + 8]))
        out.append("L_tbl_end:")
        out.append(f".size L_tbl, {TB_SIZE}")
        return "\n".join(out)
    def build(s):
        a = s.a
        hdr = open("concat_heads__ssm_conv_s4d__spectral_gfnet__prompt.s.ref").read().split("; Override launch")[0]
        a.raw(hdr + f"; @launch grid=({NWG},1,1) block=(512,1,1) lds={LDS_BYTES}")
        a.raw(f'.amdgcn_target "amdgcn-amd-amdhsa--gfx950"\n.text\n.globl {KNAME}\n.p2align 8\n.type {KNAME},@function\n{KNAME}:')
        s.entry(); s.row_s1(); s.t_u(); s.column(); s.row_inv(); s.t_y(); s.a_path()
        a("L_exit:")
        s.stamp(9)
        s.stamp_flush()
        a("L_end:\ns_endpgm")
        a.raw(s.table())
        a.raw(f""".section .rodata,"a"
.p2align 6
.amdhsa_kernel {KNAME}
  .amdhsa_next_free_vgpr 128
  .amdhsa_next_free_sgpr 102
  .amdhsa_accum_offset 128
  .amdhsa_group_segment_fixed_size 0
  .amdhsa_kernarg_size 104
  .amdhsa_user_sgpr_count 2
  .amdhsa_user_sgpr_kernarg_segment_ptr 1
  .amdhsa_system_sgpr_workgroup_id_x 1
.end_amdhsa_kernel""")
        return a.text().replace("BPRIO", str(s.o.get("bp", 2))).replace("    AONLY\n", "    s_endpgm\n" if s.o.get("aonly") else "").replace(" NTP", " nt" if s.o.get("ntp") else "").replace(" NTF", " nt" if s.o.get("nt", 1) else "").replace(" NTW", " nt" if s.o.get("ntw", 1) else "").replace(" NTG", " nt" if s.o.get("ntg", 1) else "").replace(" OUTF", (" " + s.o["outf"]) if s.o.get("outf") else "")
if __name__ == "__main__":
    out = sys.argv[1]; stamps = len(sys.argv) > 2 and sys.argv[2] == "1"
    opts = json.loads(sys.argv[3]) if len(sys.argv) > 3 else {}
    g = G(stamps, opts); t = g.build(); open(out, "w").write(t)
    print("lines", t.count("\n"), "bytes", len(t), "nops", g.a.nops)
```

```python
import sys, math, json
import numpy as np
from asmlib import Asm, f2h
import tables
KNAME = "concat_heads__ssm_conv_s4d__spectral_gfnet__prompt_kernel"
Z1, Z2, UT, YT, STAMP = 0x010000, 0x220000, 0x430000, 0x640000, 0x1000000
EPOCH = 0x630000
HB = {'z1': 0x900000, 'u': 0x980000, 'z2': 0xA00000, 'y': 0xA80000}; HP = {'z1': 128, 'u': 144, 'z2': 256, 'y': 224}
CB = {'z1': 0x900000, 'z2': 0x920000, 'y': 0x940000, 'u': 0x960000}; EARLY = ('z1', 'u'); CT_ = {'z1': 16, 'z2': 32, 'y': 28, 'u': 18}
PSTR = 9216
NR0, NT0, NA0, NWG = 16, 144, 272, 496
LDS_BYTES = 78336
SPIN_MAX = 200000
WV, BUF, RS = 9216, 4608, 288
KC, KCH = 3072, 3072
KB = 0x3F7F
ZS = 0x4502 - KB
KCP, CHK, UA, CHU = 9216, 8320, 69120, 4608
XP = [0, 43008, 51200, 59392]
TB = {n: 1024 * i for i, n in enumerate(["COS28", "NSIN28", "R2RE", "R2IM", "TWRC", "TWRS", "F8RE", "F8IM", "G8RE", "G8IM",
                                          "R2BRE", "R2BIM", "TWIC", "TWIS", "R1B0", "R1B1"])}
TB_SIZE = 16384
T1, EB, CT = 16896, 37376, 49664

def V(a, n=1): return f"v{a}" if n == 1 else f"v[{a}:{a+n-1}]"
def S(a, n=1): return f"s{a}" if n == 1 else f"s[{a}:{a+n-1}]"

class G:
    def __init__(s, stamps=False, opts=None):
        s.a = Asm(); s.stamps = stamps; s.o = opts or {}
    def stamp(s, i):
        if not s.stamps: return
        prof = s.o.get("prof")
        if prof:
            if isinstance(i, str):
                if i[:len(prof)] == prof: s.a(f"s_memtime {S(80+2*int(i[len(prof):]),2)}")
            return
        if isinstance(i, int): s.a(f"s_memrealtime {S(80+2*i,2)}")
    def stamp_flush(s):
        if not s.stamps: return
        a = s.a
        if s.o.get("dbg"):
            a("""s_memtime s[22:23]
s_mov_b32 s20, s101
s_load_dwordx2 s[100:101], s[0:1], 88
s_waitcnt lgkmcnt(0) vmcnt(0)
s_cmp_lg_u32 s3, 0
s_cbranch_scc1 L_end""")
            for k, (wg, idx) in enumerate(((150, (1, 2, 3, 5, 7, 9)), (60, (2, 3, 5, 7, 9)), (400, (2, 3, 5, 7)))):
                base = (1, 7, 12)[k]
                a(f"s_cmp_lg_u32 s2, {wg}\ns_cbranch_scc1 L_dbg{k}")
                if k == 0: a("s_sub_u32 s22, s22, s20\nv_mov_b32 v4, s22\nv_mov_b32 v5, 0\nglobal_store_dword v5, v4, s[100:101]")
                for j, i in enumerate(idx):
                    a(f"s_sub_u32 s64, s{80+2*i}, s80\nv_mov_b32 v4, s64\nv_mov_b32 v5, {4*(base+j)}\nglobal_store_dword v5, v4, s[100:101]")
                a(f"L_dbg{k}:")
            a("s_waitcnt vmcnt(0)")
            return
        a("s_waitcnt lgkmcnt(0) vmcnt(0)")
        for i in range(10): a(f"v_mov_b32 v{4+i}, s{80+2*i}")
        a(f"""v_mov_b32 v14, 0
v_mov_b32 v15, s70
v_mov_b32 v2, 0
s_lshl_b32 s64, s2, 3
s_add_u32 s64, s64, s3
s_lshl_b32 s64, s64, 6
s_add_u32 s64, s64, {STAMP}
buffer_store_dwordx4 v[4:7], v2, s[32:35], s64 offen
buffer_store_dwordx4 v[8:11], v2, s[32:35], s64 offen offset:16
buffer_store_dwordx4 v[12:15], v2, s[32:35], s64 offen offset:32
s_waitcnt vmcnt(0)""")
    def srd(s, base, size):
        s.a(f"s_mov_b32 s{base+2}, {size}\ns_mov_b32 s{base+3}, 0x20000")
    def mfma(s, d, A, B, c=None):
        s.a(f"v_mfma_f32_16x16x32_bf16 {V(d,4)}, {V(A,4)}, {V(B,4)}, {'0' if c is None else V(c,4)}")
    def twiddle(s, dre, dim, co, si, P, conj, T=8, packed=False):
        a = s.a
        if packed:
            for h in (0, 2):
                a(f"v_pk_mul_f32 {V(T+h,2)}, {V(dim+h,2)}, {V(si+h,2)}")
                a(f"v_pk_mul_f32 {V(T+4+h,2)}, {V(dre+h,2)}, {V(si+h,2)}")
            for h in (0, 2):
                n = " neg_lo:[0,0,1] neg_hi:[0,0,1]"
                a(f"v_pk_fma_f32 {V(dre+h,2)}, {V(dre+h,2)}, {V(co+h,2)}, {V(T+h,2)}{n if conj else ''}")
                a(f"v_pk_fma_f32 {V(dim+h,2)}, {V(dim+h,2)}, {V(co+h,2)}, {V(T+4+h,2)}{'' if conj else n}")
        else:
            for r in range(4):
                a(f"v_mul_f32 v{T+r}, v{dim+r}, v{si+r}")
                a(f"v_mul_f32 v{T+4+r}, v{dre+r}, v{si+r}")
            for r in range(4):
                a(f"v_fma_f32 v{dre+r}, v{dre+r}, v{co+r}, {'-' if conj else ''}v{T+r}")
                a(f"v_fma_f32 v{dim+r}, v{dim+r}, v{co+r}, {'' if conj else '-'}v{T+4+r}")
        s.pack(dre, dim, P)
    def pack(s, dre, dim, P):
        for r in range(4): s.a(f"v_cvt_pk_bf16_f32 v{P[r]}, v{dre+r}, v{dim+r}")
    def sincos4(s, a0, step, co, si, T=8):
        a = s.a
        a(f"v_add_f32 v{T+1}, v{a0}, v{step}")
        a(f"v_fma_f32 v{T+2}, v{step}, 2.0, v{a0}")
        a(f"v_add_f32 v{T+3}, v{T+2}, v{step}")
        regs = [a0, T+1, T+2, T+3]
        for r in range(4):
            a(f"v_cos_f32 v{co+r}, v{regs[r]}")
            a(f"v_sin_f32 v{si+r}, v{regs[r]}")
    def tbl_srd(s):
        s.a("s_getpc_b64 s[36:37]")
        n = s.a.uid()
        s.a.raw(f"L_pc{n}:")
        s.a(f"s_add_u32 s36, s36, L_tbl-L_pc{n}\ns_addc_u32 s37, s37, 0")
        s.srd(36, TB_SIZE)
    def tload(s, items, vaddr, sbase=None):
        cur = None
        for r, off in items:
            b = off & ~4095
            if b != cur:
                if sbase is None: s.a(f"s_mov_b32 s61, {b}")
                else: s.a(f"s_add_u32 s61, {sbase}, {b}")
                cur = b
            s.a(f"buffer_load_dwordx4 {V(r,4)}, v{vaddr}, s[36:39], s61 offen offset:{off - b}")
        return len(items)
    def nonce_issue(s, vn):
        s.a(f"s_mov_b32 s61, {EPOCH}\nbuffer_load_dword v{vn}, off, s[32:35], s61 NTE")
    def nonce_get(s, vn):
        s.a(f"v_add_u32 v{vn}, 1, v{vn}\nv_readfirstlane_b32 s60, v{vn}")
    def spin(s, tag, sleep):
        s.a(f"""s_add_u32 s70, s70, 1
s_cmp_gt_u32 s70, {SPIN_MAX}
s_cbranch_scc1 L_exit
s_sleep {sleep}
s_branch L_poll_{tag}""")
    def gate_issue(s, tag, K, stride, off, sreg, vt, wave=0):
        s.a(f"""
v_mul_u32_u24 v{vt+1}, {stride}, v3
s_cmp_lg_u32 s3, {wave}
s_cbranch_scc1 L_gi_{tag}
v_mov_b32 v{vt}, 0
s_mov_b64 exec, {hex((1<<K)-1)}
buffer_atomic_or v{vt}, v{vt+1}, s[32:35], {sreg} offen offset:{off} sc0 sc1
s_mov_b64 exec, -1
L_gi_{tag}:""")
    def gate_wait(s, tag, K, stride, off, sreg, vt, wave=0, sentinel=False):
        a = s.a
        a(f"""
s_cmp_lg_u32 s3, {wave}
s_cbranch_scc1 L_gd_{tag}
s_mov_b64 exec, {hex((1<<K)-1)}
s_branch L_gc_{tag}
L_poll_g{tag}:
v_mov_b32 v{vt}, 0
buffer_atomic_or v{vt}, v{vt+1}, s[32:35], {sreg} offen offset:{off} sc0 sc1
L_gc_{tag}:
s_waitcnt vmcnt(0)
v_cmp_{'eq' if sentinel else 'ne'}_u32 vcc, {'-1' if sentinel else 's60'}, v{vt}
s_cbranch_vccz L_gok_{tag}""")
        s.spin("g" + tag, s.o.get("gsl", 1))
        a(f"""L_gok_{tag}:
s_mov_b64 exec, -1
L_gd_{tag}:""")
    def hint_send(s, e, preg, wave=0, tag=""):
        R = s.o.get("R", 16)
        s.a(f"""
s_cmp_lg_u32 s3, {wave}
s_cbranch_scc1 L_hs_{e}{tag}""")
        s.a(f"""s_and_b32 s61, {preg}, 7
s_lshl_b32 s61, s61, 10
s_add_u32 s61, s61, {CB[e]}
s_add_u32 s76, s32, s61
s_addc_u32 s77, s33, 0
s_mov_b32 s100, {63 if e in EARLY else 1}""")
        for r in range(R): s.a(f"s_atomic_{'inc' if e in EARLY else 'add'} s100, s[76:77], {hex(8192*r)}")
        s.a(f"L_hs_{e}{tag}:")
    def hint_fill(s, e, rreg, val, tag, op="swap"):
        s.a(f"""s_lshl_b32 s61, {rreg}, 13
s_add_u32 s61, s61, {CB[e]}
s_add_u32 s76, s32, s61
s_addc_u32 s77, s33, 0
s_mov_b32 s100, {val}""")
        for x in range(8): s.a(f"s_atomic_{op} s100, s[76:77], {hex(1024*x)}")
    def hint_zero(s):
        s.a("s_cmp_lg_u32 s3, 7\ns_cbranch_scc1 L_hz0")
        if s.o.get("ug", 0): s.hint_fill("u", "s2", 0, "d", "add")
        s.hint_fill("z1", "s2", 0, "c", "add")
        s.a("L_hz0:")
        s.a("s_cmp_lg_u32 s3, 6\ns_cbranch_scc1 L_hz1")
        s.hint_fill("z2", "s2", 0, "a")
        s.a("L_hz1:\ns_cmp_lg_u32 s3, 5\ns_cbranch_scc1 L_hz")
        s.hint_fill("y", "s2", 0, "b")
        s.a("L_hz:")
    def hint_rearm(s, e):
        s.a(f"s_cmp_ge_u32 s71, 16\ns_cbranch_scc1 L_ra_{e}\ns_cmp_lg_u32 s3, 1\ns_cbranch_scc1 L_ra_{e}")
        s.hint_fill(e, "s71", -1, "r")
        s.a(f"L_ra_{e}:")
    def g_wait(s, e, creg, wave=0):
        a = s.a
        R = s.o.get("R", 16); dl = s.o.get("dl", {}); tg = CT_[e]; sh = 1 if e in EARLY else 0
        a(f"""s_cmp_lg_u32 s3, {wave}
s_cbranch_scc1 L_hd_{e}
s_lshr_b32 s61, {creg}, 3
s_and_b32 s61, s61, {R-1}
s_lshl_b32 s61, s61, 13
s_add_u32 s61, s61, {CB[e]}
s_add_u32 s24, s32, s61
s_addc_u32 s25, s33, 0
s_mov_b32 s101, 0""")
        for k in range(8): a(f"s_mov_b32 s{72+k}, 0")
        if e == "z1" and dl.get("z1t"):
            a(f"s_cmp_ge_u32 s2, {NT0}\ns_cbranch_scc1 L_dlt\ns_sleep {dl.get('z1r', 0)}\ns_branch L_dlr\nL_dlt:\ns_sleep {dl['z1t']}\nL_dlr:")
        elif dl.get(e): a(f"s_sleep {dl[e]}")
        a(f"L_poll_h{e}:")
        for k in range(8):
            if sh: a(f"s_add_u32 s61, s{72+k}, 1\ns_lshr_b32 s61, s61, 1")
            a(f"""s_cmp_eq_u32 {'s61' if sh else 's%d' % (72+k)}, {tg >> sh}
s_cbranch_scc1 L_hp{k}_{e}
s_mov_b32 s{72+k}, 0
s_atomic_add s{72+k}, s[24:25], {hex(1024*k)} glc
L_hp{k}_{e}:""")
        a("s_add_u32 s101, s101, 1\ns_add_u32 s70, s70, 1\ns_waitcnt lgkmcnt(0)")
        a("s_mov_b32 s100, 0")
        for k in range(8):
            if sh: a(f"s_add_u32 s61, s{72+k}, 1\ns_lshr_b32 s61, s61, 1\ns_xor_b32 s61, s61, {tg >> 1}")
            else: a(f"s_xor_b32 s61, s{72+k}, {tg}")
            a("s_or_b32 s100, s100, s61")
        a(f"""s_cbranch_scc0 L_hd_{e}
s_sleep {s.o.get("gsl", 1)}
s_cmp_lt_u32 s101, {s.o.get("NF", 32)}
s_cbranch_scc1 L_poll_h{e}
L_hd_{e}:""")
    def w_sprefetch(s, tag):
        a = s.a
        a(f"""s_cmp_eq_u32 s3, 0
s_cbranch_scc1 L_sp_{tag}
s_mov_b32 s27, s3
L_sp1_{tag}:
s_lshl_b32 s61, s67, 3
s_add_u32 s61, s61, s27
s_lshl_b32 s61, s61, 4
s_add_u32 s61, s61, s66
s_mul_i32 s61, s61, 450
s_and_b32 s61, s61, -4
s_min_u32 s61, s61, {921600 - 452}
s_add_u32 s24, s48, s61
s_addc_u32 s25, s49, 0""")
        st = s.o.get("pst", 128)
        offs = list(range(0, 449, st)) + ([448] if 448 % st else [])
        for o in offs: a(f"s_load_dword s23, s[24:25], {o}")
        a("s_add_u32 s24, s52, s61\ns_addc_u32 s25, s53, 0")
        for o in offs: a(f"s_load_dword s23, s[24:25], {o}")
        a(f"""s_cmp_lg_u32 s27, 4
s_mov_b32 s27, 0
s_cbranch_scc0 L_sp1_{tag}
L_sp_{tag}:""")
    def check(s, tag, items):
        a = s.a
        m = [S(r, 2) for r in (72, 74, 76, 78, 48, 50, 52, 40)[:len(items)]]
        for mi, it in zip(m, items): a(f"v_cmp_ne_u32 {mi}, s60, v{it[0]}")
        same = len({it[4] for it in items}) == 1
        def merge(pre):
            if pre:
                for mi, it in zip(m, items): a(f"s_and_b64 {mi}, {mi}, {it[4]}")
            a(f"s_or_b64 vcc, {m[0]}, {m[1]}")
            for mi in m[2:]: a(f"s_or_b64 vcc, vcc, {mi}")
        if same:
            merge(False); a(f"s_and_b64 vcc, vcc, {items[0][4]}\ns_cbranch_scc0 L_got_{tag}")
            for mi, it in zip(m, items): a(f"s_and_b64 {mi}, {mi}, {it[4]}")
        else:
            merge(True); a(f"s_cbranch_scc0 L_got_{tag}")
        if s.o.get("aonly") or s.o.get("loud"):
            if s.o.get("aonly"): a(f"s_branch L_got_{tag}")
            else: s.spin(tag, s.o.get("sl", 4))
            a(f"L_got_{tag}:"); return
        a(f"""L_q_{tag}:
s_add_u32 s70, s70, 1
s_cmp_gt_u32 s70, {SPIN_MAX}
s_cbranch_scc1 L_exit""")
        for k, (mi, it) in enumerate(zip(m, items)):
            a(f"""s_mov_b64 exec, {mi}
s_cbranch_execz L_q{k}_{tag}
v_mov_b32 v{it[0]}, 0
buffer_atomic_or v{it[0]}, v{it[1]}, s[32:35], {it[2]} offen offset:{it[3]} sc0 sc1
L_q{k}_{tag}:""")
        a("s_mov_b64 exec, -1\ns_waitcnt vmcnt(0)")
        for mi, it in zip(m, items):
            a(f"v_cmp_ne_u32 vcc, s60, v{it[0]}\ns_and_b64 {mi}, {mi}, vcc")
        merge(False)
        a(f"""s_cbranch_scc0 L_poll_{tag}
s_sleep {s.o.get("qsl", 2)}
s_branch L_q_{tag}
L_got_{tag}:""")
    def gk(s, n):
        K = s.o.get("K", 8)
        st = (n - 1) // (K - 1) if K > 1 else 1
        if st % 2 == 0: st -= 1
        return K, 64 * st
    def lanes(s):
        s.a("""v_lshrrev_b32 v4, 6, v0
v_and_b32 v3, 63, v0
v_readfirstlane_b32 s3, v4
v_and_b32 v1, 15, v0
v_bfe_u32 v2, v0, 4, 2
s_mov_b32 s70, 0""")
    def prefetch(s, tag):
        if s.o.get("nopf"): return
        s.a(f"""
s_cmp_lg_u32 s3, 7
s_cbranch_scc1 L_nopf_{tag}
s_lshr_b32 s64, s2, 3
s_and_b32 s64, s64, 1
s_lshl_b32 s64, s64, 13
s_sub_u32 s74, s36, L_tbl-{KNAME}
s_subb_u32 s75, s37, 0
v_lshl_add_u32 v124, v3, 7, s64
v_min_u32 v124, L_tbl-{KNAME}-4, v124
global_load_dword v124, v124, s[74:75]
L_nopf_{tag}:""")

    def entry(s):
        a = s.a
        s.stamp(0); s.stamp("p0")
        if s.o.get("s0"): a(f"s_sleep {s.o['s0']}")
        if s.o.get("dbg"): a("s_memtime s[78:79]\ns_waitcnt lgkmcnt(0)\ns_mov_b32 s101, s78")
        a(f"""
s_load_dwordx16 s[4:19], s[0:1], 0
s_load_dwordx8 s[20:27], s[0:1], 64
s_load_dwordx2 s[32:33], s[0:1], 96
s_getpc_b64 s[36:37]
L_pc:
v_cmp_gt_u32 vcc, 8, v0
s_bfe_u32 s66, s2, 0x50003
s_lshl_b32 s66, s66, 10
s_and_saveexec_b64 s[64:65], vcc
s_cbranch_execz L_nopf
v_lshl_add_u32 v124, v0, 7, s66
v_min_u32 v124, L_tbl_end-L_pc-4, v124
{'s_nop 0' if s.o.get('nopf') else 'global_load_dword v124, v124, s[36:37] NTP'}    ; pull 1 KiB of the code into this XCD's L2 (speed only)
L_nopf:
s_mov_b64 exec, -1
s_cmp_ge_u32 s2, {NWG}
s_cbranch_scc1 L_end
REMAP
s_cmp_lt_u32 s2, {NA0}
s_cbranch_scc1 L_B
s_sub_u32 s66, s2, {NA0}           ; pair
s_lshl_b32 s64, s66, 10
v_lshl_add_u32 v24, v0, 1, s64
s_lshl_b32 s64, s66, 1
v_lshrrev_b32 v25, 8, v0
v_add_lshl_u32 v25, v25, s64, 1
s_waitcnt lgkmcnt(0)
global_load_short_d16_hi v114, v25, s[14:15] NTF
global_load_short_d16_hi v4, v24, s[6:7] NTF
global_load_short_d16_hi v5, v24, s[8:9] NTF
global_load_short_d16_hi v6, v24, s[10:11] NTF
global_load_short_d16_hi v7, v24, s[12:13] NTF
s_branch L_A
L_B:
AONLY
v_lshrrev_b32 v4, 6, v0
v_and_b32 v3, 63, v0
v_readfirstlane_b32 s3, v4
v_lshlrev_b32 v7, 4, v3            ; lane*16
s_sub_u32 s58, s2, {NR0}
s_add_u32 s36, s36, L_tbl-L_pc
s_addc_u32 s37, s37, 0
s_mov_b32 s38, {TB_SIZE}
s_mov_b32 s39, 0x20000
s_mov_b32 s42, 1835008
s_mov_b32 s43, 0x20000
s_cmp_lt_u32 s58, 128
s_cbranch_scc0 L_pT
s_mov_b32 s71, s58
s_lshl_b32 s64, s3, 8
s_add_u32 s64, s64, s58
s_mov_b32 s66, {128*896}
s_lshl_b32 s65, s3, 11
s_movk_i32 s67, 1024
s_lshl_b32 s68, s3, 10
s_waitcnt lgkmcnt(0)
s_mov_b64 s[40:41], s[18:19]
s_branch L_pC
L_pT:
s_sub_u32 s71, s2, {NT0}
s_lshl_b32 s28, s71, 4
s_lshl_b32 s64, s2, 7
s_add_u32 s64, s64, 15
s_add_u32 s65, s2, 128
s_cmp_lt_u32 s2, {NR0}
s_cselect_b32 s28, s64, s28
s_cselect_b32 s71, s65, s71
s_cselect_b32 s59, 16, 1
s_cselect_b32 s66, 0, {8*896}
s_mul_i32 s64, s59, s3
s_add_u32 s64, s64, s28
s_mul_i32 s65, s3, 1040
s_movk_i32 s67, {8*1040}
s_and_b32 s68, s3, 3
s_lshl_b32 s68, s68, 10
s_add_u32 s68, s68, {TB["F8RE"]}
s_waitcnt lgkmcnt(0)
s_mov_b64 s[40:41], s[4:5]
L_pC:
s_mul_i32 s64, s64, 896
s_mov_b32 m0, s65
s_add_u32 s66, s66, s64
buffer_load_dwordx4 v7, s[40:43], s64 offen NTF lds
s_add_u32 m0, s65, s67
s_mov_b32 s61, {EPOCH}
buffer_load_dwordx4 v7, s[40:43], s66 offen NTF lds
s_add_u32 m0, s68, {CT}
s_mov_b32 s34, 0x10000000
s_mov_b32 s35, 0x20000
buffer_load_dword v31, off, s[32:35], s61 NTE
{'s_nop 0' if s.o.get('nocd') else 'buffer_load_dwordx4 v7, s[36:39], s68 offen NTC lds'}
v_and_b32 v1, 15, v0
v_bfe_u32 v2, v0, 4, 2
s_mov_b32 s70, 0
""")
        s.stamp(1); s.stamp("p1")
        a("s_cmp_lt_u32 s58, 128\ns_cbranch_scc0 L_T")
    def cread(s, items):
        for r, n in items: s.a(f"ds_read_b128 {V(r,4)}, v7 offset:{CT + TB[n]}")
    def matrix(s, a0, step, re, im, conj):
        s.sincos4(a0, step, 96, 100)
        for j in range(4):
            s.a(f"v_cvt_pk_bf16_f32 v{re+j}, v{96+j}, {'-' if conj else ''}v{100+j}")
            s.a(f"v_cvt_pk_bf16_f32 v{im+j}, {'' if conj else '-'}v{100+j}, v{96+j}")
    def b0(s):
        a = s.a
        s.srd(44, 3670016); s.srd(48, 921600); s.srd(52, 921600)
        a(f"""
v_cmp_eq_u32 s[62:63], 15, v1
s_mov_b64 s[44:45], s[24:25]
s_mov_b64 s[48:49], s[20:21]
s_mov_b64 s[52:53], s[22:23]
s_and_b32 s66, s58, 15         ; f1
s_lshr_b32 s67, s58, 4         ; k2
v_lshlrev_b32 v10, 2, v1
v_lshl_add_u32 v24, v2, 19, v10    ; g*524288 + 4c
v_cvt_f32_u32 v4, v1
v_lshlrev_b32 v5, 2, v2
v_cvt_f32_u32 v5, v5
v_mul_f32 v4, {f2h(1/16)}, v4          ; c/16
""")
    def bw(s):
        s.a(f"""
s_mul_i32 s64, s67, 56
s_sub_u32 s65, 896, s64
s_cmp_lt_u32 s67, 8
s_cselect_b32 s64, s64, s65
s_cselect_b32 s65, 2, -2
v_and_b32 v8, 1, v2
v_lshrrev_b32 v9, 1, v2
v_mul_i32_i24 v6, s65, v1
v_mul_u32_u24 v10, {1024*450}, v8
v_mul_u32_u24 v11, {16*450}, v9
v_add_u32 v6, s64, v6
v_add3_u32 v6, v6, v10, v11
s_lshl_b32 s64, s3, 5
s_add_u32 s64, s64, s66
s_mul_i32 s68, s64, 450        ; W soffset r=0
""")
    def bc(s):
        a = s.a
        a(f"""
v_and_b32 v8, 1, v2
v_lshrrev_b32 v9, 1, v2
v_lshlrev_b32 v10, 2, v1
v_lshl_add_u32 v27, v2, 11, v10    ; Z1 poll: g*2048 + 4c
v_mul_u32_u24 v12, 48, v1
v_mul_u32_u24 v28, 3072, v2
s_lshl_b32 s64, s3, 2
s_add_u32 s64, s64, {EB}
v_add3_u32 v28, v28, v12, s64          ; E b32: 4g*768 + 48c + 4w
v_mul_u32_u24 v9, 768, v9
v_lshl_add_u32 v9, v8, 4, v9
s_mul_i32 s64, s3, 1536
s_add_u32 s64, s64, {EB}
v_add3_u32 v29, v9, v12, s64           ; E b128
v_cvt_f32_u32 v8, s3
v_mul_f32 v8, {f2h(1/8)}, v8           ; b/8
v_add_f32 v13, v5, v8
v_mul_f32 v13, v13, v4
v_fmamk_f32 v12, v8, {f2h(1/16)}, v4
""")
        s.matrix(13, 4, 64, 68, False)
        a("v_mul_f32 v13, v12, v5")
        s.matrix(13, 12, 72, 76, True)
    def w_prefetch(s, d):
        s.a(f"""
s_lshl_b32 s64, s67, 3
s_add_u32 s64, s64, s3
s_lshl_b32 s64, s64, 4
s_add_u32 s64, s64, s66
s_mul_i32 s64, s64, 450
v_lshlrev_b32 v8, 7, v3
v_min_u32 v8, 448, v8
buffer_load_ushort v{d}, v8, s[48:51], s64 offen NTW
buffer_load_ushort v{d+1}, v8, s[52:55], s64 offen NTW
""")
        return 2
    def w_early(s, tag):
        a = s.a
        a(f"s_cmp_eq_u32 s3, 0\ns_cbranch_scc1 L_we_{tag}")
        s.w_loads()
        a(f"s_cmp_lg_u32 s3, 1\ns_cbranch_scc1 L_we_{tag}\ns_mul_i32 s61, s66, 450")
        for r in range(4):
            a(f"buffer_load_ushort v{88+r}, v6, s[48:51], s61 offen NTG")
            a(f"buffer_load_ushort v{92+r}, v6, s[52:55], s61 offen NTG")
            if r < 3: a(f"s_add_u32 s61, s61, {256*450}")
        a(f"L_we_{tag}:")
    def w_loads(s):
        a = s.a
        if s.o.get("now"):
            for r in range(8): a(f"buffer_load_dword v{16+r}, off, s[36:39], 0")
            return
        for r in range(4):
            a(f"buffer_load_short_d16_hi v{16+r}, v6, s[48:51], s68 offen NTG")
            a(f"buffer_load_short_d16_hi v{20+r}, v6, s[52:55], s68 offen NTG")
            if r < 3: a(f"s_add_u32 s68, s68, {256*450}")
    def row_s1(s):
        a = s.a
        s.b0()
        wp = s.o.get("wp", 5)
        if s.o.get("wg", 1) == 5:
            s.bw()
            if s.o.get("wd0"): a(f"s_sleep {s.o['wd0']}")
            s.w_loads()
        a(f"""
v_cvt_f32_u32 v8, s71
v_mul_f32 v8, {f2h(1/128)}, v8             ; sigma/128
v_add_f32 v13, v5, v8
v_mul_f32 v13, v13, v4
""")
        s.matrix(13, 4, 56, 60, False)
        a(f"""
v_mul_u32_u24 v25, 5120, v2
v_mul_u32_u24 v8, 80, v1
s_lshl_b32 s64, s3, 3
s_add_u32 s64, s64, {T1}
v_add3_u32 v25, v25, v8, s64          ; T write: g*5120 + 80c + 8w
s_mul_i32 s64, s3, 2560
s_add_u32 s64, s64, {T1}
v_lshl_add_u32 v26, v2, 4, v8
v_add_u32 v26, s64, v26               ; T read: 2w*1280 + 80c + 16g
s_lshl_b32 s65, s3, 11
v_lshl_add_u32 v120, v3, 3, s65
""")
        if s.o.get("wg", 1) != 5: s.bw()
        if s.o.get("bce"): s.bc()
        if s.o.get("wd"): a(f"s_sleep {s.o['wd']}")
        if wp == 1: s.w_prefetch(94)
        s.stamp("p2")
        a(f"s_setprio BPRIO\ns_waitcnt vmcnt({8 if s.o.get('wg', 1) == 5 else (2 if wp < 2 else 0)})")
        s.stamp(2); s.stamp("s0"); s.stamp("p3")
        if s.o.get("stop"): a("s_branch L_exit")
        a("s_barrier")
        s.stamp("s1")
        pk = s.o.get("pk", True)
        a(f"""
ds_read_b64_tr_b16 v[96:97], v120
ds_read_b64_tr_b16 v[98:99], v120 offset:512
""")
        s.cread([(32, "COS28"), (36, "NSIN28")])
        a(f"""
ds_read_b64_tr_b16 v[100:101], v120 offset:1024
ds_read_b64_tr_b16 v[102:103], v120 offset:1536
""")
        s.cread([(48, "TWRC"), (52, "TWRS"), (40, "R2RE"), (44, "R2IM")])
        if s.o.get("wg", 1) == 0: s.w_loads()
        if wp == 3: s.w_prefetch(94)
        s.stamp("s2")
        s.nonce_get(31)
        a("s_waitcnt lgkmcnt(6)")
        s.mfma(104, 96, 32); s.mfma(108, 96, 36)
        a("s_waitcnt lgkmcnt(4)")
        s.mfma(112, 100, 32); s.mfma(116, 100, 36)
        a("s_waitcnt lgkmcnt(0)")
        s.stamp("s3")
        s.twiddle(104, 108, 48, 52, [96, 97, 98, 99], False, packed=pk)
        s.mfma(104, 40, 96); s.mfma(108, 44, 96)
        s.twiddle(112, 116, 48, 52, [100, 101, 102, 103], False, packed=pk)
        s.mfma(112, 40, 100); s.mfma(116, 44, 100)
        s.stamp("s4")
        s.pack(104, 108, [120, 122, 124, 126]); s.pack(112, 116, [121, 123, 125, 127])
        for r in range(4): a(f"ds_write_b64 v25, {V(120+2*r,2)} offset:{1280*r}")
        a(f"""
s_lshl_b32 s64, s71, 6
s_lshl_b32 s65, s3, 14
s_add_u32 s64, s64, s65            ; sigma*64 + 2w*8192
s_waitcnt lgkmcnt(0)""")
        s.stamp("s5")
        a("s_barrier")
        s.stamp("s6")
        a(f"""
ds_read_b128 v[96:99], v26
ds_read_b128 v[100:103], v26 offset:1280
s_waitcnt lgkmcnt(1)
""")
        s.mfma(104, 56, 96); s.mfma(108, 60, 96)
        a("s_waitcnt lgkmcnt(0)")
        s.mfma(112, 56, 100); s.mfma(116, 60, 100)
        if s.o.get("hp", 0) == 0: s.hint_send("z1", "s71", s.o.get("hw", 0))
        s.stamp("s7")
        for t, (dr, di, P) in enumerate(((104, 108, 120), (112, 116, 124))):
            s.pack(dr, di, [P, P+1, P+2, P+3])
            for r in range(4): a(f"v_cndmask_b32 v{P+r}, v{P+r}, v31, s[62:63]")
            for r in range(4):
                a(f"s_add_u32 s65, s64, {Z1 + t*8192 + r*131072}")
                a(f"buffer_store_dword v{P+r}, v24, s[32:35], s65 offen sc1")
        if s.o.get("hp", 0) == 1: s.hint_send("z1", "s71", s.o.get("hw", 0))
        s.stamp(3); s.stamp("s8")
        s.z1_gate_issue("r")
        a(f"""s_barrier
s_lshl_b32 s64, s3, 10
s_add_u32 s64, s64, 8192
s_add_u32 m0, s64, {CT}
buffer_load_dwordx4 v7, s[36:39], s64 offen lds""")
        if s.o.get("wg", 1) == 1: s.w_loads()
        if s.o.get("wg", 1) == 3: s.w_early("r")
        if wp == 4: s.w_prefetch(94)
        if wp == 6: s.w_sprefetch("r")
        if not s.o.get("bce"):
            a("s_setprio 0"); s.bc(); a("s_setprio BPRIO")
        a("s_branch L_col")
    def z1_gate_issue(s, tag):
        s.a(f"""
s_lshl_b32 s64, s66, 4
s_add_u32 s64, s64, s67
s_lshl_b32 s64, s64, 13
s_lshl_b32 s65, s3, 6
s_add_u32 s69, s64, s65
s_add_u32 s69, s69, {Z1}           ; Z1 + unit*8192 + w*64
""")
    def t_u(s):
        a = s.a
        a(f"L_T:\ns_cmp_ge_u32 s2, {NR0}\ns_cbranch_scc1 L_hz")
        s.hint_zero()
        a(f"""
v_and_b32 v10, 3, v3
v_lshrrev_b32 v11, 2, v3
v_cmp_eq_u32 s[56:57], 3, v10
v_mul_u32_u24 v120, 4160, v10
v_lshl_add_u32 v120, v11, 2, v120
s_lshl_b32 s64, s3, 6
v_add_u32 v120, s64, v120          ; LDS: 4160e + 4q + 64w
v_mul_u32_u24 v121, {PSTR}, v11
v_lshl_add_u32 v121, v10, 4, v121  ; q*PSTR + 16e
""")
        s.b0(); s.bw()
        if s.o.get("wg", 1) == 5:
            if s.o.get("wd0"): a(f"s_sleep {s.o['wd0']}")
            s.w_loads()
        if s.o.get("tce", 1): s.bc()
        wp = s.o.get("wp", 5)
        if s.o.get("wdt"): a(f"s_sleep {s.o['wdt']}")
        if wp < 2: s.w_prefetch(62)
        a(f"""
s_mul_i32 s64, s3, {16*PSTR}
s_lshl_b32 s65, s71, 6
s_add_u32 s64, s64, s65
s_add_u32 s64, s64, {UT}
s_add_u32 s65, s64, {128*PSTR}
""")
        s.stamp("p2")
        a(f"s_setprio BPRIO\ns_waitcnt vmcnt({9 if s.o.get('wg', 1) == 5 else (3 if wp < 2 else 1)})")
        s.stamp(2); s.stamp("p3")
        if s.o.get("stop"): a("s_branch L_exit")
        a("s_barrier")
        for k in range(2):
            for i in range(4): a(f"ds_read_b32 v{96+4*k+i}, v120 offset:{1040*i + 512*k}")
        s.nonce_get(31)
        a(f"""
s_waitcnt lgkmcnt(4)
v_cndmask_b32 v99, v99, v31, s[56:57]
buffer_store_dwordx4 v[96:99], v121, s[32:35], s64 offen sc1
s_cmp_ge_u32 s3, 6
s_cbranch_scc1 L_T_p2
s_waitcnt lgkmcnt(0)
v_cndmask_b32 v103, v103, v31, s[56:57]
buffer_store_dwordx4 v[100:103], v121, s[32:35], s65 offen sc1
L_T_p2:
""")
        if s.o.get("ug", 0): s.hint_send("u", "s71", s.o.get("uw", 7))
        s.stamp(3)
        if s.o.get("tfe", 0): s.t_prep(); a("s_setprio BPRIO")
        a(f"""
s_cmp_lt_u32 s2, {NR0}
s_cbranch_scc1 L_Ty
""")
        s.z1_gate_issue("t")
        if wp in (3, 4): s.w_prefetch(62)
        if wp == 6: s.w_sprefetch("t")
        if wp == 5:
            a(f"""
s_barrier
s_sub_u32 s65, s3, 1
s_cmp_ge_u32 s65, 4
s_cbranch_scc1 L_nwp
s_sub_u32 s64, s67, 8
s_lshl_b32 s64, s64, 2
s_add_u32 s64, s64, s65
s_lshl_b32 s64, s64, 6
s_add_u32 s64, s64, s66
s_mul_i32 s64, s64, 450
v_lshlrev_b32 v8, 7, v1
v_min_u32 v8, 448, v8
v_mul_u32_u24 v9, {16*450}, v2
v_add_u32 v8, v8, v9
buffer_load_ushort v60, v8, s[48:51], s64 offen NTW
buffer_load_ushort v61, v8, s[52:55], s64 offen NTW
L_nwp:
""")
        if s.o.get("wg", 1) < 2:
            a("s_barrier")
            s.w_loads()
        if s.o.get("wg", 1) == 3:
            a("s_barrier")
            s.w_early("t")
        if not s.o.get("tce", 1):
            a("s_setprio 0"); s.bc(); a("s_setprio BPRIO")
    def column(s):
        a = s.a
        a(f"L_col:\ns_setprio {s.o.get('pcol', 2)}")
        s.stamp(4)
        s.g_wait("z1", "s58")
        if s.o.get("zs") == 1: s.stamp(7)
        wg = s.o.get("wg", 1)
        a(f"s_waitcnt vmcnt({8 if wg == 1 else 0})\ns_barrier")
        if s.o.get("zs") == 1: s.stamp(1)
        def zl():
            for j in range(4): a(f"buffer_load_dword v{96+j}, v27, s[32:35], s69 offen offset:{512*j} sc1")
        zl()
        if wg == 2: s.w_loads()
        if wg == 3:
            a("s_cmp_lg_u32 s3, 0\ns_cbranch_scc1 L_wl0"); s.w_loads(); a("s_waitcnt vmcnt(8)\ns_branch L_wl1\nL_wl0:\ns_waitcnt vmcnt(0)\nL_wl1:")
        s.cread([(32, "F8RE"), (36, "F8IM"), (40, "G8RE"), (44, "G8IM")])
        if wg != 3: a(f"s_waitcnt vmcnt({8 if wg == 2 else 0})")
        if s.o.get("zs") == 1: s.stamp(2)
        a("s_branch L_chk_z1\nL_poll_z1:")
        zl()
        a("s_waitcnt vmcnt(0)\nL_chk_z1:")
        s.check("z1", [(96 + j, 27, "s69", 512 * j, "s[62:63]") for j in range(4)])
        s.stamp(5)
        s.mfma(104, 64, 96); s.mfma(108, 68, 96)
        s.pack(104, 108, [120, 121, 122, 123])
        for r in range(4): a(f"ds_write_b32 v28, v{120+r} offset:{768*r}")
        a("s_waitcnt lgkmcnt(0)\ns_barrier\nds_read_b128 v[96:99], v29\ns_waitcnt lgkmcnt(0)")
        s.mfma(104, 32, 96); s.mfma(108, 36, 96)
        a("s_waitcnt vmcnt(0)")
        s.twiddle(104, 108, 16, 20, [96, 97, 98, 99], True)
        s.mfma(104, 40, 96); s.mfma(108, 44, 96)
        s.pack(104, 108, [120, 121, 122, 123])
        a("ds_write_b128 v29, v[120:123]\ns_waitcnt lgkmcnt(0)\ns_barrier")
        for j in range(4): a(f"ds_read_b32 v{96+j}, v28 offset:{768*j}")

        a(f"""
s_lshl_b32 s64, s3, 14
s_lshl_b32 s65, s67, 10
s_add_u32 s64, s64, s65
s_lshl_b32 s65, s66, 6
s_add_u32 s64, s64, s65
s_waitcnt lgkmcnt(0)
""")
        s.mfma(104, 72, 96); s.mfma(108, 76, 96)
        if s.o.get("hp", 0) == 0: s.hint_send("z2", "s58", s.o.get("hw", 0))
        s.pack(104, 108, [120, 121, 122, 123])
        for r in range(4): a(f"v_cndmask_b32 v{120+r}, v{120+r}, v31, s[62:63]")
        for r in range(4):
            a(f"s_add_u32 s65, s64, {Z2 + r*131072}")
            a(f"buffer_store_dword v{120+r}, v24, s[32:35], s65 offen sc1")
        if s.o.get("hp", 0) == 1: s.hint_send("z2", "s58", s.o.get("hw", 0))
        s.stamp(6)
        a(f"s_cmp_ge_u32 s2, {NT0}\ns_cbranch_scc1 L_Ty")
    def row_inv(s):
        a = s.a
        a(f"s_setprio {s.o.get('pinv', 3)}")
        a(f"""
s_lshl_b32 s64, s71, 14
s_lshl_b32 s65, s3, 11
s_add_u32 s69, s64, s65
s_add_u32 s69, s69, {Z2}
""")
        s.cread([(32, "R2BRE"), (36, "R2BIM"), (40, "TWIC"), (44, "TWIS"), (48, "R1B0"), (52, "R1B1")])
        a(f"""
v_cvt_f32_u32 v8, s71
v_fmamk_f32 v12, v8, {f2h(1/2048)}, v4
v_mul_f32 v13, v12, v5
""")
        s.matrix(13, 12, 80, 84, True)
        a(f"""
v_and_b32 v10, 1, v2
v_lshl_add_u32 v11, v10, 4, v1        ; n1 = c + 16(g&1)
v_lshlrev_b32 v30, 5, v11
v_lshrrev_b32 v12, 1, v2
v_lshl_add_u32 v30, v12, 4, v30
v_cmp_lt_u32 vcc, 27, v11
v_mov_b32 v12, 0x10000000
v_cndmask_b32 v30, v30, v12, vcc
v_lshlrev_b32 v5, 8, v2
v_lshl_add_u32 v5, v1, 2, v5
v_cmp_eq_u32 s[28:29], 3, v2
""")
        s.g_wait("z2", "s71")
        a("s_waitcnt lgkmcnt(0)\ns_barrier\nL_poll_z2:")
        for t in range(2):
            for j in range(4): a(f"buffer_load_dword v{96+4*t+j}, v5, s[32:35], s69 offen offset:{1024*t+64*j} sc1")
        a("s_waitcnt vmcnt(0)")
        s.check("z2", [(96 + 4 * t + j, 5, "s69", 1024 * t + 64 * j, "s[62:63]") for t in range(2) for j in range(4)])
        if s.o.get("zs") != 1: s.stamp(7)
        if s.o.get("sb"): a(f"s_sleep {s.o['sb']}")
        pk = s.o.get("pk2", True)
        s.mfma(104, 80, 96); s.mfma(108, 84, 96); s.mfma(112, 80, 100); s.mfma(116, 84, 100)
        s.pack(104, 108, [120, 122, 124, 126]); s.pack(112, 116, [121, 123, 125, 127])
        for r in range(4): a(f"ds_write_b64 v25, {V(120+2*r,2)} offset:{1280*r}")
        a(f"""
s_lshl_b32 s64, s3, 8
s_add_u32 s64, s64, s71
s_mul_i32 s64, s64, 1792
s_add_u32 s64, s64, 896
s_add_u32 s65, s64, {128*1792}
s_waitcnt lgkmcnt(0)
s_barrier
ds_read_b128 v[96:99], v26
ds_read_b128 v[100:103], v26 offset:1280
s_waitcnt lgkmcnt(1)
""")
        s.mfma(104, 96, 32); s.mfma(108, 96, 36)
        a("s_waitcnt lgkmcnt(0)")
        s.mfma(112, 100, 32); s.mfma(116, 100, 36)
        s.twiddle(104, 108, 40, 44, [96, 97, 98, 99], True, packed=pk)
        a("v_cndmask_b32_e64 v99, v99, 0, s[28:29]")
        s.mfma(104, 96, 48); s.mfma(108, 96, 52)
        s.twiddle(112, 116, 40, 44, [100, 101, 102, 103], True, packed=pk)
        a("v_cndmask_b32_e64 v103, v103, 0, s[28:29]")
        s.mfma(112, 100, 48); s.mfma(116, 100, 52)
        for t, (d0, d1, P, so) in enumerate(((104, 108, 120, "s64"), (112, 116, 124, "s65"))):
            a(f"""v_cvt_pk_bf16_f32 v{P}, v{d0}, v{d0+1}
v_cvt_pk_bf16_f32 v{P+1}, v{d0+2}, v{d0+3}
v_cvt_pk_bf16_f32 v{P+2}, v{d1}, v{d1+1}
v_cvt_pk_bf16_f32 v{P+3}, v{d1+2}, v{d1+3}
v_permlane16_swap_b32 v{P}, v{P+2}
v_permlane16_swap_b32 v{P+1}, v{P+3}
buffer_store_dwordx4 {V(P,4)}, v30, s[44:47], {so} offen OUTF""")
        s.hint_rearm("z1")
        s.stamp(8)
        a("s_branch L_exit")
    def t_prep(s):
        a = s.a
        a(f"""
s_setprio 0
s_mul_i32 s29, s71, 14336
s_add_u32 s29, s29, {YT}
s_mul_i32 s72, s59, 1792
s_movk_i32 s73, 840
s_cmp_eq_u32 s59, 1
s_cselect_b32 s59, s73, 448
s_mul_i32 s28, s28, 1792
v_mul_u32_u24 v8, {(1<<20)//56+1}, v0
v_lshrrev_b32 v8, 20, v8
v_mul_u32_u24 v9, 56, v8
v_sub_u32 v9, v0, v9               ; grp0
v_add_u32 v10, 512, v0
v_mul_u32_u24 v11, {(1<<20)//56+1}, v10
v_lshrrev_b32 v11, 20, v11         ; row1
v_mul_u32_u24 v12, 56, v11
v_sub_u32 v12, v10, v12            ; grp1
v_lshlrev_b32 v9, 4, v9
v_lshlrev_b32 v12, 4, v12
global_load_dwordx4 v[112:115], v9, s[16:17]
global_load_dwordx4 v[116:119], v12, s[16:17]
v_min_u32 v11, 15, v11
v_mul_u32_u24 v25, 912, v8
v_add_u32 v25, v25, v9
v_mul_u32_u24 v26, 912, v11
v_add_u32 v26, v26, v12
v_lshl_add_u32 v104, v8, 7, v25
v_lshl_add_u32 v108, v11, 7, v26
ds_read_b128 v[104:107], v104
ds_read_b128 v[108:111], v108
v_mul_u32_u24 v48, s72, v8
v_add_u32 v48, v48, v9
v_mul_u32_u24 v49, s72, v11
v_add_u32 v49, v49, v12
v_mov_b32 v13, 0x10000000
v_cmp_gt_u32 vcc, s59, v0
v_cndmask_b32 v48, v13, v48, vcc
v_cmp_gt_u32 vcc, s59, v10
v_cndmask_b32 v49, v13, v49, vcc
v_and_b32 v10, 3, v0
v_mul_u32_u24 v10, 3648, v10
v_and_b32 v11, 0xfffffffc, v0
v_add_u32 v50, v10, v11
v_lshlrev_b32 v30, 4, v0           ; tid*16
v_cmp_gt_u32 vcc, 384, v0
s_mov_b64 s[30:31], vcc
s_waitcnt vmcnt(0) lgkmcnt(0)
""")
        for it in range(2):
            for j in range(4):
                u, d, o = 104 + 4*it + j, 112 + 4*it + j, 80 + 8*it + 2*j
                a(f"""v_lshlrev_b32 v8, 16, v{u}
v_lshlrev_b32 v9, 16, v{d}
v_and_b32 v10, 0xffff0000, v{u}
v_and_b32 v11, 0xffff0000, v{d}
v_mul_f32 v8, v8, v9
v_mul_f32 v10, v10, v11
v_cvt_pk_bf16_f32 v8, v8, v10
v_lshlrev_b32 v{o}, 16, v8
v_and_b32 v{o+1}, 0xffff0000, v8""")
    def t_y(s):
        a = s.a
        a("L_Ty:")
        if not s.o.get("tfe", 0): s.t_prep()
        a("s_add_u32 s64, s29, 8192\nv_mov_b32 v103, v31")
        a("s_setprio BPRIO")
        s.g_wait("y", "s71")
        a(f"""
s_barrier
L_poll_y:
buffer_load_dwordx4 v[96:99], v30, s[32:35], s29 offen sc1
s_mov_b64 exec, s[30:31]
s_cbranch_execz L_y1
buffer_load_dwordx4 v[100:103], v30, s[32:35], s64 offen sc1
L_y1:
s_mov_b64 exec, -1
s_waitcnt vmcnt(0)
""")
        s.check("y", [(99, 30, "s29", 12, "s[56:57]"), (103, 30, "s64", 12, "s[56:57]")])
        if s.o.get("zs") != 1: s.stamp(7)
        for r in range(4): a(f"ds_write_b32 v50, v{96+r} offset:{912*r}")
        a("s_mov_b64 exec, s[30:31]")
        for r in range(4): a(f"ds_write_b32 v50, v{100+r} offset:{912*r+512}")
        a(f"""
s_mov_b64 exec, -1
s_waitcnt lgkmcnt(0)
s_barrier
ds_read_b128 v[96:99], v25
ds_read_b128 v[100:103], v26
""")
        for it in range(2):
            a(f"s_waitcnt lgkmcnt({1-it})")
            for j in range(4):
                y = 96 + 4*it + j
                a(f"v_lshlrev_b32 v{8+2*j}, 16, v{y}\nv_and_b32 v{9+2*j}, 0xffff0000, v{y}")
            for j in range(4): a(f"v_pk_add_f32 {V(8+2*j,2)}, {V(8+2*j,2)}, {V(80+8*it+2*j,2)}")
            for j in range(4): a(f"v_cvt_pk_bf16_f32 v{104+4*it+j}, v{8+2*j}, v{9+2*j}")
            a(f"buffer_store_dwordx4 {V(104+4*it,4)}, v{48+it}, s[44:47], s28 offen OUTF")
        a(f"""
s_add_u32 s64, s71, s3
s_cmp_lg_u32 s64, 0
s_cbranch_scc1 L_noep
s_mov_b32 s61, {EPOCH}
s_mov_b64 exec, 1
buffer_store_dword v31, off, s[32:35], s61
s_mov_b64 exec, -1
L_noep:""")
        if s.o.get("ug", 0): s.hint_rearm("u")
        s.stamp(8)
        a("s_branch L_exit")
    def cmuls(s, lst):
        for d, x, e, t in lst:
            s.a(f"v_pk_mul_f32 {V(t,2)}, {V(x,2)}, {V(e,2)} op_sel:[1,1] op_sel_hi:[1,0] neg_lo:[1,0]")
        for d, x, e, t in lst:
            s.a(f"v_pk_fma_f32 {V(d,2)}, {V(x,2)}, {V(e,2)}, {V(t,2)} op_sel_hi:[0,1,1]")
    def exp2_bf16(s, pairs):
        L_HI = 1.4426950216293335; L_LO = 1.4426950408889634 - L_HI
        for fmt in (f"v_mul_f32 v{{t}}, {f2h(L_HI)}, v{{x}}", "v_exp_f32 v{d}, v{t}", "v_fma_f32 v{u}, v{x}, s71, -v{t}",
                    f"v_fmac_f32 v{{u}}, {f2h(L_LO)}, v{{x}}", f"v_mul_f32 v{{u}}, {f2h(math.log(2))}, v{{u}}",
                    "v_fma_f32 v{d}, v{d}, v{u}, v{d}", "v_cvt_pk_bf16_f32 v{d}, v{d}, v{d}", "v_and_b32 v{d}, 0xffff0000, v{d}"):
            for d, x, t in pairs: s.a(fmt.format(d=d, x=x, t=t, u=t + 1))
    def a_path(s):
        a = s.a
        a("L_A:")
        if s.o.get("ap", 1): a(f"s_setprio {s.o.get('ap', 1)}")
        s.stamp(1); s.stamp("p1")
        s.a("v_lshrrev_b32 v32, 6, v0\nv_and_b32 v3, 63, v0\nv_readfirstlane_b32 s3, v32\nv_and_b32 v1, 15, v0\nv_bfe_u32 v2, v0, 4, 2\ns_mov_b32 s70, 0")
        s.srd(32, "0x10000000")
        s.nonce_issue(115)
        a(f"""
s_lshr_b32 s67, s3, 2              ; ch
s_and_b32 s68, s3, 3               ; q4
v_lshlrev_b32 v25, 4, v3           ; 16*lane
""")
        nl = 1
        def addr_pairs(fl, dst):
            for i in range(0, len(fl), 2):
                a(f"v_cvt_pk_bf16_f32 v{fl[i]}, v{fl[i]}, v{fl[min(i+1, len(fl)-1)]}")
            for i in range(0, len(fl), 2):
                a(f"v_lshlrev_b32 v{fl[i]}, 1, v{fl[i]}")
            for i in range(len(fl)):
                a(f"v_add_u32_sdwa v{dst[i]}, s64, v{fl[i & ~1]} dst_sel:DWORD dst_unused:UNUSED_PAD src0_sel:DWORD src1_sel:WORD_{i & 1}")
        def AG():
            a(f"""
s_mul_i32 s72, s67, {KCH}
s_add_u32 s72, s72, {KC}
s_sub_u32 s64, s72, {2*KB}
v_and_b32 v33, 255, v0
v_lshlrev_b32 v33, 3, v33
v_sub_u32 v33, 2047, v33
v_cvt_f32_i32 v40, v33             ; lag of element 0
""")
            for e in range(1, 9):
                a(f"v_add_f32 v{40+e}, {f2h(-float(e))}, v40")
            a(f"v_mov_b32 v34, {f2h(2064.0)}")
            for e in (8,):
                a(f"v_cmp_gt_f32 vcc, 0, v{40+e}\nv_cndmask_b32 v{40+e}, v{40+e}, v34, vcc")
            addr_pairs(list(range(40, 49)), list(range(8, 17)))
            a("v_max_i32 v15, s72, v15")
        def AS():
            a(f"""
s_mul_i32 s72, s67, {KCH}
s_add_u32 s72, s72, {KC}
s_sub_u32 s64, s72, {2*KB}
""")
            a(f"""
v_lshrrev_b32 v34, 1, v2           ; g>>1
v_and_b32 v35, 1, v2               ; g&1
s_cmp_eq_u32 s68, 1
s_cbranch_scc1 L_sc1
s_cmp_eq_u32 s68, 2
s_cbranch_scc1 L_sc2
v_lshlrev_b32 v36, 7, v34
v_lshl_add_u32 v36, v35, 2, v36    ; 128(g>>1) + 4(g&1) + r
v_mov_b32 v37, 1
v_mov_b32 v38, 2
s_branch L_scd
L_sc1:
v_lshlrev_b32 v36, 7, v2
v_add_u32 v36, 256, v36            ; g<2: 256+128g + 2r
v_lshlrev_b32 v37, 8, v2           ; g>=2: 256g + 128(r>>1) + 4(r&1)
v_cmp_lt_u32 vcc, 1, v2
v_cndmask_b32 v36, v36, v37, vcc
v_cndmask_b32_e64 v37, 2, 4, vcc
v_mov_b32 v38, 128
v_cndmask_b32 v38, 4, v38, vcc
s_branch L_scd
L_sc2:
v_lshlrev_b32 v36, 9, v2
v_add_u32 v36, 1024, v36           ; 1024 + 128(4g+r)
v_mov_b32 v37, 128
v_mov_b32 v38, 256
L_scd:
v_lshl_add_u32 v36, v1, 3, v36
v_add_u32 v37, v36, v37
v_sub_u32 v39, v37, v36
v_add_u32 v38, v36, v38
v_add_u32 v39, v38, v39
v_mov_b32 v34, 2080
v_cmp_lt_u32 vcc, 2048, v36
v_cndmask_b32 v36, v36, v34, vcc
v_cmp_lt_u32 vcc, 2048, v37
v_cndmask_b32 v37, v37, v34, vcc
v_cmp_lt_u32 vcc, 2048, v38
v_cndmask_b32 v38, v38, v34, vcc
v_cmp_lt_u32 vcc, 2048, v39
v_cndmask_b32 v39, v39, v34, vcc
v_cvt_f32_u32 v40, v36
v_cvt_f32_u32 v41, v37
v_cvt_f32_u32 v42, v38
v_cvt_f32_u32 v43, v39
""")
            addr_pairs([40, 41, 42, 43], [20, 21, 22, 23])
            a("v_max_i32 v20, s72, v20")
        def AC():
            a(f"""
v_cmp_eq_u32 s[62:63], 15, v1
s_mul_i32 s69, s67, {CHK}
s_add_u32 s64, s69, {KCP}
v_and_b32 v26, 255, v0
v_lshl_add_u32 v26, v26, 4, s64
v_add_u32 v34, 1, v1
v_and_b32 v34, 1, v34              ; s = (i+1)&1
v_mul_u32_u24 v35, 4158, v34       ; s*4160 - 2s
v_lshlrev_b32 v36, 4, v2
v_lshlrev_b32 v37, 1, v1
v_sub_u32 v36, v36, v37            ; 16g - 2i
s_bfe_u32 s73, s3, 0x10001
s_and_b32 s64, s3, 1
s_lshl_b32 s64, s64, 8              ; 64*4h
s_mul_i32 s65, s73, {CHK}
s_sub_u32 s65, s65, s64
s_add_u32 s72, s65, {KCP + 2*2031 - 192 - 512*7}
v_add3_u32 v27, v35, v36, s72      ; vA
v_add_u32 v17, 1024, v27
v_add_u32 v18, 2048, v27
v_add_u32 v19, 3072, v27
v_lshlrev_b32 v28, 5, v1
v_lshl_add_u32 v28, v2, 4, v28
s_mul_i32 s72, s73, {CHU}
s_sub_u32 s72, s72, s64
s_add_u32 s72, s72, {UA + 448 - 192}
v_add_u32 v28, s72, v28            ; vB
s_lshl_b32 s64, s3, 9
s_add_u32 s64, s64, {UA + 480}
v_lshl_add_u32 v30, v3, 3, s64
v_and_b32 v34, 3, v3
v_cmp_eq_u32 s[28:29], 3, v34
v_cmp_gt_u32 s[30:31], 2, v34
v_lshrrev_b32 v35, 2, v3
v_lshlrev_b32 v35, 8, v35
v_lshl_add_u32 v35, v34, 7, v35
v_add_u32 v113, {UA + 480 + 30}, v35
s_mul_i32 s58, s66, {PSTR}
s_add_u32 s58, s58, {UT}
s_lshl_b32 s64, s3, 10
s_add_u32 s57, s58, s64
s_add_u32 s55, s58, 8192
s_cmp_eq_u32 s3, 7
s_cselect_b64 s[52:53], s[28:29], 0
s_mov_b32 s50, 0x05040100
s_mov_b32 s51, 0x07060302
""")
        a(f"""
s_mul_i32 s59, s3, {WV}
v_mul_u32_u24 v24, {RS}, v1
v_lshl_add_u32 v24, v2, 4, v24
v_add_u32 v24, s59, v24
s_mov_b32 s71, {f2h(1.4426950216293335)}
s_mov_b32 m0, s59
""")
        def uloads():
            u = a.uid()
            a(f"""buffer_load_dwordx4 v[116:119], v25, s[32:35], s57 offen sc1
s_cmp_lg_u32 s3, 7
s_cbranch_scc1 L_ul{u}
buffer_load_dwordx4 v[120:123], v25, s[32:35], s55 offen sc1
L_ul{u}:""")
        early = s.o.get("ae", "SGC")
        for ch in early: {"S": AS, "G": AG, "C": AC}[ch]()
        s.stamp("p2")
        a(f"s_waitcnt vmcnt({nl})")
        s.stamp("p3")
        a("s_cmp_lg_u32 s3, 7\ns_cbranch_scc1 L_a_w\ns_waitcnt vmcnt(5)\nL_a_w:") if False else None
        if s.o.get("bal", 1): a(f"s_cmp_eq_u32 s67, 0\ns_cbranch_scc1 L_bal0\ns_setprio {s.o.get('ap', 1) + 1}\nL_bal0:")
        s.stamp(2); s.stamp("k0")
        if s.o.get("stop"): a("s_branch L_exit")
        s.exp2_bf16([(31, 114, 34), (32, 4, 36)])
        a(f"""
v_mul_f32 v33, v5, v31             ; zi
v_mul_f32 v32, v32, v31            ; -zr
v_mul_f32 v33, 0.15915494, v33     ; revolutions
v_mul_f32 v32, {f2h(-1.4426950408889634)}, v32     ; zr*log2e
v_add_f32 v31, v31, v31
v_mul_f32 v35, {f2h(8.0)}, v33
v_mul_f32 v37, {f2h(128.0)}, v33
v_mul_f32 v34, {f2h(8.0)}, v32
v_mul_f32 v36, {f2h(128.0)}, v32
v_fract_f32 v35, v35
v_fract_f32 v37, v37
v_fract_f32 v33, v33
v_exp_f32 v34, v34
v_cos_f32 v58, v35
v_sin_f32 v59, v35
v_exp_f32 v36, v36
v_cos_f32 v60, v37
v_sin_f32 v61, v37
v_exp_f32 v32, v32
v_cos_f32 v56, v33
v_sin_f32 v57, v33
v_mul_f32 v42, v6, v31
v_mul_f32 v43, v7, v31             ; G0 = 2C dt
v_mul_f32 v58, v58, v34
v_mul_f32_e64 v59, v59, -v34       ; conj E8
v_mul_f32 v60, v60, v36
v_mul_f32 v61, v61, v36
v_mul_f32 v56, v56, v32
v_mul_f32 v57, v57, v32
""")
        s.stamp("k1")
        E1, E8, E128, E2, E4 = 56, 58, 60, 38, 40
        pkr = [54, 55, 62, 63, 4, 5, 6, 7]
        st = {"k": 0}
        def emit(lst):
            ps = []
            for x, buf, row in lst:
                p = pkr[st["k"] % 8]; st["k"] += 1; ps.append(p)
                a(f"v_cvt_pk_bf16_f32 v{p}, v{x}, v{x+1}")
            for p, (x, buf, row) in zip(ps, lst):
                a(f"ds_write_addtid_b32 v{p} offset:{buf*BUF + row*RS}")
        X0, X1, XV, XW, T0, T1, T2, T3 = 42, 44, 46, 32, 48, 50, 52, 108
        GA, GB = 34, 36
        E16 = 110
        a(f"v_mov_b32 v7, 0x3f80\nds_write_addtid_b32 v7 offset:0")
        s.cmuls([(X1, X0, E128, T1), (E16, E8, E8, T2)])
        emit([(E8, 0, 1), (X0, 1, 0)])
        s.cmuls([(GA, X1, E128, T0), (XW, E16, E8, T3), (XV, E16, E16, T2)])
        emit([(X1, 1, 8), (E16, 0, 2), (XW, 0, 3), (XV, 0, 4)])
        for j in range(1, 8):
            l = [(X0, X0, E1, T0), (X1, X1, E1, T1)]
            e = [(X0, 1, j), (X1, 1, 8 + j)]
            if j <= 6: l.append((XW, XW, E16, T3)); e.append((XW, 0, 3 + 2*j))
            if j <= 5: l.append((XV, XV, E16, T2)); e.append((XV, 0, 4 + 2*j))
            if j == 6: l.append((E2, E1, E1, T2))
            if j == 7: l += [(GB, GA, E128, T2), (E4, E2, E2, T3)]
            s.cmuls(l); emit(e)
        s.stamp("k2")
        if s.o.get("bal", 1): a(f"s_setprio {s.o.get('ap', 1)}")
        a("s_waitcnt lgkmcnt(0)")
        s.stamp("k3")
        for ks in range(4): a(f"ds_read_b128 {V(64+4*ks,4)}, v24 offset:{64*ks}")
        for ks in range(4): a(f"ds_read_b128 {V(80+4*ks,4)}, v24 offset:{BUF+64*ks}")
        s.cmuls([(X0, GA, E2, T0), (X1, GB, E2, T1), (XV, GB, E128, T2), (E16, E128, E128, T3)])
        a("s_waitcnt lgkmcnt(4)")
        emit([(GA, 0, 0), (GB, 0, 4), (X0, 0, 1), (X1, 0, 5), (XV, 0, 8)])
        s.cmuls([(X0, X0, E2, T0), (X1, X1, E2, T1), (XW, XV, E128, T2), (GA, XV, E4, T3)])
        a("s_waitcnt lgkmcnt(5)")
        for ks in range(4): s.mfma(96, 80+4*ks, 64+4*ks, None if ks == 0 else 96)
        emit([(X0, 0, 2), (X1, 0, 6), (XW, 0, 10), (GA, 0, 9)])
        s.stamp("k4")
        ug = s.o.get("ug", 0) and not s.o.get("aonly")
        a("s_waitcnt vmcnt(0)")
        s.nonce_get(115)
        s.cmuls([(X0, X0, E2, T0), (X1, X1, E2, T1), (XV, XV, E16, T2), (GA, XW, E4, T3)])
        emit([(X0, 0, 3), (X1, 0, 7), (XV, 0, 12), (GA, 0, 11)])
        s.cmuls([(XW, XW, E16, T0), (GA, XV, E4, T1), (XV, XV, E16, T2)])
        emit([(XW, 0, 14), (GA, 0, 13), (XV, 1, 0)])
        s.cmuls([(GB, XW, E4, T0), (XW, XW, E16, T1), (XV, XV, E16, T2)])
        emit([(GB, 0, 15), (XW, 1, 1), (XV, 1, 2)])
        s.stamp("k5")
        if s.o.get("ul", 1) == 2: uloads()
        a("s_waitcnt lgkmcnt(2)")
        for ks in range(4): a(f"ds_read_b128 {V(80+4*ks,4)}, v24 offset:{64*ks}")
        for h in range(3):
            s.cmuls([(XW, XW, E16, T0), (XV, XV, E16, T1)])
            emit([(XW, 1, 3 + 2*h), (XV, 1, 4 + 2*h)])
            if h == 1:
                a("s_waitcnt lgkmcnt(4)")
                for ks in range(4): s.mfma(100, 80+4*ks, 64+4*ks, None if ks == 0 else 100)
        a("s_waitcnt lgkmcnt(0)")
        for ks in range(4): a(f"ds_read_b128 {V(80+4*ks,4)}, v24 offset:{BUF+64*ks}")
        s.stamp("k6")
        if s.o.get("ul", 1) == 3: uloads()
        a("v_add_u32 v32, s59, v25")
        a(f"ds_write_b128 v32, v[96:99]\nds_write_b128 v32, v[100:103] offset:1024")
        a("s_waitcnt lgkmcnt(2)")
        for ks in range(4): s.mfma(104, 80+4*ks, 64+4*ks, None if ks == 0 else 104)
        a(f"ds_write_b128 v32, v[104:107] offset:2048")
        s.stamp(8); s.stamp("k7"); s.stamp("p4")
        for ch in "SC":
            if ch not in early: {"S": AS, "C": AC}[ch]()
        a("s_waitcnt lgkmcnt(0)\ns_barrier")
        a(f"s_setprio {s.o.get('pe', 3)}")
        s.stamp(3); s.stamp("k8"); s.stamp("e0")
        if s.o.get("ul", 1) == 0: uloads()
        a(f"""
s_cmp_eq_u32 s68, 3
s_cbranch_scc1 L_zp
s_lshl_b32 s72, s68, 10
s_mul_i32 s73, s67, {4*WV}
s_add_u32 s72, s72, s73
v_add_u32 v32, s72, v25
ds_read_b128 v[96:99], v32
ds_read_b128 v[100:103], v32 offset:{WV}
ds_read_b128 v[104:107], v32 offset:{2*WV}
ds_read_b128 v[80:83], v32 offset:{3*WV}
s_waitcnt lgkmcnt(2)
v_pk_add_f32 v[96:97], v[96:97], v[100:101]
v_pk_add_f32 v[98:99], v[98:99], v[102:103]
s_waitcnt lgkmcnt(0)
v_pk_add_f32 v[104:105], v[104:105], v[80:81]
v_pk_add_f32 v[106:107], v[106:107], v[82:83]
v_pk_add_f32 v[96:97], v[96:97], v[104:105]
v_pk_add_f32 v[98:99], v[98:99], v[106:107]
v_cvt_pk_bf16_f32 v96, v96, v97
v_cvt_pk_bf16_f32 v98, v98, v99
ds_write_b16 v20, v96
ds_write_b16_d16_hi v21, v96
ds_write_b16 v22, v98
ds_write_b16_d16_hi v23, v98
s_branch L_zpd
L_zp:
v_mov_b32 v96, 0
v_mov_b32 v97, 0
v_mov_b32 v98, 0
v_mov_b32 v99, 0
s_mul_i32 s72, s67, {KCH}
s_add_u32 s72, s72, {KC + 2*(0x4501 - KB)}
v_mov_b32 v33, s72
ds_write_b16 v33, v96
s_mul_i32 s72, s67, {CHU}
s_add_u32 s72, s72, {UA}
v_add_u32 v33, s72, v25
s_mov_b64 exec, 0x3fffffff
ds_write_b128 v33, v[96:99]          ; zero pad in front of u
s_mov_b64 exec, -1
v_lshrrev_b32 v64, 1, v3
v_mul_u32_u24 v64, 4160, v64
v_and_b32 v65, 1, v3
v_lshl_add_u32 v64, v65, 4, v64
s_add_u32 s72, s69, {KCP + 4096}
v_add_u32 v64, s72, v64""")
        if ug: s.g_wait("u", "s66", wave=7)
        a("L_zpd:")
        if s.o.get("ul", 1) == 1 and not ug: uloads()
        if "G" not in early: AG()
        a("s_waitcnt lgkmcnt(0)")
        s.stamp("e1")
        a("s_barrier")
        s.stamp("e2")
        if ug: uloads()
        for e in range(9): a(f"ds_read_u16 v{32+e}, v{8+e}")
        a(f"""
s_cmp_lg_u32 s68, 3
s_cbranch_scc1 L_nzt
s_mov_b64 exec, 0xf
ds_write_b128 v64, v[96:99]
s_mov_b64 exec, -1
L_nzt:
s_waitcnt lgkmcnt(0)
""")
        for cp in range(2):
            for j in range(4):
                x = cp + 2*j
                a(f"v_lshl_or_b32 v{48+4*cp+j}, v{33+x}, 16, v{32+x}")
            a(f"ds_write_b128 v26, {V(48+4*cp,4)} offset:{4160*cp}")
        s.stamp("e3")
        a("s_branch L_chk_u\nL_poll_u:")
        uloads()
        a("L_chk_u:\ns_waitcnt vmcnt(0)")
        s.check("u", [(119, 25, "s57", 12, "s[28:29]"), (123, 25, "s55", 12, "s[52:53]")])
        s.stamp(4); s.stamp("e4")
        a(f"""v_perm_b32 v56, v117, v116, s50
v_perm_b32 v57, v119, v118, s50
v_perm_b32 v58, v117, v116, s51
v_perm_b32 v59, v119, v118, s51
ds_write_b64 v30, v[56:57]
ds_write_b64 v30, v[58:59] offset:{CHU}
s_waitcnt lgkmcnt(0)
s_barrier
s_cmp_lg_u32 s3, 7
s_cbranch_scc1 L_nlo
s_mov_b64 exec, s[30:31]""")
        for k in range(4):
            a(f"ds_write_b16 v113, v{120+k} offset:{32*k}\nds_write_b16_d16_hi v113, v{120+k} offset:{32*k + CHU}")
        a("s_mov_b64 exec, -1\ns_waitcnt lgkmcnt(0)\nL_nlo:\ns_barrier")
        fill_w = f"""v_lshrrev_b32 v4, 1, v1
v_and_b32 v4, 3, v4
v_xor_b32 v4, v4, v2
v_lshlrev_b32 v4, 4, v4
v_lshl_add_u32 v4, v1, 6, v4
s_lshl_b32 s64, s3, 13
s_add_u32 s65, s64, {XP[1] - 8192}
s_cmp_eq_u32 s3, 0
s_cselect_b32 s64, 0, s65
v_add_u32 v4, s64, v4""".split("\n")
        fill_r = f"""v_lshrrev_b32 v5, 3, v3
v_xor_b32 v5, v5, v3
v_and_b32 v5, 3, v5
v_lshlrev_b32 v5, 4, v5
v_and_b32 v6, 0x3c, v3
v_lshl_add_u32 v5, v6, 4, v5
s_lshl_b32 s64, s3, 10
v_add_u32 v5, s64, v5
v_lshrrev_b32 v6, 2, v3
v_mul_u32_u24 v6, 14336, v6
v_and_b32 v7, 3, v3
v_lshl_add_u32 v6, v7, 4, v6
s_mul_i32 s64, s3, {16*14336}
s_lshl_b32 s65, s66, 6
s_add_u32 s64, s64, s65
s_add_u32 s64, s64, {YT}
v_cmp_eq_u32 s[56:57], 3, v7
v_mov_b32 v11, s60
v_and_b32 v9, 7, v1
v_and_b32 v12, 1, v2
v_lshl_add_u32 v9, v12, 3, v9
v_lshrrev_b32 v12, 1, v9
v_and_b32 v12, 3, v12
v_xor_b32 v12, 3, v12
v_lshlrev_b32 v12, 4, v12
v_lshl_add_u32 v9, v9, 6, v12
s_lshl_b32 s72, s3, 10
s_add_u32 s72, s72, 12
v_add_u32 v9, s72, v9
v_mul_u32_u24 v10, 14336, v2
v_lshl_add_u32 v10, v1, 2, v10
s_mul_i32 s72, s3, {2*14336}
s_add_u32 s65, s65, s72
s_add_u32 s65, s65, {YT + 128*14336}""".split("\n")
        if s.o.get("sa"): a(f"s_sleep {s.o['sa']}")
        s.stamp(5); s.stamp("e5")
        a(f"s_setprio {s.o.get('pc', 1)}")
        a("s_cmp_lt_u32 s3, 4\ns_cbranch_scc1 L_conv")
        a("\n".join(fill_r))
        s.stamp(6); s.stamp("e6")
        a("s_branch L_tC\nL_conv:")
        filler = fill_w + fill_r
        free = [64 + 4*i for i in range(16)]
        Areg, Breg = {}, {}
        pend = []
        q = []
        exports = []
        NC = 4
        def assign(cl, d):
            off = 64 * (NC - 1 - cl)
            ra = free.pop(0); rb = free.pop(0)
            Areg[(cl, d)] = ra; Breg[(cl, d)] = rb
            q.append(((cl, d), f"ds_read_b128 {V(rb,4)}, v28 offset:{512*d + off}"))
            vb = (27, 17, 18, 19)[(7 - d) >> 1]; o = 128 * ((7 - d) & 1) + off // 4
            q.append(((cl, d), f"ds_read2_b32 {V(ra,2)}, v{vb} offset0:{o} offset1:{o+1}"))
            q.append(((cl, d), f"ds_read2_b32 {V(ra+2,2)}, v{vb} offset0:{o+2} offset1:{o+3}"))
        def issue1():
            k, t = q.pop(0); a(t); pend.append(k)
        def wait(cl, d):
            while any(k == (cl, d) for k, _ in q): issue1()
            if (cl, d) in pend:
                idx = max(i for i, k in enumerate(pend) if k == (cl, d))
                a(f"s_waitcnt lgkmcnt({len(pend) - 1 - idx})")
                del pend[:idx + 1]
        first = set(); n = [0]
        left = {T: (T + 1) * NC for T in range(8)}
        def export(T):
            a(f"ds_write_b128 v4, {V(32+4*T,4)} offset:{1024*T}"); pend.append("x")
        def mm(cl, p, qq):
            T = p + qq
            s.mfma(32 + 4*T, Areg[(cl, p)], Breg[(cl, qq)], None if T not in first else 32 + 4*T)
            first.add(T); n[0] += 1
            left[T] -= 1
            if left[T] == 0: exports.append((n[0] + 5, T))
            if q and len(pend) < 15: issue1()
            elif exports and exports[0][0] <= n[0] and len(pend) < 15: export(exports.pop(0)[1])
            elif filler:
                a(filler.pop(0))
                while filler and filler[0].startswith("s_"): a(filler.pop(0))
        todo = [(cl, d) for cl in range(NC) for d in range(8)]
        def refill():
            while todo and len(free) >= 2: assign(*todo.pop(0))
        refill()
        for _ in range(9): issue1()
        for cl in range(NC):
            for d in range(8):
                wait(cl, d)
                prs = [(d, j) for j in range(d) if d + j <= 7] + [(j, d) for j in range(d) if d + j <= 7]
                if 2*d <= 7: prs.append((d, d))
                if cl == NC - 1: prs.sort(key=lambda x: x[0] + x[1])
                for p, qq in prs: mm(cl, p, qq)
                if d >= 4:
                    for k in (7 - d, d):
                        free.append(Areg[(cl, k)]); free.append(Breg[(cl, k)])
                    refill()
        assert not todo and not q and not filler
        s.stamp(6); s.stamp("e6")
        for _, T in exports: export(T)
        a("L_tC:\ns_waitcnt lgkmcnt(0)")
        s.stamp("e7")
        a("s_barrier")
        s.stamp("e8")
        for qq in range(4): a(f"ds_read_b128 {V(64+8*qq,4)}, v5 offset:{XP[qq]}")
        for qq in range(4): a(f"ds_read_b32 v{100+qq}, v9 offset:{XP[qq]}")
        def add4(d, x):
            a(f"v_pk_add_f32 {V(d,2)}, {V(d,2)}, {V(x,2)}\nv_pk_add_f32 {V(d+2,2)}, {V(d+2,2)}, {V(x+2,2)}")
        a("s_waitcnt lgkmcnt(6)"); add4(64, 72)
        a("s_waitcnt lgkmcnt(4)"); add4(80, 88)
        for r in range(4): a(f"v_cvt_pk_bf16_f32 v{96+r}, v{64+r}, v{80+r}")
        a("""v_cndmask_b32 v99, v99, v11, s[56:57]
buffer_store_dwordx4 v[96:99], v6, s[32:35], s64 offen sc1
s_waitcnt lgkmcnt(0)""")
        s.hint_send("y", "s66", s.o.get("yw", 0))
        a("""v_add_f32 v100, v100, v101
v_add_f32 v102, v102, v103
v_cvt_pk_bf16_f32 v100, v100, v102
v_cndmask_b32 v100, v100, v11, s[62:63]
s_mov_b32 exec_hi, 0
buffer_store_dword v100, v10, s[32:35], s65 offen sc1
s_mov_b64 exec, -1""")
        s.stamp(7); s.stamp("e9")
    def table(s):
        T = tables.b_tables()
        buf = np.zeros(TB_SIZE // 4, np.uint32)
        for n, off in TB.items(): buf[off // 4: off // 4 + 256] = T[n].reshape(-1)
        out = [".p2align 8", ".type L_tbl,@object", "L_tbl:"]
        for i in range(0, len(buf), 8):
            out.append(".long " + ",".join(("0x%x" % x) if x else "0" for x in buf[i:i + 8]))
        out.append("L_tbl_end:")
        out.append(f".size L_tbl, {TB_SIZE}")
        return "\n".join(out)
    def build(s):
        a = s.a
        hdr = open("concat_heads__ssm_conv_s4d__spectral_gfnet__prompt.s.ref").read().split("; Override launch")[0]
        a.raw(hdr + f"; @launch grid=({NWG},1,1) block=(512,1,1) lds={LDS_BYTES}")
        a.raw(f'.amdgcn_target "amdgcn-amd-amdhsa--gfx950"\n.text\n.globl {KNAME}\n.p2align 8\n.type {KNAME},@function\n{KNAME}:')
        s.entry(); s.row_s1(); s.t_u(); s.column(); s.row_inv(); s.t_y(); s.a_path()
        a("L_exit:")
        s.stamp(9)
        s.stamp_flush()
        a("L_end:\ns_endpgm")
        a.raw(s.table())
        a.raw(f""".section .rodata,"a"
.p2align 6
.amdhsa_kernel {KNAME}
  .amdhsa_next_free_vgpr 128
  .amdhsa_next_free_sgpr 102
  .amdhsa_accum_offset 128
  .amdhsa_group_segment_fixed_size 0
  .amdhsa_kernarg_size 104
  .amdhsa_user_sgpr_count 2
  .amdhsa_user_sgpr_kernarg_segment_ptr 1
  .amdhsa_system_sgpr_workgroup_id_x 1
.end_amdhsa_kernel""")
        return a.text().replace("BPRIO", str(s.o.get("bp", 3))).replace("    REMAP\n", {0: "", 1: "    s_add_u32 s64, s2, 272\n    s_sub_u32 s2, s2, 224\n    s_cselect_b32 s2, s64, s2\n",
            2: "    s_add_u32 s64, s2, 128\n    s_sub_u32 s65, s2, 352\n    s_cmp_lt_u32 s2, 16\n    s_cselect_b32 s64, s2, s64\n    s_cmp_ge_u32 s2, 368\n    s_cselect_b32 s2, s65, s64\n"}[s.o.get("ord", 0)]).replace("    AONLY\n", "    s_endpgm\n" if s.o.get("aonly") else "").replace(" NTC", " nt" if s.o.get("ntc") else "").replace(" NTE", " nt" if s.o.get("nte") else "").replace(" NTP", " nt" if s.o.get("ntp") else "").replace(" NTF", " nt" if s.o.get("nt", 0) else "").replace(" NTW", " nt" if s.o.get("ntw", 0) else "").replace(" NTG", " nt" if s.o.get("ntg", 0) else "").replace(" OUTF", (" " + s.o["outf"]) if s.o.get("outf") else "")
if __name__ == "__main__":
    out = sys.argv[1]; stamps = len(sys.argv) > 2 and sys.argv[2] == "1"
    opts = json.loads(sys.argv[3]) if len(sys.argv) > 3 else {}
    g = G(stamps, opts); t = g.build(); open(out, "w").write(t)
    print("lines", t.count("\n"), "bytes", len(t), "nops", g.a.nops)
```

```python
import sys, math, json
import numpy as np
from asmlib import Asm, f2h
import tables
KNAME = "concat_heads__ssm_conv_s4d__spectral_gfnet__prompt_kernel"
Z1, Z2, UT, YT, STAMP = 0x010000, 0x220000, 0x430000, 0x640000, 0x1000000
EPOCH = 0x630000
HB = {'z1': 0x900000, 'u': 0x980000, 'z2': 0xA00000, 'y': 0xA80000}; HP = {'z1': 128, 'u': 144, 'z2': 256, 'y': 224}
CB = {'z1': 0x900000, 'z2': 0x920000, 'y': 0x940000, 'u': 0x960000}; EARLY = ('z1', 'u'); CT_ = {'z1': 16, 'z2': 32, 'y': 28, 'u': 18}
PSTR = 9216
NR0, NT0, NA0, NWG = 16, 144, 272, 496
LDS_BYTES = 78336
SPIN_MAX = 200000
WV, BUF, RS = 9216, 4608, 288
KC, KCH = 3072, 3072
KB = 0x3F7F
ZS = 0x4502 - KB
KCP, CHK, UA, CHU = 9216, 8320, 69120, 4608
XP = [0, 43008, 51200, 59392]
TB = {n: 1024 * i for i, n in enumerate(["COS28", "NSIN28", "R2RE", "R2IM", "TWRC", "TWRS", "F8RE", "F8IM", "G8RE", "G8IM",
                                          "R2BRE", "R2BIM", "TWIC", "TWIS", "R1B0", "R1B1"])}
TB_SIZE = 16384
T1, EB, CT = 16896, 37376, 49664

def V(a, n=1): return f"v{a}" if n == 1 else f"v[{a}:{a+n-1}]"
def S(a, n=1): return f"s{a}" if n == 1 else f"s[{a}:{a+n-1}]"

class G:
    def __init__(s, stamps=False, opts=None):
        s.a = Asm(); s.stamps = stamps; s.o = opts or {}
    def stamp(s, i):
        if not s.stamps: return
        prof = s.o.get("prof")
        if prof:
            if isinstance(i, str):
                if i[:len(prof)] == prof: s.a(f"s_memtime {S(80+2*int(i[len(prof):]),2)}")
            return
        if isinstance(i, int): s.a(f"s_memrealtime {S(80+2*i,2)}")
    def stamp_flush(s):
        if not s.stamps: return
        a = s.a
        if s.o.get("dbg"):
            a("""s_load_dwordx2 s[100:101], s[0:1], 88
s_waitcnt lgkmcnt(0) vmcnt(0)
s_mov_b64 exec, 1""")
            def mx(slot, sreg, inv=False):
                if inv: a(f"s_not_b32 s64, {sreg}"); sreg = "s64"
                a(f"v_mov_b32 v4, {sreg}\nv_mov_b32 v5, {4*slot}\nglobal_atomic_umax v5, v4, s[100:101] sc1")
            st = lambda i: f"s{80+2*i}"
            mx(0, st(0), True)
            a(f"s_cmp_ge_u32 s2, {NA0}\ns_cbranch_scc1 L_dA\ns_cmp_ge_u32 s2, {NT0}\ns_cbranch_scc1 L_dT\ns_cmp_lt_u32 s2, {NR0}\ns_cbranch_scc1 L_dE")
            for k, i in enumerate((0, 2, 3, 5, 9)): mx(1 + k, st(i))
            a("s_branch L_dE\nL_dT:")
            for k, i in enumerate((3, 6, 7, 9)): mx(6 + k, st(i))
            a("s_branch L_dE\nL_dA:")
            for k, i in enumerate((0, 2, 3, 5, 6, 7)): mx(10 + k, st(i))
            a("L_dE:\ns_waitcnt vmcnt(0)")
            return
        a("s_waitcnt lgkmcnt(0) vmcnt(0)")
        for i in range(10): a(f"v_mov_b32 v{4+i}, s{80+2*i}")
        a(f"""v_mov_b32 v14, 0
v_mov_b32 v15, s70
v_mov_b32 v2, 0
s_lshl_b32 s64, s2, 3
s_add_u32 s64, s64, s3
s_lshl_b32 s64, s64, 6
s_add_u32 s64, s64, {STAMP}
buffer_store_dwordx4 v[4:7], v2, s[32:35], s64 offen
buffer_store_dwordx4 v[8:11], v2, s[32:35], s64 offen offset:16
buffer_store_dwordx4 v[12:15], v2, s[32:35], s64 offen offset:32
s_waitcnt vmcnt(0)""")
    def srd(s, base, size):
        s.a(f"s_mov_b32 s{base+2}, {size}\ns_mov_b32 s{base+3}, 0x20000")
    def mfma(s, d, A, B, c=None):
        s.a(f"v_mfma_f32_16x16x32_bf16 {V(d,4)}, {V(A,4)}, {V(B,4)}, {'0' if c is None else V(c,4)}")
    def twiddle(s, dre, dim, co, si, P, conj, T=8, packed=False):
        a = s.a
        if packed:
            for h in (0, 2):
                a(f"v_pk_mul_f32 {V(T+h,2)}, {V(dim+h,2)}, {V(si+h,2)}")
                a(f"v_pk_mul_f32 {V(T+4+h,2)}, {V(dre+h,2)}, {V(si+h,2)}")
            for h in (0, 2):
                n = " neg_lo:[0,0,1] neg_hi:[0,0,1]"
                a(f"v_pk_fma_f32 {V(dre+h,2)}, {V(dre+h,2)}, {V(co+h,2)}, {V(T+h,2)}{n if conj else ''}")
                a(f"v_pk_fma_f32 {V(dim+h,2)}, {V(dim+h,2)}, {V(co+h,2)}, {V(T+4+h,2)}{'' if conj else n}")
        else:
            for r in range(4):
                a(f"v_mul_f32 v{T+r}, v{dim+r}, v{si+r}")
                a(f"v_mul_f32 v{T+4+r}, v{dre+r}, v{si+r}")
            for r in range(4):
                a(f"v_fma_f32 v{dre+r}, v{dre+r}, v{co+r}, {'-' if conj else ''}v{T+r}")
                a(f"v_fma_f32 v{dim+r}, v{dim+r}, v{co+r}, {'' if conj else '-'}v{T+4+r}")
        s.pack(dre, dim, P)
    def pack(s, dre, dim, P):
        for r in range(4): s.a(f"v_cvt_pk_bf16_f32 v{P[r]}, v{dre+r}, v{dim+r}")
    def sincos4(s, a0, step, co, si, T=8):
        a = s.a
        a(f"v_add_f32 v{T+1}, v{a0}, v{step}")
        a(f"v_fma_f32 v{T+2}, v{step}, 2.0, v{a0}")
        a(f"v_add_f32 v{T+3}, v{T+2}, v{step}")
        regs = [a0, T+1, T+2, T+3]
        for r in range(4):
            a(f"v_cos_f32 v{co+r}, v{regs[r]}")
            a(f"v_sin_f32 v{si+r}, v{regs[r]}")
    def tbl_srd(s):
        s.a("s_getpc_b64 s[36:37]")
        n = s.a.uid()
        s.a.raw(f"L_pc{n}:")
        s.a(f"s_add_u32 s36, s36, L_tbl-L_pc{n}\ns_addc_u32 s37, s37, 0")
        s.srd(36, TB_SIZE)
    def tload(s, items, vaddr, sbase=None):
        cur = None
        for r, off in items:
            b = off & ~4095
            if b != cur:
                if sbase is None: s.a(f"s_mov_b32 s61, {b}")
                else: s.a(f"s_add_u32 s61, {sbase}, {b}")
                cur = b
            s.a(f"buffer_load_dwordx4 {V(r,4)}, v{vaddr}, s[36:39], s61 offen offset:{off - b}")
        return len(items)
    def nonce_issue(s, vn):
        s.a(f"s_mov_b32 s61, {EPOCH}\nbuffer_load_dword v{vn}, off, s[32:35], s61 NTE")
    def nonce_get(s, vn):
        s.a(f"v_add_u32 v{vn}, 1, v{vn}\nv_readfirstlane_b32 s60, v{vn}")
    def spin(s, tag, sleep):
        s.a(f"""s_add_u32 s70, s70, 1
s_cmp_gt_u32 s70, {SPIN_MAX}
s_cbranch_scc1 L_exit
s_sleep {sleep}
s_branch L_poll_{tag}""")
    def gate_issue(s, tag, K, stride, off, sreg, vt, wave=0):
        s.a(f"""
v_mul_u32_u24 v{vt+1}, {stride}, v3
s_cmp_lg_u32 s3, {wave}
s_cbranch_scc1 L_gi_{tag}
v_mov_b32 v{vt}, 0
s_mov_b64 exec, {hex((1<<K)-1)}
buffer_atomic_or v{vt}, v{vt+1}, s[32:35], {sreg} offen offset:{off} sc0 sc1
s_mov_b64 exec, -1
L_gi_{tag}:""")
    def gate_wait(s, tag, K, stride, off, sreg, vt, wave=0, sentinel=False):
        a = s.a
        a(f"""
s_cmp_lg_u32 s3, {wave}
s_cbranch_scc1 L_gd_{tag}
s_mov_b64 exec, {hex((1<<K)-1)}
s_branch L_gc_{tag}
L_poll_g{tag}:
v_mov_b32 v{vt}, 0
buffer_atomic_or v{vt}, v{vt+1}, s[32:35], {sreg} offen offset:{off} sc0 sc1
L_gc_{tag}:
s_waitcnt vmcnt(0)
v_cmp_{'eq' if sentinel else 'ne'}_u32 vcc, {'-1' if sentinel else 's60'}, v{vt}
s_cbranch_vccz L_gok_{tag}""")
        s.spin("g" + tag, s.o.get("gsl", 1))
        a(f"""L_gok_{tag}:
s_mov_b64 exec, -1
L_gd_{tag}:""")
    def hint_send(s, e, preg, wave=0, tag=""):
        R = s.o.get("R", 16)
        s.a(f"""
s_cmp_lg_u32 s3, {wave}
s_cbranch_scc1 L_hs_{e}{tag}""")
        s.a(f"""s_and_b32 s61, {preg}, 7
s_lshl_b32 s61, s61, 10
s_add_u32 s61, s61, {CB[e]}
s_add_u32 s76, s32, s61
s_addc_u32 s77, s33, 0
s_mov_b32 s100, {63 if e in EARLY else 1}""")
        for r in range(R): s.a(f"s_atomic_{'inc' if e in EARLY else 'add'} s100, s[76:77], {hex(8192*r)}")
        s.a(f"L_hs_{e}{tag}:")
    def hint_fill(s, e, rreg, val, tag, op="swap"):
        s.a(f"""s_lshl_b32 s61, {rreg}, 13
s_add_u32 s61, s61, {CB[e]}
s_add_u32 s76, s32, s61
s_addc_u32 s77, s33, 0
s_mov_b32 s100, {val}""")
        for x in range(8): s.a(f"s_atomic_{op} s100, s[76:77], {hex(1024*x)}")
    def hint_zero(s):
        s.a("s_cmp_lg_u32 s3, 7\ns_cbranch_scc1 L_hz0")
        if s.o.get("ug", 0): s.hint_fill("u", "s2", 0, "d", "add")
        s.hint_fill("z1", "s2", 0, "c", "add")
        s.a("L_hz0:")
        s.a("s_cmp_lg_u32 s3, 6\ns_cbranch_scc1 L_hz1")
        s.hint_fill("z2", "s2", 0, "a")
        s.a("L_hz1:\ns_cmp_lg_u32 s3, 5\ns_cbranch_scc1 L_hz")
        s.hint_fill("y", "s2", 0, "b")
        s.a("L_hz:")
    def hint_rearm(s, e):
        s.a(f"s_cmp_ge_u32 s71, 16\ns_cbranch_scc1 L_ra_{e}\ns_cmp_lg_u32 s3, 1\ns_cbranch_scc1 L_ra_{e}")
        s.hint_fill(e, "s71", -1, "r")
        s.a(f"L_ra_{e}:")
    def g_wait(s, e, creg, wave=0):
        a = s.a
        R = s.o.get("R", 16); dl = s.o.get("dl", {}); tg = CT_[e]; sh = 1 if e in EARLY else 0
        a(f"""s_cmp_lg_u32 s3, {wave}
s_cbranch_scc1 L_hd_{e}
s_lshr_b32 s61, {creg}, 3
s_and_b32 s61, s61, {R-1}
s_lshl_b32 s61, s61, 13
s_add_u32 s61, s61, {CB[e]}
s_add_u32 s24, s32, s61
s_addc_u32 s25, s33, 0
s_mov_b32 s101, 0""")
        for k in range(8): a(f"s_mov_b32 s{72+k}, 0")
        if e == "z1" and dl.get("z1t"):
            a(f"s_cmp_ge_u32 s2, {NT0}\ns_cbranch_scc1 L_dlt\ns_sleep {dl.get('z1r', 0)}\ns_branch L_dlr\nL_dlt:\ns_sleep {dl['z1t']}\nL_dlr:")
        elif dl.get(e): a(f"s_sleep {dl[e]}")
        a(f"L_poll_h{e}:")
        for k in range(8):
            if sh: a(f"s_add_u32 s61, s{72+k}, 1\ns_lshr_b32 s61, s61, 1")
            a(f"""s_cmp_eq_u32 {'s61' if sh else 's%d' % (72+k)}, {tg >> sh}
s_cbranch_scc1 L_hp{k}_{e}
s_mov_b32 s{72+k}, 0
s_atomic_add s{72+k}, s[24:25], {hex(1024*k)} glc
L_hp{k}_{e}:""")
        a("s_add_u32 s101, s101, 1\ns_add_u32 s70, s70, 1\ns_waitcnt lgkmcnt(0)")
        a("s_mov_b32 s100, 0")
        for k in range(8):
            if sh: a(f"s_add_u32 s61, s{72+k}, 1\ns_lshr_b32 s61, s61, 1\ns_xor_b32 s61, s61, {tg >> 1}")
            else: a(f"s_xor_b32 s61, s{72+k}, {tg}")
            a("s_or_b32 s100, s100, s61")
        a(f"""s_cbranch_scc0 L_hd_{e}
s_sleep {s.o.get("gsl", 1)}
s_cmp_lt_u32 s101, {s.o.get("NF", 32)}
s_cbranch_scc1 L_poll_h{e}
L_hd_{e}:""")
    def w_sprefetch(s, tag):
        a = s.a
        a(f"""s_cmp_eq_u32 s3, 0
s_cbranch_scc1 L_sp_{tag}
s_mov_b32 s27, s3
L_sp1_{tag}:
s_lshl_b32 s61, s67, 3
s_add_u32 s61, s61, s27
s_lshl_b32 s61, s61, 4
s_add_u32 s61, s61, s66
s_mul_i32 s61, s61, 450
s_and_b32 s61, s61, -4
s_min_u32 s61, s61, {921600 - 452}
s_add_u32 s24, s48, s61
s_addc_u32 s25, s49, 0""")
        st = s.o.get("pst", 128)
        offs = list(range(0, 449, st)) + ([448] if 448 % st else [])
        for o in offs: a(f"s_load_dword s23, s[24:25], {o}")
        a("s_add_u32 s24, s52, s61\ns_addc_u32 s25, s53, 0")
        for o in offs: a(f"s_load_dword s23, s[24:25], {o}")
        a(f"""s_cmp_lg_u32 s27, 4
s_mov_b32 s27, 0
s_cbranch_scc0 L_sp1_{tag}
L_sp_{tag}:""")
    def check(s, tag, items):
        a = s.a
        m = [S(r, 2) for r in (72, 74, 76, 78, 48, 50, 52, 40)[:len(items)]]
        for mi, it in zip(m, items): a(f"v_cmp_ne_u32 {mi}, s60, v{it[0]}")
        same = len({it[4] for it in items}) == 1
        def merge(pre):
            if pre:
                for mi, it in zip(m, items): a(f"s_and_b64 {mi}, {mi}, {it[4]}")
            a(f"s_or_b64 vcc, {m[0]}, {m[1]}")
            for mi in m[2:]: a(f"s_or_b64 vcc, vcc, {mi}")
        if same:
            merge(False); a(f"s_and_b64 vcc, vcc, {items[0][4]}\ns_cbranch_scc0 L_got_{tag}")
            for mi, it in zip(m, items): a(f"s_and_b64 {mi}, {mi}, {it[4]}")
        else:
            merge(True); a(f"s_cbranch_scc0 L_got_{tag}")
        if s.o.get("aonly") or s.o.get("loud"):
            if s.o.get("aonly"): a(f"s_branch L_got_{tag}")
            else: s.spin(tag, s.o.get("sl", 4))
            a(f"L_got_{tag}:"); return
        a(f"""L_q_{tag}:
s_add_u32 s70, s70, 1
s_cmp_gt_u32 s70, {SPIN_MAX}
s_cbranch_scc1 L_exit""")
        for k, (mi, it) in enumerate(zip(m, items)):
            a(f"""s_mov_b64 exec, {mi}
s_cbranch_execz L_q{k}_{tag}
v_mov_b32 v{it[0]}, 0
buffer_atomic_or v{it[0]}, v{it[1]}, s[32:35], {it[2]} offen offset:{it[3]} sc0 sc1
L_q{k}_{tag}:""")
        a("s_mov_b64 exec, -1\ns_waitcnt vmcnt(0)")
        for mi, it in zip(m, items):
            a(f"v_cmp_ne_u32 vcc, s60, v{it[0]}\ns_and_b64 {mi}, {mi}, vcc")
        merge(False)
        a(f"""s_cbranch_scc0 L_poll_{tag}
s_sleep {s.o.get("qsl", 2)}
s_branch L_q_{tag}
L_got_{tag}:""")
    def gk(s, n):
        K = s.o.get("K", 8)
        st = (n - 1) // (K - 1) if K > 1 else 1
        if st % 2 == 0: st -= 1
        return K, 64 * st
    def lanes(s):
        s.a("""v_lshrrev_b32 v4, 6, v0
v_and_b32 v3, 63, v0
v_readfirstlane_b32 s3, v4
v_and_b32 v1, 15, v0
v_bfe_u32 v2, v0, 4, 2
s_mov_b32 s70, 0""")
    def prefetch(s, tag):
        if s.o.get("nopf"): return
        s.a(f"""
s_cmp_lg_u32 s3, 7
s_cbranch_scc1 L_nopf_{tag}
s_lshr_b32 s64, s2, 3
s_and_b32 s64, s64, 1
s_lshl_b32 s64, s64, 13
s_sub_u32 s74, s36, L_tbl-{KNAME}
s_subb_u32 s75, s37, 0
v_lshl_add_u32 v124, v3, 7, s64
v_min_u32 v124, L_tbl-{KNAME}-4, v124
global_load_dword v124, v124, s[74:75]
L_nopf_{tag}:""")

    def entry(s):
        a = s.a
        s.stamp(0); s.stamp("p0")
        if s.o.get("s0"): a(f"s_sleep {s.o['s0']}")
        a(f"""
s_load_dwordx16 s[4:19], s[0:1], 0
s_load_dwordx8 s[20:27], s[0:1], 64
s_load_dwordx2 s[32:33], s[0:1], 96
s_getpc_b64 s[36:37]
L_pc:
v_cmp_gt_u32 vcc, 8, v0
s_bfe_u32 s66, s2, 0x50003
s_lshl_b32 s66, s66, 10
s_and_saveexec_b64 s[64:65], vcc
s_cbranch_execz L_nopf
v_lshl_add_u32 v124, v0, 7, s66
v_min_u32 v124, L_tbl_end-L_pc-4, v124
{'s_nop 0' if s.o.get('nopf') else 'global_load_dword v124, v124, s[36:37] NTP'}    ; pull 1 KiB of the code into this XCD's L2 (speed only)
L_nopf:
s_mov_b64 exec, -1
s_cmp_ge_u32 s2, {NWG}
s_cbranch_scc1 L_end
REMAP
s_cmp_lt_u32 s2, {NA0}
s_cbranch_scc1 L_B
s_sub_u32 s66, s2, {NA0}           ; pair
s_lshl_b32 s64, s66, 10
v_lshl_add_u32 v24, v0, 1, s64
s_lshl_b32 s64, s66, 1
v_lshrrev_b32 v25, 8, v0
v_add_lshl_u32 v25, v25, s64, 1
s_waitcnt lgkmcnt(0)
global_load_short_d16_hi v114, v25, s[14:15] NTF
global_load_short_d16_hi v4, v24, s[6:7] NTF
global_load_short_d16_hi v5, v24, s[8:9] NTF
global_load_short_d16_hi v6, v24, s[10:11] NTF
global_load_short_d16_hi v7, v24, s[12:13] NTF
s_branch L_A
L_B:
AONLY
v_lshrrev_b32 v4, 6, v0
v_and_b32 v3, 63, v0
v_readfirstlane_b32 s3, v4
v_lshlrev_b32 v7, 4, v3            ; lane*16
s_sub_u32 s58, s2, {NR0}
s_add_u32 s36, s36, L_tbl-L_pc
s_addc_u32 s37, s37, 0
s_mov_b32 s38, {TB_SIZE}
s_mov_b32 s39, 0x20000
s_mov_b32 s42, 1835008
s_mov_b32 s43, 0x20000
s_cmp_lt_u32 s58, 128
s_cbranch_scc0 L_pT
s_mov_b32 s71, s58
s_lshl_b32 s64, s3, 8
s_add_u32 s64, s64, s58
s_mov_b32 s66, {128*896}
s_lshl_b32 s65, s3, 11
s_movk_i32 s67, 1024
s_lshl_b32 s68, s3, 10
s_waitcnt lgkmcnt(0)
s_mov_b64 s[40:41], s[18:19]
s_branch L_pC
L_pT:
s_sub_u32 s71, s2, {NT0}
s_lshl_b32 s28, s71, 4
s_lshl_b32 s64, s2, 7
s_add_u32 s64, s64, 15
s_add_u32 s65, s2, 128
s_cmp_lt_u32 s2, {NR0}
s_cselect_b32 s28, s64, s28
s_cselect_b32 s71, s65, s71
s_cselect_b32 s59, 16, 1
s_cselect_b32 s66, 0, {8*896}
s_mul_i32 s64, s59, s3
s_add_u32 s64, s64, s28
s_mul_i32 s65, s3, 1040
s_movk_i32 s67, {8*1040}
s_and_b32 s68, s3, 3
s_lshl_b32 s68, s68, 10
s_add_u32 s68, s68, {TB["F8RE"]}
s_waitcnt lgkmcnt(0)
s_mov_b64 s[40:41], s[4:5]
L_pC:
s_mul_i32 s64, s64, 896
s_mov_b32 m0, s65
s_add_u32 s66, s66, s64
buffer_load_dwordx4 v7, s[40:43], s64 offen NTF lds
s_add_u32 m0, s65, s67
s_mov_b32 s61, {EPOCH}
buffer_load_dwordx4 v7, s[40:43], s66 offen NTF lds
s_add_u32 m0, s68, {CT}
s_mov_b32 s34, 0x10000000
s_mov_b32 s35, 0x20000
buffer_load_dword v31, off, s[32:35], s61 NTE
{'s_nop 0' if s.o.get('nocd') else 'buffer_load_dwordx4 v7, s[36:39], s68 offen NTC lds'}
v_and_b32 v1, 15, v0
v_bfe_u32 v2, v0, 4, 2
s_mov_b32 s70, 0
""")
        s.stamp(1); s.stamp("p1")
        a("s_cmp_lt_u32 s58, 128\ns_cbranch_scc0 L_T")
    def cread(s, items):
        for r, n in items: s.a(f"ds_read_b128 {V(r,4)}, v7 offset:{CT + TB[n]}")
    def matrix(s, a0, step, re, im, conj):
        s.sincos4(a0, step, 96, 100)
        for j in range(4):
            s.a(f"v_cvt_pk_bf16_f32 v{re+j}, v{96+j}, {'-' if conj else ''}v{100+j}")
            s.a(f"v_cvt_pk_bf16_f32 v{im+j}, {'' if conj else '-'}v{100+j}, v{96+j}")
    def b0(s):
        a = s.a
        s.srd(44, 3670016); s.srd(48, 921600); s.srd(52, 921600)
        a(f"""
v_cmp_eq_u32 s[62:63], 15, v1
s_mov_b64 s[44:45], s[24:25]
s_mov_b64 s[48:49], s[20:21]
s_mov_b64 s[52:53], s[22:23]
s_and_b32 s66, s58, 15         ; f1
s_lshr_b32 s67, s58, 4         ; k2
v_lshlrev_b32 v10, 2, v1
v_lshl_add_u32 v24, v2, 19, v10    ; g*524288 + 4c
v_cvt_f32_u32 v4, v1
v_lshlrev_b32 v5, 2, v2
v_cvt_f32_u32 v5, v5
v_mul_f32 v4, {f2h(1/16)}, v4          ; c/16
""")
    def bw(s):
        s.a(f"""
s_mul_i32 s64, s67, 56
s_sub_u32 s65, 896, s64
s_cmp_lt_u32 s67, 8
s_cselect_b32 s64, s64, s65
s_cselect_b32 s65, 2, -2
v_and_b32 v8, 1, v2
v_lshrrev_b32 v9, 1, v2
v_mul_i32_i24 v6, s65, v1
v_mul_u32_u24 v10, {1024*450}, v8
v_mul_u32_u24 v11, {16*450}, v9
v_add_u32 v6, s64, v6
v_add3_u32 v6, v6, v10, v11
s_lshl_b32 s64, s3, 5
s_add_u32 s64, s64, s66
s_mul_i32 s68, s64, 450        ; W soffset r=0
""")
    def bc(s):
        a = s.a
        a(f"""
v_and_b32 v8, 1, v2
v_lshrrev_b32 v9, 1, v2
v_lshlrev_b32 v10, 2, v1
v_lshl_add_u32 v27, v2, 11, v10    ; Z1 poll: g*2048 + 4c
v_mul_u32_u24 v12, 48, v1
v_mul_u32_u24 v28, 3072, v2
s_lshl_b32 s64, s3, 2
s_add_u32 s64, s64, {EB}
v_add3_u32 v28, v28, v12, s64          ; E b32: 4g*768 + 48c + 4w
v_mul_u32_u24 v9, 768, v9
v_lshl_add_u32 v9, v8, 4, v9
s_mul_i32 s64, s3, 1536
s_add_u32 s64, s64, {EB}
v_add3_u32 v29, v9, v12, s64           ; E b128
v_cvt_f32_u32 v8, s3
v_mul_f32 v8, {f2h(1/8)}, v8           ; b/8
v_add_f32 v13, v5, v8
v_mul_f32 v13, v13, v4
v_fmamk_f32 v12, v8, {f2h(1/16)}, v4
""")
        s.matrix(13, 4, 64, 68, False)
        a("v_mul_f32 v13, v12, v5")
        s.matrix(13, 12, 72, 76, True)
    def w_prefetch(s, d):
        s.a(f"""
s_lshl_b32 s64, s67, 3
s_add_u32 s64, s64, s3
s_lshl_b32 s64, s64, 4
s_add_u32 s64, s64, s66
s_mul_i32 s64, s64, 450
v_lshlrev_b32 v8, 7, v3
v_min_u32 v8, 448, v8
buffer_load_ushort v{d}, v8, s[48:51], s64 offen NTW
buffer_load_ushort v{d+1}, v8, s[52:55], s64 offen NTW
""")
        return 2
    def w_early(s, tag):
        a = s.a
        a(f"s_cmp_eq_u32 s3, 0\ns_cbranch_scc1 L_we_{tag}")
        s.w_loads()
        a(f"s_cmp_lg_u32 s3, 1\ns_cbranch_scc1 L_we_{tag}\ns_mul_i32 s61, s66, 450")
        for r in range(4):
            a(f"buffer_load_ushort v{88+r}, v6, s[48:51], s61 offen NTG")
            a(f"buffer_load_ushort v{92+r}, v6, s[52:55], s61 offen NTG")
            if r < 3: a(f"s_add_u32 s61, s61, {256*450}")
        a(f"L_we_{tag}:")
    def w_loads(s):
        a = s.a
        if s.o.get("now"):
            for r in range(8): a(f"buffer_load_dword v{16+r}, off, s[36:39], 0")
            return
        for r in range(4):
            a(f"buffer_load_short_d16_hi v{16+r}, v6, s[48:51], s68 offen NTG")
            a(f"buffer_load_short_d16_hi v{20+r}, v6, s[52:55], s68 offen NTG")
            if r < 3: a(f"s_add_u32 s68, s68, {256*450}")
    def row_s1(s):
        a = s.a
        s.b0()
        wp = s.o.get("wp", 5)
        if s.o.get("wg", 1) == 5:
            s.bw()
            if s.o.get("wd0"): a(f"s_sleep {s.o['wd0']}")
            s.w_loads()
        a(f"""
v_cvt_f32_u32 v8, s71
v_mul_f32 v8, {f2h(1/128)}, v8             ; sigma/128
v_add_f32 v13, v5, v8
v_mul_f32 v13, v13, v4
""")
        s.matrix(13, 4, 56, 60, False)
        a(f"""
v_mul_u32_u24 v25, 5120, v2
v_mul_u32_u24 v8, 80, v1
s_lshl_b32 s64, s3, 3
s_add_u32 s64, s64, {T1}
v_add3_u32 v25, v25, v8, s64          ; T write: g*5120 + 80c + 8w
s_mul_i32 s64, s3, 2560
s_add_u32 s64, s64, {T1}
v_lshl_add_u32 v26, v2, 4, v8
v_add_u32 v26, s64, v26               ; T read: 2w*1280 + 80c + 16g
s_lshl_b32 s65, s3, 11
v_lshl_add_u32 v120, v3, 3, s65
""")
        if s.o.get("wg", 1) != 5: s.bw()
        if s.o.get("bce"): s.bc()
        if s.o.get("wd"): a(f"s_sleep {s.o['wd']}")
        if wp == 1: s.w_prefetch(94)
        s.stamp("p2")
        a(f"s_setprio BPRIO\ns_waitcnt vmcnt({8 if s.o.get('wg', 1) == 5 else (2 if wp < 2 else 0)})")
        s.stamp(2); s.stamp("s0"); s.stamp("p3")
        if s.o.get("stop"): a("s_branch L_exit")
        a("s_barrier")
        s.stamp("s1")
        pk = s.o.get("pk", True)
        a(f"""
ds_read_b64_tr_b16 v[96:97], v120
ds_read_b64_tr_b16 v[98:99], v120 offset:512
""")
        s.cread([(32, "COS28"), (36, "NSIN28")])
        a(f"""
ds_read_b64_tr_b16 v[100:101], v120 offset:1024
ds_read_b64_tr_b16 v[102:103], v120 offset:1536
""")
        s.cread([(48, "TWRC"), (52, "TWRS"), (40, "R2RE"), (44, "R2IM")])
        if s.o.get("wg", 1) == 0: s.w_loads()
        if wp == 3: s.w_prefetch(94)
        s.stamp("s2")
        s.nonce_get(31)
        a("s_waitcnt lgkmcnt(6)")
        s.mfma(104, 96, 32); s.mfma(108, 96, 36)
        a("s_waitcnt lgkmcnt(4)")
        s.mfma(112, 100, 32); s.mfma(116, 100, 36)
        a("s_waitcnt lgkmcnt(0)")
        s.stamp("s3")
        s.twiddle(104, 108, 48, 52, [96, 97, 98, 99], False, packed=pk)
        s.mfma(104, 40, 96); s.mfma(108, 44, 96)
        s.twiddle(112, 116, 48, 52, [100, 101, 102, 103], False, packed=pk)
        s.mfma(112, 40, 100); s.mfma(116, 44, 100)
        s.stamp("s4")
        s.pack(104, 108, [120, 122, 124, 126]); s.pack(112, 116, [121, 123, 125, 127])
        for r in range(4): a(f"ds_write_b64 v25, {V(120+2*r,2)} offset:{1280*r}")
        a(f"""
s_lshl_b32 s64, s71, 6
s_lshl_b32 s65, s3, 14
s_add_u32 s64, s64, s65            ; sigma*64 + 2w*8192
s_waitcnt lgkmcnt(0)""")
        s.stamp("s5")
        a("s_barrier")
        s.stamp("s6")
        a(f"""
ds_read_b128 v[96:99], v26
ds_read_b128 v[100:103], v26 offset:1280
s_waitcnt lgkmcnt(1)
""")
        s.mfma(104, 56, 96); s.mfma(108, 60, 96)
        a("s_waitcnt lgkmcnt(0)")
        s.mfma(112, 56, 100); s.mfma(116, 60, 100)
        if s.o.get("hp", 0) == 0: s.hint_send("z1", "s71", s.o.get("hw", 0))
        s.stamp("s7")
        for t, (dr, di, P) in enumerate(((104, 108, 120), (112, 116, 124))):
            s.pack(dr, di, [P, P+1, P+2, P+3])
            for r in range(4): a(f"v_cndmask_b32 v{P+r}, v{P+r}, v31, s[62:63]")
            for r in range(4):
                a(f"s_add_u32 s65, s64, {Z1 + t*8192 + r*131072}")
                a(f"buffer_store_dword v{P+r}, v24, s[32:35], s65 offen sc1")
        if s.o.get("hp", 0) == 1: s.hint_send("z1", "s71", s.o.get("hw", 0))
        s.stamp(3); s.stamp("s8")
        s.z1_gate_issue("r")
        a(f"""s_barrier
s_lshl_b32 s64, s3, 10
s_add_u32 s64, s64, 8192
s_add_u32 m0, s64, {CT}
buffer_load_dwordx4 v7, s[36:39], s64 offen lds""")
        if s.o.get("wg", 1) == 1: s.w_loads()
        if s.o.get("wg", 1) == 3: s.w_early("r")
        if wp == 4: s.w_prefetch(94)
        if wp == 6: s.w_sprefetch("r")
        if not s.o.get("bce"):
            a("s_setprio 0"); s.bc(); a("s_setprio BPRIO")
        a("s_branch L_col")
    def z1_gate_issue(s, tag):
        s.a(f"""
s_lshl_b32 s64, s66, 4
s_add_u32 s64, s64, s67
s_lshl_b32 s64, s64, 13
s_lshl_b32 s65, s3, 6
s_add_u32 s69, s64, s65
s_add_u32 s69, s69, {Z1}           ; Z1 + unit*8192 + w*64
""")
    def t_u(s):
        a = s.a
        a(f"L_T:\ns_cmp_ge_u32 s2, {NR0}\ns_cbranch_scc1 L_hz")
        s.hint_zero()
        a(f"""
v_and_b32 v10, 3, v3
v_lshrrev_b32 v11, 2, v3
v_cmp_eq_u32 s[56:57], 3, v10
v_mul_u32_u24 v120, 4160, v10
v_lshl_add_u32 v120, v11, 2, v120
s_lshl_b32 s64, s3, 6
v_add_u32 v120, s64, v120          ; LDS: 4160e + 4q + 64w
v_mul_u32_u24 v121, {PSTR}, v11
v_lshl_add_u32 v121, v10, 4, v121  ; q*PSTR + 16e
""")
        s.b0(); s.bw()
        if s.o.get("wg", 1) == 5:
            if s.o.get("wd0"): a(f"s_sleep {s.o['wd0']}")
            s.w_loads()
        if s.o.get("tce", 1): s.bc()
        wp = s.o.get("wp", 5)
        if s.o.get("wdt"): a(f"s_sleep {s.o['wdt']}")
        if wp < 2: s.w_prefetch(62)
        a(f"""
s_mul_i32 s64, s3, {16*PSTR}
s_lshl_b32 s65, s71, 6
s_add_u32 s64, s64, s65
s_add_u32 s64, s64, {UT}
s_add_u32 s65, s64, {128*PSTR}
""")
        s.stamp("p2")
        a(f"s_setprio BPRIO\ns_waitcnt vmcnt({9 if s.o.get('wg', 1) == 5 else (3 if wp < 2 else 1)})")
        s.stamp(2); s.stamp("p3")
        if s.o.get("stop"): a("s_branch L_exit")
        a("s_barrier")
        for k in range(2):
            for i in range(4): a(f"ds_read_b32 v{96+4*k+i}, v120 offset:{1040*i + 512*k}")
        s.nonce_get(31)
        a(f"""
s_waitcnt lgkmcnt(4)
v_cndmask_b32 v99, v99, v31, s[56:57]
buffer_store_dwordx4 v[96:99], v121, s[32:35], s64 offen sc1
s_cmp_ge_u32 s3, 6
s_cbranch_scc1 L_T_p2
s_waitcnt lgkmcnt(0)
v_cndmask_b32 v103, v103, v31, s[56:57]
buffer_store_dwordx4 v[100:103], v121, s[32:35], s65 offen sc1
L_T_p2:
""")
        if s.o.get("ug", 0): s.hint_send("u", "s71", s.o.get("uw", 7))
        s.stamp(3)
        if s.o.get("tfe", 0): s.t_prep(); a("s_setprio BPRIO")
        a(f"""
s_cmp_lt_u32 s2, {NR0}
s_cbranch_scc1 L_Ty
""")
        s.z1_gate_issue("t")
        if wp in (3, 4): s.w_prefetch(62)
        if wp == 6: s.w_sprefetch("t")
        if wp == 5:
            a(f"""
s_barrier
s_sub_u32 s65, s3, 1
s_cmp_ge_u32 s65, 4
s_cbranch_scc1 L_nwp
s_sub_u32 s64, s67, 8
s_lshl_b32 s64, s64, 2
s_add_u32 s64, s64, s65
s_lshl_b32 s64, s64, 6
s_add_u32 s64, s64, s66
s_mul_i32 s64, s64, 450
v_lshlrev_b32 v8, 7, v1
v_min_u32 v8, 448, v8
v_mul_u32_u24 v9, {16*450}, v2
v_add_u32 v8, v8, v9
buffer_load_ushort v60, v8, s[48:51], s64 offen NTW
buffer_load_ushort v61, v8, s[52:55], s64 offen NTW
L_nwp:
""")
        if s.o.get("wg", 1) < 2:
            a("s_barrier")
            s.w_loads()
        if s.o.get("wg", 1) == 3:
            a("s_barrier")
            s.w_early("t")
        if not s.o.get("tce", 1):
            a("s_setprio 0"); s.bc(); a("s_setprio BPRIO")
    def column(s):
        a = s.a
        a(f"L_col:\ns_setprio {s.o.get('pcol', 2)}")
        s.stamp(4)
        s.g_wait("z1", "s58")
        if s.o.get("zs") == 1: s.stamp(7)
        wg = s.o.get("wg", 1)
        a(f"s_waitcnt vmcnt({8 if wg == 1 else 0})\ns_barrier")
        if s.o.get("zs") == 1: s.stamp(1)
        def zl():
            for j in range(4): a(f"buffer_load_dword v{96+j}, v27, s[32:35], s69 offen offset:{512*j} sc1")
        zl()
        if wg == 2: s.w_loads()
        if wg == 3:
            a("s_cmp_lg_u32 s3, 0\ns_cbranch_scc1 L_wl0"); s.w_loads(); a("s_waitcnt vmcnt(8)\ns_branch L_wl1\nL_wl0:\ns_waitcnt vmcnt(0)\nL_wl1:")
        s.cread([(32, "F8RE"), (36, "F8IM"), (40, "G8RE"), (44, "G8IM")])
        if wg != 3: a(f"s_waitcnt vmcnt({8 if wg == 2 else 0})")
        if s.o.get("zs") == 1: s.stamp(2)
        a("s_branch L_chk_z1\nL_poll_z1:")
        zl()
        a("s_waitcnt vmcnt(0)\nL_chk_z1:")
        s.check("z1", [(96 + j, 27, "s69", 512 * j, "s[62:63]") for j in range(4)])
        s.stamp(5)
        s.mfma(104, 64, 96); s.mfma(108, 68, 96)
        s.pack(104, 108, [120, 121, 122, 123])
        for r in range(4): a(f"ds_write_b32 v28, v{120+r} offset:{768*r}")
        a("s_waitcnt lgkmcnt(0)\ns_barrier\nds_read_b128 v[96:99], v29\ns_waitcnt lgkmcnt(0)")
        s.mfma(104, 32, 96); s.mfma(108, 36, 96)
        a("s_waitcnt vmcnt(0)")
        s.twiddle(104, 108, 16, 20, [96, 97, 98, 99], True)
        s.mfma(104, 40, 96); s.mfma(108, 44, 96)
        s.pack(104, 108, [120, 121, 122, 123])
        a("ds_write_b128 v29, v[120:123]\ns_waitcnt lgkmcnt(0)\ns_barrier")
        for j in range(4): a(f"ds_read_b32 v{96+j}, v28 offset:{768*j}")

        a(f"""
s_lshl_b32 s64, s3, 14
s_lshl_b32 s65, s67, 10
s_add_u32 s64, s64, s65
s_lshl_b32 s65, s66, 6
s_add_u32 s64, s64, s65
s_waitcnt lgkmcnt(0)
""")
        s.mfma(104, 72, 96); s.mfma(108, 76, 96)
        if s.o.get("hp", 0) == 0: s.hint_send("z2", "s58", s.o.get("hw", 0))
        s.pack(104, 108, [120, 121, 122, 123])
        for r in range(4): a(f"v_cndmask_b32 v{120+r}, v{120+r}, v31, s[62:63]")
        for r in range(4):
            a(f"s_add_u32 s65, s64, {Z2 + r*131072}")
            a(f"buffer_store_dword v{120+r}, v24, s[32:35], s65 offen sc1")
        if s.o.get("hp", 0) == 1: s.hint_send("z2", "s58", s.o.get("hw", 0))
        s.stamp(6)
        a(f"s_cmp_ge_u32 s2, {NT0}\ns_cbranch_scc1 L_Ty")
    def row_inv(s):
        a = s.a
        a(f"s_setprio {s.o.get('pinv', 3)}")
        a(f"""
s_lshl_b32 s64, s71, 14
s_lshl_b32 s65, s3, 11
s_add_u32 s69, s64, s65
s_add_u32 s69, s69, {Z2}
""")
        s.cread([(32, "R2BRE"), (36, "R2BIM"), (40, "TWIC"), (44, "TWIS"), (48, "R1B0"), (52, "R1B1")])
        a(f"""
v_cvt_f32_u32 v8, s71
v_fmamk_f32 v12, v8, {f2h(1/2048)}, v4
v_mul_f32 v13, v12, v5
""")
        s.matrix(13, 12, 80, 84, True)
        a(f"""
v_and_b32 v10, 1, v2
v_lshl_add_u32 v11, v10, 4, v1        ; n1 = c + 16(g&1)
v_lshlrev_b32 v30, 5, v11
v_lshrrev_b32 v12, 1, v2
v_lshl_add_u32 v30, v12, 4, v30
v_cmp_lt_u32 vcc, 27, v11
v_mov_b32 v12, 0x10000000
v_cndmask_b32 v30, v30, v12, vcc
v_lshlrev_b32 v5, 8, v2
v_lshl_add_u32 v5, v1, 2, v5
v_cmp_eq_u32 s[28:29], 3, v2
""")
        s.g_wait("z2", "s71")
        a("s_waitcnt lgkmcnt(0)\ns_barrier\nL_poll_z2:")
        for t in range(2):
            for j in range(4): a(f"buffer_load_dword v{96+4*t+j}, v5, s[32:35], s69 offen offset:{1024*t+64*j} sc1")
        a("s_waitcnt vmcnt(0)")
        s.check("z2", [(96 + 4 * t + j, 5, "s69", 1024 * t + 64 * j, "s[62:63]") for t in range(2) for j in range(4)])
        if s.o.get("zs") != 1: s.stamp(7)
        if s.o.get("sb"): a(f"s_sleep {s.o['sb']}")
        pk = s.o.get("pk2", True)
        s.mfma(104, 80, 96); s.mfma(108, 84, 96); s.mfma(112, 80, 100); s.mfma(116, 84, 100)
        s.pack(104, 108, [120, 122, 124, 126]); s.pack(112, 116, [121, 123, 125, 127])
        for r in range(4): a(f"ds_write_b64 v25, {V(120+2*r,2)} offset:{1280*r}")
        a(f"""
s_lshl_b32 s64, s3, 8
s_add_u32 s64, s64, s71
s_mul_i32 s64, s64, 1792
s_add_u32 s64, s64, 896
s_add_u32 s65, s64, {128*1792}
s_waitcnt lgkmcnt(0)
s_barrier
ds_read_b128 v[96:99], v26
ds_read_b128 v[100:103], v26 offset:1280
s_waitcnt lgkmcnt(1)
""")
        s.mfma(104, 96, 32); s.mfma(108, 96, 36)
        a("s_waitcnt lgkmcnt(0)")
        s.mfma(112, 100, 32); s.mfma(116, 100, 36)
        s.twiddle(104, 108, 40, 44, [96, 97, 98, 99], True, packed=pk)
        a("v_cndmask_b32_e64 v99, v99, 0, s[28:29]")
        s.mfma(104, 96, 48); s.mfma(108, 96, 52)
        s.twiddle(112, 116, 40, 44, [100, 101, 102, 103], True, packed=pk)
        a("v_cndmask_b32_e64 v103, v103, 0, s[28:29]")
        s.mfma(112, 100, 48); s.mfma(116, 100, 52)
        for t, (d0, d1, P, so) in enumerate(((104, 108, 120, "s64"), (112, 116, 124, "s65"))):
            a(f"""v_cvt_pk_bf16_f32 v{P}, v{d0}, v{d0+1}
v_cvt_pk_bf16_f32 v{P+1}, v{d0+2}, v{d0+3}
v_cvt_pk_bf16_f32 v{P+2}, v{d1}, v{d1+1}
v_cvt_pk_bf16_f32 v{P+3}, v{d1+2}, v{d1+3}
v_permlane16_swap_b32 v{P}, v{P+2}
v_permlane16_swap_b32 v{P+1}, v{P+3}
buffer_store_dwordx4 {V(P,4)}, v30, s[44:47], {so} offen OUTF""")
        s.hint_rearm("z1")
        s.stamp(8)
        a("s_branch L_exit")
    def t_prep(s):
        a = s.a
        a(f"""
s_setprio 0
s_mul_i32 s29, s71, 14336
s_add_u32 s29, s29, {YT}
s_mul_i32 s72, s59, 1792
s_movk_i32 s73, 840
s_cmp_eq_u32 s59, 1
s_cselect_b32 s59, s73, 448
s_mul_i32 s28, s28, 1792
v_mul_u32_u24 v8, {(1<<20)//56+1}, v0
v_lshrrev_b32 v8, 20, v8
v_mul_u32_u24 v9, 56, v8
v_sub_u32 v9, v0, v9               ; grp0
v_add_u32 v10, 512, v0
v_mul_u32_u24 v11, {(1<<20)//56+1}, v10
v_lshrrev_b32 v11, 20, v11         ; row1
v_mul_u32_u24 v12, 56, v11
v_sub_u32 v12, v10, v12            ; grp1
v_lshlrev_b32 v9, 4, v9
v_lshlrev_b32 v12, 4, v12
global_load_dwordx4 v[112:115], v9, s[16:17]
global_load_dwordx4 v[116:119], v12, s[16:17]
v_min_u32 v11, 15, v11
v_mul_u32_u24 v25, 912, v8
v_add_u32 v25, v25, v9
v_mul_u32_u24 v26, 912, v11
v_add_u32 v26, v26, v12
v_lshl_add_u32 v104, v8, 7, v25
v_lshl_add_u32 v108, v11, 7, v26
ds_read_b128 v[104:107], v104
ds_read_b128 v[108:111], v108
v_mul_u32_u24 v48, s72, v8
v_add_u32 v48, v48, v9
v_mul_u32_u24 v49, s72, v11
v_add_u32 v49, v49, v12
v_mov_b32 v13, 0x10000000
v_cmp_gt_u32 vcc, s59, v0
v_cndmask_b32 v48, v13, v48, vcc
v_cmp_gt_u32 vcc, s59, v10
v_cndmask_b32 v49, v13, v49, vcc
v_and_b32 v10, 3, v0
v_mul_u32_u24 v10, 3648, v10
v_and_b32 v11, 0xfffffffc, v0
v_add_u32 v50, v10, v11
v_lshlrev_b32 v30, 4, v0           ; tid*16
v_cmp_gt_u32 vcc, 384, v0
s_mov_b64 s[30:31], vcc
s_waitcnt vmcnt(0) lgkmcnt(0)
""")
        for it in range(2):
            for j in range(4):
                u, d, o = 104 + 4*it + j, 112 + 4*it + j, 80 + 8*it + 2*j
                a(f"""v_lshlrev_b32 v8, 16, v{u}
v_lshlrev_b32 v9, 16, v{d}
v_and_b32 v10, 0xffff0000, v{u}
v_and_b32 v11, 0xffff0000, v{d}
v_mul_f32 v8, v8, v9
v_mul_f32 v10, v10, v11
v_cvt_pk_bf16_f32 v8, v8, v10
v_lshlrev_b32 v{o}, 16, v8
v_and_b32 v{o+1}, 0xffff0000, v8""")
    def t_y(s):
        a = s.a
        a("L_Ty:")
        if not s.o.get("tfe", 0): s.t_prep()
        a("s_add_u32 s64, s29, 8192\nv_mov_b32 v103, v31")
        a("s_setprio BPRIO")
        s.g_wait("y", "s71")
        a(f"""
s_barrier
L_poll_y:
buffer_load_dwordx4 v[96:99], v30, s[32:35], s29 offen sc1
s_mov_b64 exec, s[30:31]
s_cbranch_execz L_y1
buffer_load_dwordx4 v[100:103], v30, s[32:35], s64 offen sc1
L_y1:
s_mov_b64 exec, -1
s_waitcnt vmcnt(0)
""")
        s.check("y", [(99, 30, "s29", 12, "s[56:57]"), (103, 30, "s64", 12, "s[56:57]")])
        if s.o.get("zs") != 1: s.stamp(7)
        for r in range(4): a(f"ds_write_b32 v50, v{96+r} offset:{912*r}")
        a("s_mov_b64 exec, s[30:31]")
        for r in range(4): a(f"ds_write_b32 v50, v{100+r} offset:{912*r+512}")
        a(f"""
s_mov_b64 exec, -1
s_waitcnt lgkmcnt(0)
s_barrier
ds_read_b128 v[96:99], v25
ds_read_b128 v[100:103], v26
""")
        for it in range(2):
            a(f"s_waitcnt lgkmcnt({1-it})")
            for j in range(4):
                y = 96 + 4*it + j
                a(f"v_lshlrev_b32 v{8+2*j}, 16, v{y}\nv_and_b32 v{9+2*j}, 0xffff0000, v{y}")
            for j in range(4): a(f"v_pk_add_f32 {V(8+2*j,2)}, {V(8+2*j,2)}, {V(80+8*it+2*j,2)}")
            for j in range(4): a(f"v_cvt_pk_bf16_f32 v{104+4*it+j}, v{8+2*j}, v{9+2*j}")
            a(f"buffer_store_dwordx4 {V(104+4*it,4)}, v{48+it}, s[44:47], s28 offen OUTF")
        a(f"""
s_add_u32 s64, s71, s3
s_cmp_lg_u32 s64, 0
s_cbranch_scc1 L_noep
s_mov_b32 s61, {EPOCH}
s_mov_b64 exec, 1
buffer_store_dword v31, off, s[32:35], s61
s_mov_b64 exec, -1
L_noep:""")
        if s.o.get("ug", 0): s.hint_rearm("u")
        s.stamp(8)
        a("s_branch L_exit")
    def cmuls(s, lst):
        for d, x, e, t in lst:
            s.a(f"v_pk_mul_f32 {V(t,2)}, {V(x,2)}, {V(e,2)} op_sel:[1,1] op_sel_hi:[1,0] neg_lo:[1,0]")
        for d, x, e, t in lst:
            s.a(f"v_pk_fma_f32 {V(d,2)}, {V(x,2)}, {V(e,2)}, {V(t,2)} op_sel_hi:[0,1,1]")
    def exp2_bf16(s, pairs):
        L_HI = 1.4426950216293335; L_LO = 1.4426950408889634 - L_HI
        for fmt in (f"v_mul_f32 v{{t}}, {f2h(L_HI)}, v{{x}}", "v_exp_f32 v{d}, v{t}", "v_fma_f32 v{u}, v{x}, s71, -v{t}",
                    f"v_fmac_f32 v{{u}}, {f2h(L_LO)}, v{{x}}", f"v_mul_f32 v{{u}}, {f2h(math.log(2))}, v{{u}}",
                    "v_fma_f32 v{d}, v{d}, v{u}, v{d}", "v_cvt_pk_bf16_f32 v{d}, v{d}, v{d}", "v_and_b32 v{d}, 0xffff0000, v{d}"):
            for d, x, t in pairs: s.a(fmt.format(d=d, x=x, t=t, u=t + 1))
    def a_path(s):
        a = s.a
        a("L_A:")
        if s.o.get("ap", 1): a(f"s_setprio {s.o.get('ap', 1)}")
        s.stamp(1); s.stamp("p1")
        s.a("v_lshrrev_b32 v32, 6, v0\nv_and_b32 v3, 63, v0\nv_readfirstlane_b32 s3, v32\nv_and_b32 v1, 15, v0\nv_bfe_u32 v2, v0, 4, 2\ns_mov_b32 s70, 0")
        s.srd(32, "0x10000000")
        s.nonce_issue(115)
        a(f"""
s_lshr_b32 s67, s3, 2              ; ch
s_and_b32 s68, s3, 3               ; q4
v_lshlrev_b32 v25, 4, v3           ; 16*lane
""")
        nl = 1
        def addr_pairs(fl, dst):
            for i in range(0, len(fl), 2):
                a(f"v_cvt_pk_bf16_f32 v{fl[i]}, v{fl[i]}, v{fl[min(i+1, len(fl)-1)]}")
            for i in range(0, len(fl), 2):
                a(f"v_lshlrev_b32 v{fl[i]}, 1, v{fl[i]}")
            for i in range(len(fl)):
                a(f"v_add_u32_sdwa v{dst[i]}, s64, v{fl[i & ~1]} dst_sel:DWORD dst_unused:UNUSED_PAD src0_sel:DWORD src1_sel:WORD_{i & 1}")
        def AG():
            a(f"""
s_mul_i32 s72, s67, {KCH}
s_add_u32 s72, s72, {KC}
s_sub_u32 s64, s72, {2*KB}
v_and_b32 v33, 255, v0
v_lshlrev_b32 v33, 3, v33
v_sub_u32 v33, 2047, v33
v_cvt_f32_i32 v40, v33             ; lag of element 0
""")
            for e in range(1, 9):
                a(f"v_add_f32 v{40+e}, {f2h(-float(e))}, v40")
            a(f"v_mov_b32 v34, {f2h(2064.0)}")
            for e in (8,):
                a(f"v_cmp_gt_f32 vcc, 0, v{40+e}\nv_cndmask_b32 v{40+e}, v{40+e}, v34, vcc")
            addr_pairs(list(range(40, 49)), list(range(8, 17)))
            a("v_max_i32 v15, s72, v15")
        def AS():
            a(f"""
s_mul_i32 s72, s67, {KCH}
s_add_u32 s72, s72, {KC}
s_sub_u32 s64, s72, {2*KB}
""")
            a(f"""
v_lshrrev_b32 v34, 1, v2           ; g>>1
v_and_b32 v35, 1, v2               ; g&1
s_cmp_eq_u32 s68, 1
s_cbranch_scc1 L_sc1
s_cmp_eq_u32 s68, 2
s_cbranch_scc1 L_sc2
v_lshlrev_b32 v36, 7, v34
v_lshl_add_u32 v36, v35, 2, v36    ; 128(g>>1) + 4(g&1) + r
v_mov_b32 v37, 1
v_mov_b32 v38, 2
s_branch L_scd
L_sc1:
v_lshlrev_b32 v36, 7, v2
v_add_u32 v36, 256, v36            ; g<2: 256+128g + 2r
v_lshlrev_b32 v37, 8, v2           ; g>=2: 256g + 128(r>>1) + 4(r&1)
v_cmp_lt_u32 vcc, 1, v2
v_cndmask_b32 v36, v36, v37, vcc
v_cndmask_b32_e64 v37, 2, 4, vcc
v_mov_b32 v38, 128
v_cndmask_b32 v38, 4, v38, vcc
s_branch L_scd
L_sc2:
v_lshlrev_b32 v36, 9, v2
v_add_u32 v36, 1024, v36           ; 1024 + 128(4g+r)
v_mov_b32 v37, 128
v_mov_b32 v38, 256
L_scd:
v_lshl_add_u32 v36, v1, 3, v36
v_add_u32 v37, v36, v37
v_sub_u32 v39, v37, v36
v_add_u32 v38, v36, v38
v_add_u32 v39, v38, v39
v_mov_b32 v34, 2080
v_cmp_lt_u32 vcc, 2048, v36
v_cndmask_b32 v36, v36, v34, vcc
v_cmp_lt_u32 vcc, 2048, v37
v_cndmask_b32 v37, v37, v34, vcc
v_cmp_lt_u32 vcc, 2048, v38
v_cndmask_b32 v38, v38, v34, vcc
v_cmp_lt_u32 vcc, 2048, v39
v_cndmask_b32 v39, v39, v34, vcc
v_cvt_f32_u32 v40, v36
v_cvt_f32_u32 v41, v37
v_cvt_f32_u32 v42, v38
v_cvt_f32_u32 v43, v39
""")
            addr_pairs([40, 41, 42, 43], [20, 21, 22, 23])
            a("v_max_i32 v20, s72, v20")
        def AC():
            a(f"""
v_cmp_eq_u32 s[62:63], 15, v1
s_mul_i32 s69, s67, {CHK}
s_add_u32 s64, s69, {KCP}
v_and_b32 v26, 255, v0
v_lshl_add_u32 v26, v26, 4, s64
v_add_u32 v34, 1, v1
v_and_b32 v34, 1, v34              ; s = (i+1)&1
v_mul_u32_u24 v35, 4158, v34       ; s*4160 - 2s
v_lshlrev_b32 v36, 4, v2
v_lshlrev_b32 v37, 1, v1
v_sub_u32 v36, v36, v37            ; 16g - 2i
s_bfe_u32 s73, s3, 0x10001
s_and_b32 s64, s3, 1
s_lshl_b32 s64, s64, 8              ; 64*4h
s_mul_i32 s65, s73, {CHK}
s_sub_u32 s65, s65, s64
s_add_u32 s72, s65, {KCP + 2*2031 - 192 - 512*7}
v_add3_u32 v27, v35, v36, s72      ; vA
v_add_u32 v17, 1024, v27
v_add_u32 v18, 2048, v27
v_add_u32 v19, 3072, v27
v_lshlrev_b32 v28, 5, v1
v_lshl_add_u32 v28, v2, 4, v28
s_mul_i32 s72, s73, {CHU}
s_sub_u32 s72, s72, s64
s_add_u32 s72, s72, {UA + 448 - 192}
v_add_u32 v28, s72, v28            ; vB
s_lshl_b32 s64, s3, 9
s_add_u32 s64, s64, {UA + 480}
v_lshl_add_u32 v30, v3, 3, s64
v_and_b32 v34, 3, v3
v_cmp_eq_u32 s[28:29], 3, v34
v_cmp_gt_u32 s[30:31], 2, v34
v_lshrrev_b32 v35, 2, v3
v_lshlrev_b32 v35, 8, v35
v_lshl_add_u32 v35, v34, 7, v35
v_add_u32 v113, {UA + 480 + 30}, v35
s_mul_i32 s58, s66, {PSTR}
s_add_u32 s58, s58, {UT}
s_lshl_b32 s64, s3, 10
s_add_u32 s57, s58, s64
s_add_u32 s55, s58, 8192
s_cmp_eq_u32 s3, 7
s_cselect_b64 s[52:53], s[28:29], 0
s_mov_b32 s50, 0x05040100
s_mov_b32 s51, 0x07060302
""")
        a(f"""
s_mul_i32 s59, s3, {WV}
v_mul_u32_u24 v24, {RS}, v1
v_lshl_add_u32 v24, v2, 4, v24
v_add_u32 v24, s59, v24
s_mov_b32 s71, {f2h(1.4426950216293335)}
s_mov_b32 m0, s59
""")
        def uloads():
            u = a.uid()
            a(f"""buffer_load_dwordx4 v[116:119], v25, s[32:35], s57 offen sc1
s_cmp_lg_u32 s3, 7
s_cbranch_scc1 L_ul{u}
buffer_load_dwordx4 v[120:123], v25, s[32:35], s55 offen sc1
L_ul{u}:""")
        early = s.o.get("ae", "SGC")
        for ch in early: {"S": AS, "G": AG, "C": AC}[ch]()
        s.stamp("p2")
        a(f"s_waitcnt vmcnt({nl})")
        s.stamp("p3")
        a("s_cmp_lg_u32 s3, 7\ns_cbranch_scc1 L_a_w\ns_waitcnt vmcnt(5)\nL_a_w:") if False else None
        if s.o.get("bal", 1): a(f"s_cmp_eq_u32 s67, 0\ns_cbranch_scc1 L_bal0\ns_setprio {s.o.get('ap', 1) + 1}\nL_bal0:")
        s.stamp(2); s.stamp("k0")
        if s.o.get("stop"): a("s_branch L_exit")
        s.exp2_bf16([(31, 114, 34), (32, 4, 36)])
        a(f"""
v_mul_f32 v33, v5, v31             ; zi
v_mul_f32 v32, v32, v31            ; -zr
v_mul_f32 v33, 0.15915494, v33     ; revolutions
v_mul_f32 v32, {f2h(-1.4426950408889634)}, v32     ; zr*log2e
v_add_f32 v31, v31, v31
v_mul_f32 v35, {f2h(8.0)}, v33
v_mul_f32 v37, {f2h(128.0)}, v33
v_mul_f32 v34, {f2h(8.0)}, v32
v_mul_f32 v36, {f2h(128.0)}, v32
v_fract_f32 v35, v35
v_fract_f32 v37, v37
v_fract_f32 v33, v33
v_exp_f32 v34, v34
v_cos_f32 v58, v35
v_sin_f32 v59, v35
v_exp_f32 v36, v36
v_cos_f32 v60, v37
v_sin_f32 v61, v37
v_exp_f32 v32, v32
v_cos_f32 v56, v33
v_sin_f32 v57, v33
v_mul_f32 v42, v6, v31
v_mul_f32 v43, v7, v31             ; G0 = 2C dt
v_mul_f32 v58, v58, v34
v_mul_f32_e64 v59, v59, -v34       ; conj E8
v_mul_f32 v60, v60, v36
v_mul_f32 v61, v61, v36
v_mul_f32 v56, v56, v32
v_mul_f32 v57, v57, v32
""")
        s.stamp("k1")
        E1, E8, E128, E2, E4 = 56, 58, 60, 38, 40
        pkr = [54, 55, 62, 63, 4, 5, 6, 7]
        st = {"k": 0}
        def emit(lst):
            ps = []
            for x, buf, row in lst:
                p = pkr[st["k"] % 8]; st["k"] += 1; ps.append(p)
                a(f"v_cvt_pk_bf16_f32 v{p}, v{x}, v{x+1}")
            for p, (x, buf, row) in zip(ps, lst):
                a(f"ds_write_addtid_b32 v{p} offset:{buf*BUF + row*RS}")
        X0, X1, XV, XW, T0, T1, T2, T3 = 42, 44, 46, 32, 48, 50, 52, 108
        GA, GB = 34, 36
        E16 = 110
        a(f"v_mov_b32 v7, 0x3f80\nds_write_addtid_b32 v7 offset:0")
        s.cmuls([(X1, X0, E128, T1), (E16, E8, E8, T2)])
        emit([(E8, 0, 1), (X0, 1, 0)])
        s.cmuls([(GA, X1, E128, T0), (XW, E16, E8, T3), (XV, E16, E16, T2)])
        emit([(X1, 1, 8), (E16, 0, 2), (XW, 0, 3), (XV, 0, 4)])
        for j in range(1, 8):
            l = [(X0, X0, E1, T0), (X1, X1, E1, T1)]
            e = [(X0, 1, j), (X1, 1, 8 + j)]
            if j <= 6: l.append((XW, XW, E16, T3)); e.append((XW, 0, 3 + 2*j))
            if j <= 5: l.append((XV, XV, E16, T2)); e.append((XV, 0, 4 + 2*j))
            if j == 6: l.append((E2, E1, E1, T2))
            if j == 7: l += [(GB, GA, E128, T2), (E4, E2, E2, T3)]
            s.cmuls(l); emit(e)
        s.stamp("k2")
        if s.o.get("bal", 1): a(f"s_setprio {s.o.get('ap', 1)}")
        a("s_waitcnt lgkmcnt(0)")
        s.stamp("k3")
        for ks in range(4): a(f"ds_read_b128 {V(64+4*ks,4)}, v24 offset:{64*ks}")
        for ks in range(4): a(f"ds_read_b128 {V(80+4*ks,4)}, v24 offset:{BUF+64*ks}")
        s.cmuls([(X0, GA, E2, T0), (X1, GB, E2, T1), (XV, GB, E128, T2), (E16, E128, E128, T3)])
        a("s_waitcnt lgkmcnt(4)")
        emit([(GA, 0, 0), (GB, 0, 4), (X0, 0, 1), (X1, 0, 5), (XV, 0, 8)])
        s.cmuls([(X0, X0, E2, T0), (X1, X1, E2, T1), (XW, XV, E128, T2), (GA, XV, E4, T3)])
        a("s_waitcnt lgkmcnt(5)")
        for ks in range(4): s.mfma(96, 80+4*ks, 64+4*ks, None if ks == 0 else 96)
        emit([(X0, 0, 2), (X1, 0, 6), (XW, 0, 10), (GA, 0, 9)])
        s.stamp("k4")
        ug = s.o.get("ug", 0) and not s.o.get("aonly")
        a("s_waitcnt vmcnt(0)")
        s.nonce_get(115)
        s.cmuls([(X0, X0, E2, T0), (X1, X1, E2, T1), (XV, XV, E16, T2), (GA, XW, E4, T3)])
        emit([(X0, 0, 3), (X1, 0, 7), (XV, 0, 12), (GA, 0, 11)])
        s.cmuls([(XW, XW, E16, T0), (GA, XV, E4, T1), (XV, XV, E16, T2)])
        emit([(XW, 0, 14), (GA, 0, 13), (XV, 1, 0)])
        s.cmuls([(GB, XW, E4, T0), (XW, XW, E16, T1), (XV, XV, E16, T2)])
        emit([(GB, 0, 15), (XW, 1, 1), (XV, 1, 2)])
        s.stamp("k5")
        if s.o.get("ul", 1) == 2: uloads()
        a("s_waitcnt lgkmcnt(2)")
        for ks in range(4): a(f"ds_read_b128 {V(80+4*ks,4)}, v24 offset:{64*ks}")
        for h in range(3):
            s.cmuls([(XW, XW, E16, T0), (XV, XV, E16, T1)])
            emit([(XW, 1, 3 + 2*h), (XV, 1, 4 + 2*h)])
            if h == 1:
                a("s_waitcnt lgkmcnt(4)")
                for ks in range(4): s.mfma(100, 80+4*ks, 64+4*ks, None if ks == 0 else 100)
        a("s_waitcnt lgkmcnt(0)")
        for ks in range(4): a(f"ds_read_b128 {V(80+4*ks,4)}, v24 offset:{BUF+64*ks}")
        s.stamp("k6")
        if s.o.get("ul", 1) == 3: uloads()
        a("v_add_u32 v32, s59, v25")
        a(f"ds_write_b128 v32, v[96:99]\nds_write_b128 v32, v[100:103] offset:1024")
        a("s_waitcnt lgkmcnt(2)")
        for ks in range(4): s.mfma(104, 80+4*ks, 64+4*ks, None if ks == 0 else 104)
        a(f"ds_write_b128 v32, v[104:107] offset:2048")
        s.stamp(8); s.stamp("k7"); s.stamp("p4")
        for ch in "SC":
            if ch not in early: {"S": AS, "C": AC}[ch]()
        a("s_waitcnt lgkmcnt(0)\ns_barrier")
        a(f"s_setprio {s.o.get('pe', 3)}")
        s.stamp(3); s.stamp("k8"); s.stamp("e0")
        if s.o.get("ul", 1) == 0: uloads()
        a(f"""
s_cmp_eq_u32 s68, 3
s_cbranch_scc1 L_zp
s_lshl_b32 s72, s68, 10
s_mul_i32 s73, s67, {4*WV}
s_add_u32 s72, s72, s73
v_add_u32 v32, s72, v25
ds_read_b128 v[96:99], v32
ds_read_b128 v[100:103], v32 offset:{WV}
ds_read_b128 v[104:107], v32 offset:{2*WV}
ds_read_b128 v[80:83], v32 offset:{3*WV}
s_waitcnt lgkmcnt(2)
v_pk_add_f32 v[96:97], v[96:97], v[100:101]
v_pk_add_f32 v[98:99], v[98:99], v[102:103]
s_waitcnt lgkmcnt(0)
v_pk_add_f32 v[104:105], v[104:105], v[80:81]
v_pk_add_f32 v[106:107], v[106:107], v[82:83]
v_pk_add_f32 v[96:97], v[96:97], v[104:105]
v_pk_add_f32 v[98:99], v[98:99], v[106:107]
v_cvt_pk_bf16_f32 v96, v96, v97
v_cvt_pk_bf16_f32 v98, v98, v99
ds_write_b16 v20, v96
ds_write_b16_d16_hi v21, v96
ds_write_b16 v22, v98
ds_write_b16_d16_hi v23, v98
s_branch L_zpd
L_zp:
v_mov_b32 v96, 0
v_mov_b32 v97, 0
v_mov_b32 v98, 0
v_mov_b32 v99, 0
s_mul_i32 s72, s67, {KCH}
s_add_u32 s72, s72, {KC + 2*(0x4501 - KB)}
v_mov_b32 v33, s72
ds_write_b16 v33, v96
s_mul_i32 s72, s67, {CHU}
s_add_u32 s72, s72, {UA}
v_add_u32 v33, s72, v25
s_mov_b64 exec, 0x3fffffff
ds_write_b128 v33, v[96:99]          ; zero pad in front of u
s_mov_b64 exec, -1
v_lshrrev_b32 v64, 1, v3
v_mul_u32_u24 v64, 4160, v64
v_and_b32 v65, 1, v3
v_lshl_add_u32 v64, v65, 4, v64
s_add_u32 s72, s69, {KCP + 4096}
v_add_u32 v64, s72, v64""")
        if ug: s.g_wait("u", "s66", wave=7)
        a("L_zpd:")
        if s.o.get("ul", 1) == 1 and not ug: uloads()
        if "G" not in early: AG()
        a("s_waitcnt lgkmcnt(0)")
        s.stamp("e1")
        a("s_barrier")
        s.stamp("e2")
        if ug: uloads()
        for e in range(9): a(f"ds_read_u16 v{32+e}, v{8+e}")
        a(f"""
s_cmp_lg_u32 s68, 3
s_cbranch_scc1 L_nzt
s_mov_b64 exec, 0xf
ds_write_b128 v64, v[96:99]
s_mov_b64 exec, -1
L_nzt:
s_waitcnt lgkmcnt(0)
""")
        for cp in range(2):
            for j in range(4):
                x = cp + 2*j
                a(f"v_lshl_or_b32 v{48+4*cp+j}, v{33+x}, 16, v{32+x}")
            a(f"ds_write_b128 v26, {V(48+4*cp,4)} offset:{4160*cp}")
        s.stamp("e3")
        a("s_branch L_chk_u\nL_poll_u:")
        uloads()
        a("L_chk_u:\ns_waitcnt vmcnt(0)")
        s.check("u", [(119, 25, "s57", 12, "s[28:29]"), (123, 25, "s55", 12, "s[52:53]")])
        s.stamp(4); s.stamp("e4")
        a(f"""v_perm_b32 v56, v117, v116, s50
v_perm_b32 v57, v119, v118, s50
v_perm_b32 v58, v117, v116, s51
v_perm_b32 v59, v119, v118, s51
ds_write_b64 v30, v[56:57]
ds_write_b64 v30, v[58:59] offset:{CHU}
s_waitcnt lgkmcnt(0)
s_barrier
s_cmp_lg_u32 s3, 7
s_cbranch_scc1 L_nlo
s_mov_b64 exec, s[30:31]""")
        for k in range(4):
            a(f"ds_write_b16 v113, v{120+k} offset:{32*k}\nds_write_b16_d16_hi v113, v{120+k} offset:{32*k + CHU}")
        a("s_mov_b64 exec, -1\ns_waitcnt lgkmcnt(0)\nL_nlo:\ns_barrier")
        fill_w = f"""v_lshrrev_b32 v4, 1, v1
v_and_b32 v4, 3, v4
v_xor_b32 v4, v4, v2
v_lshlrev_b32 v4, 4, v4
v_lshl_add_u32 v4, v1, 6, v4
s_lshl_b32 s64, s3, 13
s_add_u32 s65, s64, {XP[1] - 8192}
s_cmp_eq_u32 s3, 0
s_cselect_b32 s64, 0, s65
v_add_u32 v4, s64, v4""".split("\n")
        fill_r = f"""v_lshrrev_b32 v5, 3, v3
v_xor_b32 v5, v5, v3
v_and_b32 v5, 3, v5
v_lshlrev_b32 v5, 4, v5
v_and_b32 v6, 0x3c, v3
v_lshl_add_u32 v5, v6, 4, v5
s_lshl_b32 s64, s3, 10
v_add_u32 v5, s64, v5
v_lshrrev_b32 v6, 2, v3
v_mul_u32_u24 v6, 14336, v6
v_and_b32 v7, 3, v3
v_lshl_add_u32 v6, v7, 4, v6
s_mul_i32 s64, s3, {16*14336}
s_lshl_b32 s65, s66, 6
s_add_u32 s64, s64, s65
s_add_u32 s64, s64, {YT}
v_cmp_eq_u32 s[56:57], 3, v7
v_mov_b32 v11, s60
v_and_b32 v9, 7, v1
v_and_b32 v12, 1, v2
v_lshl_add_u32 v9, v12, 3, v9
v_lshrrev_b32 v12, 1, v9
v_and_b32 v12, 3, v12
v_xor_b32 v12, 3, v12
v_lshlrev_b32 v12, 4, v12
v_lshl_add_u32 v9, v9, 6, v12
s_lshl_b32 s72, s3, 10
s_add_u32 s72, s72, 12
v_add_u32 v9, s72, v9
v_mul_u32_u24 v10, 14336, v2
v_lshl_add_u32 v10, v1, 2, v10
s_mul_i32 s72, s3, {2*14336}
s_add_u32 s65, s65, s72
s_add_u32 s65, s65, {YT + 128*14336}""".split("\n")
        if s.o.get("sa"): a(f"s_sleep {s.o['sa']}")
        s.stamp(5); s.stamp("e5")
        a(f"s_setprio {s.o.get('pc', 1)}")
        a("s_cmp_lt_u32 s3, 4\ns_cbranch_scc1 L_conv")
        a("\n".join(fill_r))
        s.stamp(6); s.stamp("e6")
        a("s_branch L_tC\nL_conv:")
        filler = fill_w + fill_r
        free = [64 + 4*i for i in range(16)]
        Areg, Breg = {}, {}
        pend = []
        q = []
        exports = []
        NC = 4
        def assign(cl, d):
            off = 64 * (NC - 1 - cl)
            ra = free.pop(0); rb = free.pop(0)
            Areg[(cl, d)] = ra; Breg[(cl, d)] = rb
            q.append(((cl, d), f"ds_read_b128 {V(rb,4)}, v28 offset:{512*d + off}"))
            vb = (27, 17, 18, 19)[(7 - d) >> 1]; o = 128 * ((7 - d) & 1) + off // 4
            q.append(((cl, d), f"ds_read2_b32 {V(ra,2)}, v{vb} offset0:{o} offset1:{o+1}"))
            q.append(((cl, d), f"ds_read2_b32 {V(ra+2,2)}, v{vb} offset0:{o+2} offset1:{o+3}"))
        def issue1():
            k, t = q.pop(0); a(t); pend.append(k)
        def wait(cl, d):
            while any(k == (cl, d) for k, _ in q): issue1()
            if (cl, d) in pend:
                idx = max(i for i, k in enumerate(pend) if k == (cl, d))
                a(f"s_waitcnt lgkmcnt({len(pend) - 1 - idx})")
                del pend[:idx + 1]
        first = set(); n = [0]
        left = {T: (T + 1) * NC for T in range(8)}
        def export(T):
            a(f"ds_write_b128 v4, {V(32+4*T,4)} offset:{1024*T}"); pend.append("x")
        def mm(cl, p, qq):
            T = p + qq
            s.mfma(32 + 4*T, Areg[(cl, p)], Breg[(cl, qq)], None if T not in first else 32 + 4*T)
            first.add(T); n[0] += 1
            left[T] -= 1
            if left[T] == 0: exports.append((n[0] + 5, T))
            if q and len(pend) < 15: issue1()
            elif exports and exports[0][0] <= n[0] and len(pend) < 15: export(exports.pop(0)[1])
            elif filler:
                a(filler.pop(0))
                while filler and filler[0].startswith("s_"): a(filler.pop(0))
        todo = [(cl, d) for cl in range(NC) for d in range(8)]
        def refill():
            while todo and len(free) >= 2: assign(*todo.pop(0))
        refill()
        for _ in range(9): issue1()
        for cl in range(NC):
            for d in range(8):
                wait(cl, d)
                prs = [(d, j) for j in range(d) if d + j <= 7] + [(j, d) for j in range(d) if d + j <= 7]
                if 2*d <= 7: prs.append((d, d))
                if cl == NC - 1: prs.sort(key=lambda x: x[0] + x[1])
                for p, qq in prs: mm(cl, p, qq)
                if d >= 4:
                    for k in (7 - d, d):
                        free.append(Areg[(cl, k)]); free.append(Breg[(cl, k)])
                    refill()
        assert not todo and not q and not filler
        s.stamp(6); s.stamp("e6")
        for _, T in exports: export(T)
        a("L_tC:\ns_waitcnt lgkmcnt(0)")
        s.stamp("e7")
        a("s_barrier")
        s.stamp("e8")
        for qq in range(4): a(f"ds_read_b128 {V(64+8*qq,4)}, v5 offset:{XP[qq]}")
        for qq in range(4): a(f"ds_read_b32 v{100+qq}, v9 offset:{XP[qq]}")
        def add4(d, x):
            a(f"v_pk_add_f32 {V(d,2)}, {V(d,2)}, {V(x,2)}\nv_pk_add_f32 {V(d+2,2)}, {V(d+2,2)}, {V(x+2,2)}")
        a("s_waitcnt lgkmcnt(6)"); add4(64, 72)
        a("s_waitcnt lgkmcnt(4)"); add4(80, 88)
        for r in range(4): a(f"v_cvt_pk_bf16_f32 v{96+r}, v{64+r}, v{80+r}")
        a("""v_cndmask_b32 v99, v99, v11, s[56:57]
buffer_store_dwordx4 v[96:99], v6, s[32:35], s64 offen sc1
s_waitcnt lgkmcnt(0)""")
        s.hint_send("y", "s66", s.o.get("yw", 0))
        a("""v_add_f32 v100, v100, v101
v_add_f32 v102, v102, v103
v_cvt_pk_bf16_f32 v100, v100, v102
v_cndmask_b32 v100, v100, v11, s[62:63]
s_mov_b32 exec_hi, 0
buffer_store_dword v100, v10, s[32:35], s65 offen sc1
s_mov_b64 exec, -1""")
        s.stamp(7); s.stamp("e9")
    def table(s):
        T = tables.b_tables()
        buf = np.zeros(TB_SIZE // 4, np.uint32)
        for n, off in TB.items(): buf[off // 4: off // 4 + 256] = T[n].reshape(-1)
        out = [".p2align 8", ".type L_tbl,@object", "L_tbl:"]
        for i in range(0, len(buf), 8):
            out.append(".long " + ",".join(("0x%x" % x) if x else "0" for x in buf[i:i + 8]))
        out.append("L_tbl_end:")
        out.append(f".size L_tbl, {TB_SIZE}")
        return "\n".join(out)
    def build(s):
        a = s.a
        hdr = open("concat_heads__ssm_conv_s4d__spectral_gfnet__prompt.s.ref").read().split("; Override launch")[0]
        a.raw(hdr + f"; @launch grid=({NWG},1,1) block=(512,1,1) lds={LDS_BYTES}")
        a.raw(f'.amdgcn_target "amdgcn-amd-amdhsa--gfx950"\n.text\n.globl {KNAME}\n.p2align 8\n.type {KNAME},@function\n{KNAME}:')
        s.entry(); s.row_s1(); s.t_u(); s.column(); s.row_inv(); s.t_y(); s.a_path()
        a("L_exit:")
        s.stamp(9)
        s.stamp_flush()
        a("L_end:\ns_endpgm")
        a.raw(s.table())
        a.raw(f""".section .rodata,"a"
.p2align 6
.amdhsa_kernel {KNAME}
  .amdhsa_next_free_vgpr 128
  .amdhsa_next_free_sgpr 102
  .amdhsa_accum_offset 128
  .amdhsa_group_segment_fixed_size 0
  .amdhsa_kernarg_size 104
  .amdhsa_user_sgpr_count 2
  .amdhsa_user_sgpr_kernarg_segment_ptr 1
  .amdhsa_system_sgpr_workgroup_id_x 1
.end_amdhsa_kernel""")
        return a.text().replace("BPRIO", str(s.o.get("bp", 3))).replace("    REMAP\n", {0: "", 1: "    s_add_u32 s64, s2, 272\n    s_sub_u32 s2, s2, 224\n    s_cselect_b32 s2, s64, s2\n",
            2: "    s_add_u32 s64, s2, 128\n    s_sub_u32 s65, s2, 352\n    s_cmp_lt_u32 s2, 16\n    s_cselect_b32 s64, s2, s64\n    s_cmp_ge_u32 s2, 368\n    s_cselect_b32 s2, s65, s64\n"}[s.o.get("ord", 0)]).replace("    AONLY\n", "    s_endpgm\n" if s.o.get("aonly") else "").replace(" NTC", " nt" if s.o.get("ntc") else "").replace(" NTE", " nt" if s.o.get("nte") else "").replace(" NTP", " nt" if s.o.get("ntp") else "").replace(" NTF", " nt" if s.o.get("nt", 0) else "").replace(" NTW", " nt" if s.o.get("ntw", 0) else "").replace(" NTG", " nt" if s.o.get("ntg", 0) else "").replace(" OUTF", (" " + s.o["outf"]) if s.o.get("outf") else "")
if __name__ == "__main__":
    out = sys.argv[1]; stamps = len(sys.argv) > 2 and sys.argv[2] == "1"
    opts = json.loads(sys.argv[3]) if len(sys.argv) > 3 else {}
    g = G(stamps, opts); t = g.build(); open(out, "w").write(t)
    print("lines", t.count("\n"), "bytes", len(t), "nops", g.a.nops)
```

```python
import sys, math, json
import numpy as np
from asmlib import Asm, f2h
import tables
KNAME = "concat_heads__ssm_conv_s4d__spectral_gfnet__prompt_kernel"
Z1, Z2, UT, YT, STAMP = 0x010000, 0x220000, 0x430000, 0x640000, 0x1000000
EPOCH = 0x630000
HB = {'z1': 0x900000, 'u': 0x980000, 'z2': 0xA00000, 'y': 0xA80000}; HP = {'z1': 128, 'u': 144, 'z2': 256, 'y': 224}
CB = {'z1': 0x900000, 'z2': 0x920000, 'y': 0x940000, 'u': 0x960000}; EARLY = ('z1', 'u'); CT_ = {'z1': 16, 'z2': 32, 'y': 28, 'u': 18}
PSTR = 9216
NR0, NT0, NA0, NWG = 16, 144, 272, 496
LDS_BYTES = 78336
SPIN_MAX = 200000
WV, BUF, RS = 9216, 4608, 288
KC, KCH = 3072, 3072
KB = 0x3F7F
ZS = 0x4502 - KB
KCP, CHK, UA, CHU = 9216, 8320, 69120, 4608
XP = [0, 43008, 51200, 59392]
TB = {n: 1024 * i for i, n in enumerate(["COS28", "NSIN28", "R2RE", "R2IM", "TWRC", "TWRS", "F8RE", "F8IM", "G8RE", "G8IM",
                                          "R2BRE", "R2BIM", "TWIC", "TWIS", "R1B0", "R1B1"])}
TB_SIZE = 16384
T1, EB, CT = 16896, 37376, 49664

def V(a, n=1): return f"v{a}" if n == 1 else f"v[{a}:{a+n-1}]"
def S(a, n=1): return f"s{a}" if n == 1 else f"s[{a}:{a+n-1}]"

class G:
    def __init__(s, stamps=False, opts=None):
        s.a = Asm(); s.stamps = stamps; s.o = opts or {}
    def stamp(s, i):
        if not s.stamps: return
        prof = s.o.get("prof")
        if prof:
            if isinstance(i, str):
                if i[:len(prof)] == prof: s.a(f"s_memtime {S(80+2*int(i[len(prof):]),2)}")
            return
        if isinstance(i, int): s.a(f"s_memrealtime {S(80+2*i,2)}")
    def stamp_flush(s):
        if not s.stamps: return
        a = s.a
        if s.o.get("dbg") == 2:
            a(f"""s_load_dwordx2 s[100:101], s[0:1], 88
s_waitcnt lgkmcnt(0) vmcnt(0)
s_cmp_lg_u32 s3, 0
s_cbranch_scc1 L_end
s_sub_u32 s64, s2, {NT0}
s_cmp_ge_u32 s64, 8
s_cbranch_scc1 L_end
s_lshl_b32 s64, s64, 2
v_mov_b32 v5, s64
v_mov_b32 v4, s80
global_store_dword v5, v4, s[100:101]
v_mov_b32 v4, s98
global_store_dword v5, v4, s[100:101] offset:32
s_waitcnt vmcnt(0)""")
            return
        if s.o.get("dbg"):
            a("""s_load_dwordx2 s[100:101], s[0:1], 88
s_waitcnt lgkmcnt(0) vmcnt(0)
s_mov_b64 exec, 1""")
            def mx(slot, sreg, inv=False):
                if inv: a(f"s_not_b32 s64, {sreg}"); sreg = "s64"
                a(f"v_mov_b32 v4, {sreg}\nv_mov_b32 v5, {4*slot}\nglobal_atomic_umax v5, v4, s[100:101] sc1")
            st = lambda i: f"s{80+2*i}"
            mx(0, st(0), True)
            a(f"s_cmp_ge_u32 s2, {NA0}\ns_cbranch_scc1 L_dA\ns_cmp_ge_u32 s2, {NT0}\ns_cbranch_scc1 L_dT\ns_cmp_lt_u32 s2, {NR0}\ns_cbranch_scc1 L_dE")
            for k, i in enumerate((0, 2, 3, 5, 9)): mx(1 + k, st(i))
            a("s_branch L_dE\nL_dT:")
            for k, i in enumerate((3, 6, 7, 9)): mx(6 + k, st(i))
            a("s_branch L_dE\nL_dA:")
            for k, i in enumerate((0, 2, 3, 5, 6, 7)): mx(10 + k, st(i))
            a("L_dE:\ns_waitcnt vmcnt(0)")
            return
        a("s_waitcnt lgkmcnt(0) vmcnt(0)")
        for i in range(10): a(f"v_mov_b32 v{4+i}, s{80+2*i}")
        a(f"""v_mov_b32 v14, 0
v_mov_b32 v15, s70
v_mov_b32 v2, 0
s_lshl_b32 s64, s2, 3
s_add_u32 s64, s64, s3
s_lshl_b32 s64, s64, 6
s_add_u32 s64, s64, {STAMP}
buffer_store_dwordx4 v[4:7], v2, s[32:35], s64 offen
buffer_store_dwordx4 v[8:11], v2, s[32:35], s64 offen offset:16
buffer_store_dwordx4 v[12:15], v2, s[32:35], s64 offen offset:32
s_waitcnt vmcnt(0)""")
    def srd(s, base, size):
        s.a(f"s_mov_b32 s{base+2}, {size}\ns_mov_b32 s{base+3}, 0x20000")
    def mfma(s, d, A, B, c=None):
        s.a(f"v_mfma_f32_16x16x32_bf16 {V(d,4)}, {V(A,4)}, {V(B,4)}, {'0' if c is None else V(c,4)}")
    def twiddle(s, dre, dim, co, si, P, conj, T=8, packed=False):
        a = s.a
        if packed:
            for h in (0, 2):
                a(f"v_pk_mul_f32 {V(T+h,2)}, {V(dim+h,2)}, {V(si+h,2)}")
                a(f"v_pk_mul_f32 {V(T+4+h,2)}, {V(dre+h,2)}, {V(si+h,2)}")
            for h in (0, 2):
                n = " neg_lo:[0,0,1] neg_hi:[0,0,1]"
                a(f"v_pk_fma_f32 {V(dre+h,2)}, {V(dre+h,2)}, {V(co+h,2)}, {V(T+h,2)}{n if conj else ''}")
                a(f"v_pk_fma_f32 {V(dim+h,2)}, {V(dim+h,2)}, {V(co+h,2)}, {V(T+4+h,2)}{'' if conj else n}")
        else:
            for r in range(4):
                a(f"v_mul_f32 v{T+r}, v{dim+r}, v{si+r}")
                a(f"v_mul_f32 v{T+4+r}, v{dre+r}, v{si+r}")
            for r in range(4):
                a(f"v_fma_f32 v{dre+r}, v{dre+r}, v{co+r}, {'-' if conj else ''}v{T+r}")
                a(f"v_fma_f32 v{dim+r}, v{dim+r}, v{co+r}, {'' if conj else '-'}v{T+4+r}")
        s.pack(dre, dim, P)
    def pack(s, dre, dim, P):
        for r in range(4): s.a(f"v_cvt_pk_bf16_f32 v{P[r]}, v{dre+r}, v{dim+r}")
    def sincos4(s, a0, step, co, si, T=8):
        a = s.a
        a(f"v_add_f32 v{T+1}, v{a0}, v{step}")
        a(f"v_fma_f32 v{T+2}, v{step}, 2.0, v{a0}")
        a(f"v_add_f32 v{T+3}, v{T+2}, v{step}")
        regs = [a0, T+1, T+2, T+3]
        for r in range(4):
            a(f"v_cos_f32 v{co+r}, v{regs[r]}")
            a(f"v_sin_f32 v{si+r}, v{regs[r]}")
    def tbl_srd(s):
        s.a("s_getpc_b64 s[36:37]")
        n = s.a.uid()
        s.a.raw(f"L_pc{n}:")
        s.a(f"s_add_u32 s36, s36, L_tbl-L_pc{n}\ns_addc_u32 s37, s37, 0")
        s.srd(36, TB_SIZE)
    def tload(s, items, vaddr, sbase=None):
        cur = None
        for r, off in items:
            b = off & ~4095
            if b != cur:
                if sbase is None: s.a(f"s_mov_b32 s61, {b}")
                else: s.a(f"s_add_u32 s61, {sbase}, {b}")
                cur = b
            s.a(f"buffer_load_dwordx4 {V(r,4)}, v{vaddr}, s[36:39], s61 offen offset:{off - b}")
        return len(items)
    def nonce_issue(s, vn):
        s.a(f"s_mov_b32 s61, {EPOCH}\nbuffer_load_dword v{vn}, off, s[32:35], s61 NTE")
    def nonce_get(s, vn):
        s.a(f"v_add_u32 v{vn}, 1, v{vn}\nv_readfirstlane_b32 s60, v{vn}")
    def spin(s, tag, sleep):
        s.a(f"""s_add_u32 s70, s70, 1
s_cmp_gt_u32 s70, {SPIN_MAX}
s_cbranch_scc1 L_exit
s_sleep {sleep}
s_branch L_poll_{tag}""")
    def gate_issue(s, tag, K, stride, off, sreg, vt, wave=0):
        s.a(f"""
v_mul_u32_u24 v{vt+1}, {stride}, v3
s_cmp_lg_u32 s3, {wave}
s_cbranch_scc1 L_gi_{tag}
v_mov_b32 v{vt}, 0
s_mov_b64 exec, {hex((1<<K)-1)}
buffer_atomic_or v{vt}, v{vt+1}, s[32:35], {sreg} offen offset:{off} sc0 sc1
s_mov_b64 exec, -1
L_gi_{tag}:""")
    def gate_wait(s, tag, K, stride, off, sreg, vt, wave=0, sentinel=False):
        a = s.a
        a(f"""
s_cmp_lg_u32 s3, {wave}
s_cbranch_scc1 L_gd_{tag}
s_mov_b64 exec, {hex((1<<K)-1)}
s_branch L_gc_{tag}
L_poll_g{tag}:
v_mov_b32 v{vt}, 0
buffer_atomic_or v{vt}, v{vt+1}, s[32:35], {sreg} offen offset:{off} sc0 sc1
L_gc_{tag}:
s_waitcnt vmcnt(0)
v_cmp_{'eq' if sentinel else 'ne'}_u32 vcc, {'-1' if sentinel else 's60'}, v{vt}
s_cbranch_vccz L_gok_{tag}""")
        s.spin("g" + tag, s.o.get("gsl", 1))
        a(f"""L_gok_{tag}:
s_mov_b64 exec, -1
L_gd_{tag}:""")
    def hint_send(s, e, preg, wave=0, tag=""):
        R = s.o.get("R", 16)
        s.a(f"""
s_cmp_lg_u32 s3, {wave}
s_cbranch_scc1 L_hs_{e}{tag}""")
        s.a(f"""s_and_b32 s61, {preg}, 7
s_lshl_b32 s61, s61, 10
s_add_u32 s61, s61, {CB[e]}
s_add_u32 s76, s32, s61
s_addc_u32 s77, s33, 0
s_mov_b32 s100, {63 if e in EARLY else 1}""")
        for r in range(R): s.a(f"s_atomic_{'inc' if e in EARLY else 'add'} s100, s[76:77], {hex(8192*r)}")
        s.a(f"L_hs_{e}{tag}:")
    def hint_fill(s, e, rreg, val, tag, op="swap"):
        s.a(f"""s_lshl_b32 s61, {rreg}, 13
s_add_u32 s61, s61, {CB[e]}
s_add_u32 s76, s32, s61
s_addc_u32 s77, s33, 0
s_mov_b32 s100, {val}""")
        for x in range(8): s.a(f"s_atomic_{op} s100, s[76:77], {hex(1024*x)}")
    def hint_zero(s):
        s.a("s_cmp_lg_u32 s3, 7\ns_cbranch_scc1 L_hz0")
        if s.o.get("ug", 0): s.hint_fill("u", "s2", 0, "d", "add")
        s.hint_fill("z1", "s2", 0, "c", "add")
        s.a("L_hz0:")
        s.a("s_cmp_lg_u32 s3, 6\ns_cbranch_scc1 L_hz1")
        s.hint_fill("z2", "s2", 0, "a")
        s.a("L_hz1:\ns_cmp_lg_u32 s3, 5\ns_cbranch_scc1 L_hz")
        s.hint_fill("y", "s2", 0, "b")
        s.a("L_hz:")
    def hint_rearm(s, e):
        s.a(f"s_cmp_ge_u32 s71, 16\ns_cbranch_scc1 L_ra_{e}\ns_cmp_lg_u32 s3, 1\ns_cbranch_scc1 L_ra_{e}")
        s.hint_fill(e, "s71", -1, "r")
        s.a(f"L_ra_{e}:")
    def g_wait(s, e, creg, wave=0):
        a = s.a
        R = s.o.get("R", 16); dl = s.o.get("dl", {}); tg = CT_[e]; sh = 1 if e in EARLY else 0
        a(f"""s_cmp_lg_u32 s3, {wave}
s_cbranch_scc1 L_hd_{e}
s_lshr_b32 s61, {creg}, 3
s_and_b32 s61, s61, {R-1}
s_lshl_b32 s61, s61, 13
s_add_u32 s61, s61, {CB[e]}
s_add_u32 s24, s32, s61
s_addc_u32 s25, s33, 0
s_mov_b32 s101, 0""")
        for k in range(8): a(f"s_mov_b32 s{72+k}, 0")
        if e == "z1" and dl.get("z1t"):
            a(f"s_cmp_ge_u32 s2, {NT0}\ns_cbranch_scc1 L_dlt\ns_sleep {dl.get('z1r', 0)}\ns_branch L_dlr\nL_dlt:\ns_sleep {dl['z1t']}\nL_dlr:")
        elif dl.get(e): a(f"s_sleep {dl[e]}")
        a(f"L_poll_h{e}:")
        for k in range(8):
            if sh: a(f"s_add_u32 s61, s{72+k}, 1\ns_lshr_b32 s61, s61, 1")
            a(f"""s_cmp_eq_u32 {'s61' if sh else 's%d' % (72+k)}, {tg >> sh}
s_cbranch_scc1 L_hp{k}_{e}
s_mov_b32 s{72+k}, 0
s_atomic_add s{72+k}, s[24:25], {hex(1024*k)} glc
L_hp{k}_{e}:""")
        a("s_add_u32 s101, s101, 1\ns_add_u32 s70, s70, 1\ns_waitcnt lgkmcnt(0)")
        a("s_mov_b32 s100, 0")
        for k in range(8):
            if sh: a(f"s_add_u32 s61, s{72+k}, 1\ns_lshr_b32 s61, s61, 1\ns_xor_b32 s61, s61, {tg >> 1}")
            else: a(f"s_xor_b32 s61, s{72+k}, {tg}")
            a("s_or_b32 s100, s100, s61")
        a(f"""s_cbranch_scc0 L_hd_{e}
s_sleep {s.o.get("gsl", 1)}
s_cmp_lt_u32 s101, {s.o.get("NF", 32)}
s_cbranch_scc1 L_poll_h{e}
L_hd_{e}:""")
    def w_sprefetch(s, tag):
        a = s.a
        a(f"""s_cmp_eq_u32 s3, 0
s_cbranch_scc1 L_sp_{tag}
s_mov_b32 s27, s3
L_sp1_{tag}:
s_lshl_b32 s61, s67, 3
s_add_u32 s61, s61, s27
s_lshl_b32 s61, s61, 4
s_add_u32 s61, s61, s66
s_mul_i32 s61, s61, 450
s_and_b32 s61, s61, -4
s_min_u32 s61, s61, {921600 - 452}
s_add_u32 s24, s48, s61
s_addc_u32 s25, s49, 0""")
        st = s.o.get("pst", 128)
        offs = list(range(0, 449, st)) + ([448] if 448 % st else [])
        for o in offs: a(f"s_load_dword s23, s[24:25], {o}")
        a("s_add_u32 s24, s52, s61\ns_addc_u32 s25, s53, 0")
        for o in offs: a(f"s_load_dword s23, s[24:25], {o}")
        a(f"""s_cmp_lg_u32 s27, 4
s_mov_b32 s27, 0
s_cbranch_scc0 L_sp1_{tag}
L_sp_{tag}:""")
    def check(s, tag, items):
        a = s.a
        m = [S(r, 2) for r in (72, 74, 76, 78, 48, 50, 52, 40)[:len(items)]]
        for mi, it in zip(m, items): a(f"v_cmp_ne_u32 {mi}, s60, v{it[0]}")
        same = len({it[4] for it in items}) == 1
        def merge(pre):
            if pre:
                for mi, it in zip(m, items): a(f"s_and_b64 {mi}, {mi}, {it[4]}")
            a(f"s_or_b64 vcc, {m[0]}, {m[1]}")
            for mi in m[2:]: a(f"s_or_b64 vcc, vcc, {mi}")
        if same:
            merge(False); a(f"s_and_b64 vcc, vcc, {items[0][4]}\ns_cbranch_scc0 L_got_{tag}")
            for mi, it in zip(m, items): a(f"s_and_b64 {mi}, {mi}, {it[4]}")
        else:
            merge(True); a(f"s_cbranch_scc0 L_got_{tag}")
        if s.o.get("aonly") or s.o.get("loud"):
            if s.o.get("aonly"): a(f"s_branch L_got_{tag}")
            else: s.spin(tag, s.o.get("sl", 4))
            a(f"L_got_{tag}:"); return
        a(f"""L_q_{tag}:
s_add_u32 s70, s70, 1
s_cmp_gt_u32 s70, {SPIN_MAX}
s_cbranch_scc1 L_exit""")
        for k, (mi, it) in enumerate(zip(m, items)):
            a(f"""s_mov_b64 exec, {mi}
s_cbranch_execz L_q{k}_{tag}
v_mov_b32 v{it[0]}, 0
buffer_atomic_or v{it[0]}, v{it[1]}, s[32:35], {it[2]} offen offset:{it[3]} sc0 sc1
L_q{k}_{tag}:""")
        a("s_mov_b64 exec, -1\ns_waitcnt vmcnt(0)")
        for mi, it in zip(m, items):
            a(f"v_cmp_ne_u32 vcc, s60, v{it[0]}\ns_and_b64 {mi}, {mi}, vcc")
        merge(False)
        a(f"""s_cbranch_scc0 L_poll_{tag}
s_sleep {s.o.get("qsl", 2)}
s_branch L_q_{tag}
L_got_{tag}:""")
    def gk(s, n):
        K = s.o.get("K", 8)
        st = (n - 1) // (K - 1) if K > 1 else 1
        if st % 2 == 0: st -= 1
        return K, 64 * st
    def lanes(s):
        s.a("""v_lshrrev_b32 v4, 6, v0
v_and_b32 v3, 63, v0
v_readfirstlane_b32 s3, v4
v_and_b32 v1, 15, v0
v_bfe_u32 v2, v0, 4, 2
s_mov_b32 s70, 0""")
    def prefetch(s, tag):
        if s.o.get("nopf"): return
        s.a(f"""
s_cmp_lg_u32 s3, 7
s_cbranch_scc1 L_nopf_{tag}
s_lshr_b32 s64, s2, 3
s_and_b32 s64, s64, 1
s_lshl_b32 s64, s64, 13
s_sub_u32 s74, s36, L_tbl-{KNAME}
s_subb_u32 s75, s37, 0
v_lshl_add_u32 v124, v3, 7, s64
v_min_u32 v124, L_tbl-{KNAME}-4, v124
global_load_dword v124, v124, s[74:75]
L_nopf_{tag}:""")

    def entry(s):
        a = s.a
        s.stamp(0); s.stamp("p0")
        if s.o.get("s0"): a(f"s_sleep {s.o['s0']}")
        a(f"""
s_load_dwordx16 s[4:19], s[0:1], 0
s_load_dwordx8 s[20:27], s[0:1], 64
s_load_dwordx2 s[32:33], s[0:1], 96
s_getpc_b64 s[36:37]
L_pc:
v_cmp_gt_u32 vcc, 8, v0
s_bfe_u32 s66, s2, 0x50003
s_lshl_b32 s66, s66, 10
s_and_saveexec_b64 s[64:65], vcc
s_cbranch_execz L_nopf
v_lshl_add_u32 v124, v0, 7, s66
v_min_u32 v124, L_tbl_end-L_pc-4, v124
{'s_nop 0' if s.o.get('nopf') else 'global_load_dword v124, v124, s[36:37] NTP'}    ; pull 1 KiB of the code into this XCD's L2 (speed only)
L_nopf:
s_mov_b64 exec, -1
s_cmp_ge_u32 s2, {NWG}
s_cbranch_scc1 L_end
REMAP
s_cmp_lt_u32 s2, {NA0}
s_cbranch_scc1 L_B
s_sub_u32 s66, s2, {NA0}           ; pair
s_lshl_b32 s64, s66, 10
v_lshl_add_u32 v24, v0, 1, s64
s_lshl_b32 s64, s66, 1
v_lshrrev_b32 v25, 8, v0
v_add_lshl_u32 v25, v25, s64, 1
s_waitcnt lgkmcnt(0)
KSTAMP
global_load_short_d16_hi v114, v25, s[14:15] NTF
global_load_short_d16_hi v4, v24, s[6:7] NTF
global_load_short_d16_hi v5, v24, s[8:9] NTF
global_load_short_d16_hi v6, v24, s[10:11] NTF
global_load_short_d16_hi v7, v24, s[12:13] NTF
s_branch L_A
L_B:
AONLY
v_lshrrev_b32 v4, 6, v0
v_and_b32 v3, 63, v0
v_readfirstlane_b32 s3, v4
v_lshlrev_b32 v7, 4, v3            ; lane*16
s_sub_u32 s58, s2, {NR0}
s_add_u32 s36, s36, L_tbl-L_pc
s_addc_u32 s37, s37, 0
s_mov_b32 s38, {TB_SIZE}
s_mov_b32 s39, 0x20000
s_mov_b32 s42, 1835008
s_mov_b32 s43, 0x20000
s_cmp_lt_u32 s58, 128
s_cbranch_scc0 L_pT
s_mov_b32 s71, s58
s_lshl_b32 s64, s3, 8
s_add_u32 s64, s64, s58
s_mov_b32 s66, {128*896}
s_lshl_b32 s65, s3, 11
s_movk_i32 s67, 1024
s_lshl_b32 s68, s3, 10
s_waitcnt lgkmcnt(0)
s_mov_b64 s[40:41], s[18:19]
s_branch L_pC
L_pT:
s_sub_u32 s71, s2, {NT0}
s_lshl_b32 s28, s71, 4             ; main blocks: rows 16*blk + j
s_lshl_b32 s64, s2, 7
s_add_u32 s64, s64, 15             ; leftover blocks: rows 128*b + 15 + 16j
s_add_u32 s65, s2, 128
s_cmp_lt_u32 s2, {NR0}
s_cselect_b32 s28, s64, s28
s_cselect_b32 s71, s65, s71
s_cselect_b32 s59, 16, 1
s_cselect_b32 s66, 0, {8*896}
s_mul_i32 s64, s59, s3
s_add_u32 s64, s64, s28
s_mul_i32 s65, s3, 1040
s_movk_i32 s67, {8*1040}
s_and_b32 s68, s3, 3
s_lshl_b32 s68, s68, 10
s_add_u32 s68, s68, {TB["F8RE"]}
s_waitcnt lgkmcnt(0)
s_mov_b64 s[40:41], s[4:5]
L_pC:
KSTAMP
s_mul_i32 s64, s64, 896
s_mov_b32 m0, s65
s_add_u32 s66, s66, s64
buffer_load_dwordx4 v7, s[40:43], s64 offen NTF lds
s_add_u32 m0, s65, s67
s_mov_b32 s61, {EPOCH}
buffer_load_dwordx4 v7, s[40:43], s66 offen NTF lds
s_add_u32 m0, s68, {CT}
s_mov_b32 s34, 0x10000000
s_mov_b32 s35, 0x20000
buffer_load_dword v31, off, s[32:35], s61 NTE
{'s_nop 0' if s.o.get('nocd') else 'buffer_load_dwordx4 v7, s[36:39], s68 offen NTC lds'}
v_and_b32 v1, 15, v0
v_bfe_u32 v2, v0, 4, 2
s_mov_b32 s70, 0
""")
        s.stamp(1); s.stamp("p1")
        a("s_cmp_lt_u32 s58, 128\ns_cbranch_scc0 L_T")
    def cread(s, items):
        for r, n in items: s.a(f"ds_read_b128 {V(r,4)}, v7 offset:{CT + TB[n]}")
    def matrix(s, a0, step, re, im, conj):
        s.sincos4(a0, step, 96, 100)
        for j in range(4):
            s.a(f"v_cvt_pk_bf16_f32 v{re+j}, v{96+j}, {'-' if conj else ''}v{100+j}")
            s.a(f"v_cvt_pk_bf16_f32 v{im+j}, {'' if conj else '-'}v{100+j}, v{96+j}")
    def b0(s):
        a = s.a
        s.srd(44, 3670016); s.srd(48, 921600); s.srd(52, 921600)
        a(f"""
v_cmp_eq_u32 s[62:63], 15, v1
s_mov_b64 s[44:45], s[24:25]
s_mov_b64 s[48:49], s[20:21]
s_mov_b64 s[52:53], s[22:23]
s_and_b32 s66, s58, 15         ; f1
s_lshr_b32 s67, s58, 4         ; k2
v_lshlrev_b32 v10, 2, v1
v_lshl_add_u32 v24, v2, 19, v10    ; g*524288 + 4c
v_cvt_f32_u32 v4, v1
v_lshlrev_b32 v5, 2, v2
v_cvt_f32_u32 v5, v5
v_mul_f32 v4, {f2h(1/16)}, v4          ; c/16
""")
    def bw(s):
        s.a(f"""
s_mul_i32 s64, s67, 56
s_sub_u32 s65, 896, s64
s_cmp_lt_u32 s67, 8
s_cselect_b32 s64, s64, s65
s_cselect_b32 s65, 2, -2
v_and_b32 v8, 1, v2
v_lshrrev_b32 v9, 1, v2
v_mul_i32_i24 v6, s65, v1
v_mul_u32_u24 v10, {1024*450}, v8
v_mul_u32_u24 v11, {16*450}, v9
v_add_u32 v6, s64, v6
v_add3_u32 v6, v6, v10, v11
s_lshl_b32 s64, s3, 5
s_add_u32 s64, s64, s66
s_mul_i32 s68, s64, 450        ; W soffset r=0
""")
    def bc(s):
        a = s.a
        a(f"""
v_and_b32 v8, 1, v2
v_lshrrev_b32 v9, 1, v2
v_lshlrev_b32 v10, 2, v1
v_lshl_add_u32 v27, v2, 11, v10    ; Z1 poll: g*2048 + 4c
v_mul_u32_u24 v12, 48, v1
v_mul_u32_u24 v28, 3072, v2
s_lshl_b32 s64, s3, 2
s_add_u32 s64, s64, {EB}
v_add3_u32 v28, v28, v12, s64          ; E b32: 4g*768 + 48c + 4w
v_mul_u32_u24 v9, 768, v9
v_lshl_add_u32 v9, v8, 4, v9
s_mul_i32 s64, s3, 1536
s_add_u32 s64, s64, {EB}
v_add3_u32 v29, v9, v12, s64           ; E b128
v_cvt_f32_u32 v8, s3
v_mul_f32 v8, {f2h(1/8)}, v8           ; b/8
v_add_f32 v13, v5, v8
v_mul_f32 v13, v13, v4
v_fmamk_f32 v12, v8, {f2h(1/16)}, v4
""")
        s.matrix(13, 4, 64, 68, False)
        a("v_mul_f32 v13, v12, v5")
        s.matrix(13, 12, 72, 76, True)
    def w_prefetch(s, d):
        s.a(f"""
s_lshl_b32 s64, s67, 3
s_add_u32 s64, s64, s3
s_lshl_b32 s64, s64, 4
s_add_u32 s64, s64, s66
s_mul_i32 s64, s64, 450
v_lshlrev_b32 v8, 7, v3
v_min_u32 v8, 448, v8
buffer_load_ushort v{d}, v8, s[48:51], s64 offen NTW
buffer_load_ushort v{d+1}, v8, s[52:55], s64 offen NTW
""")
        return 2
    def w_early(s, tag):
        a = s.a
        a(f"s_cmp_eq_u32 s3, 0\ns_cbranch_scc1 L_we_{tag}")
        s.w_loads()
        a(f"s_cmp_lg_u32 s3, 1\ns_cbranch_scc1 L_we_{tag}\ns_mul_i32 s61, s66, 450")
        for r in range(4):
            a(f"buffer_load_ushort v{88+r}, v6, s[48:51], s61 offen NTG")
            a(f"buffer_load_ushort v{92+r}, v6, s[52:55], s61 offen NTG")
            if r < 3: a(f"s_add_u32 s61, s61, {256*450}")
        a(f"L_we_{tag}:")
    def w_loads(s):
        a = s.a
        if s.o.get("now"):
            for r in range(8): a(f"buffer_load_dword v{16+r}, off, s[36:39], 0")
            return
        for r in range(4):
            a(f"buffer_load_short_d16_hi v{16+r}, v6, s[48:51], s68 offen NTG")
            a(f"buffer_load_short_d16_hi v{20+r}, v6, s[52:55], s68 offen NTG")
            if r < 3: a(f"s_add_u32 s68, s68, {256*450}")
    def row_s1(s):
        a = s.a
        s.b0()
        wp = s.o.get("wp", 5)
        if s.o.get("wg", 1) == 5:
            s.bw()
            if s.o.get("wd0"): a(f"s_sleep {s.o['wd0']}")
            s.w_loads()
        a(f"""
v_cvt_f32_u32 v8, s71
v_mul_f32 v8, {f2h(1/128)}, v8             ; sigma/128
v_add_f32 v13, v5, v8
v_mul_f32 v13, v13, v4
""")
        s.matrix(13, 4, 56, 60, False)
        a(f"""
v_mul_u32_u24 v25, 5120, v2
v_mul_u32_u24 v8, 80, v1
s_lshl_b32 s64, s3, 3
s_add_u32 s64, s64, {T1}
v_add3_u32 v25, v25, v8, s64          ; T write: g*5120 + 80c + 8w
s_mul_i32 s64, s3, 2560
s_add_u32 s64, s64, {T1}
v_lshl_add_u32 v26, v2, 4, v8
v_add_u32 v26, s64, v26               ; T read: 2w*1280 + 80c + 16g
s_lshl_b32 s65, s3, 11
v_lshl_add_u32 v120, v3, 3, s65
""")
        if s.o.get("wg", 1) != 5: s.bw()
        if s.o.get("bce"): s.bc()
        if s.o.get("wd"): a(f"s_sleep {s.o['wd']}")
        if wp == 1: s.w_prefetch(94)
        s.stamp("p2")
        a(f"s_setprio BPRIO\ns_waitcnt vmcnt({8 if s.o.get('wg', 1) == 5 else (2 if wp < 2 else 0)})")
        s.stamp(2); s.stamp("s0"); s.stamp("p3")
        if s.o.get("stop"): a("s_branch L_exit")
        a("s_barrier")
        s.stamp("s1")
        pk = s.o.get("pk", True)
        a(f"""
ds_read_b64_tr_b16 v[96:97], v120
ds_read_b64_tr_b16 v[98:99], v120 offset:512
""")
        s.cread([(32, "COS28"), (36, "NSIN28")])
        a(f"""
ds_read_b64_tr_b16 v[100:101], v120 offset:1024
ds_read_b64_tr_b16 v[102:103], v120 offset:1536
""")
        s.cread([(48, "TWRC"), (52, "TWRS"), (40, "R2RE"), (44, "R2IM")])
        if s.o.get("wg", 1) == 0: s.w_loads()
        if wp == 3: s.w_prefetch(94)
        s.stamp("s2")
        s.nonce_get(31)
        a("s_waitcnt lgkmcnt(6)")
        s.mfma(104, 96, 32); s.mfma(108, 96, 36)
        a("s_waitcnt lgkmcnt(4)")
        s.mfma(112, 100, 32); s.mfma(116, 100, 36)
        a("s_waitcnt lgkmcnt(0)")
        s.stamp("s3")
        s.twiddle(104, 108, 48, 52, [96, 97, 98, 99], False, packed=pk)
        s.mfma(104, 40, 96); s.mfma(108, 44, 96)
        s.twiddle(112, 116, 48, 52, [100, 101, 102, 103], False, packed=pk)
        s.mfma(112, 40, 100); s.mfma(116, 44, 100)
        s.stamp("s4")
        s.pack(104, 108, [120, 122, 124, 126]); s.pack(112, 116, [121, 123, 125, 127])
        for r in range(4): a(f"ds_write_b64 v25, {V(120+2*r,2)} offset:{1280*r}")
        a(f"""
s_lshl_b32 s64, s71, 6
s_lshl_b32 s65, s3, 14
s_add_u32 s64, s64, s65            ; sigma*64 + 2w*8192
s_waitcnt lgkmcnt(0)""")
        s.stamp("s5")
        a("s_barrier")
        s.stamp("s6")
        a(f"""
ds_read_b128 v[96:99], v26
ds_read_b128 v[100:103], v26 offset:1280
s_waitcnt lgkmcnt(1)
""")
        s.mfma(104, 56, 96); s.mfma(108, 60, 96)
        a("s_waitcnt lgkmcnt(0)")
        s.mfma(112, 56, 100); s.mfma(116, 60, 100)
        if s.o.get("hp", 0) == 0: s.hint_send("z1", "s71", s.o.get("hw", 0))
        s.stamp("s7")
        for t, (dr, di, P) in enumerate(((104, 108, 120), (112, 116, 124))):
            s.pack(dr, di, [P, P+1, P+2, P+3])
            for r in range(4): a(f"v_cndmask_b32 v{P+r}, v{P+r}, v31, s[62:63]")
            for r in range(4):
                a(f"s_add_u32 s65, s64, {Z1 + t*8192 + r*131072}")
                a(f"buffer_store_dword v{P+r}, v24, s[32:35], s65 offen sc1")
        if s.o.get("hp", 0) == 1: s.hint_send("z1", "s71", s.o.get("hw", 0))
        s.stamp(3); s.stamp("s8")
        s.z1_gate_issue("r")
        a(f"""s_barrier
s_lshl_b32 s64, s3, 10
s_add_u32 s64, s64, 8192
s_add_u32 m0, s64, {CT}
buffer_load_dwordx4 v7, s[36:39], s64 offen lds""")
        if s.o.get("wg", 1) == 1: s.w_loads()
        if s.o.get("wg", 1) == 3: s.w_early("r")
        if wp == 4: s.w_prefetch(94)
        if wp == 6: s.w_sprefetch("r")
        if not s.o.get("bce"):
            a("s_setprio 0"); s.bc(); a("s_setprio BPRIO")
        a("s_branch L_col")
    def z1_gate_issue(s, tag):
        s.a(f"""
s_lshl_b32 s64, s66, 4
s_add_u32 s64, s64, s67
s_lshl_b32 s64, s64, 13
s_lshl_b32 s65, s3, 6
s_add_u32 s69, s64, s65
s_add_u32 s69, s69, {Z1}           ; Z1 + unit*8192 + w*64
""")
    def t_u(s):
        a = s.a
        a(f"L_T:\ns_cmp_ge_u32 s2, {NR0}\ns_cbranch_scc1 L_hz")
        s.hint_zero()
        a(f"""
v_and_b32 v10, 3, v3
v_lshrrev_b32 v11, 2, v3
v_cmp_eq_u32 s[56:57], 3, v10
v_mul_u32_u24 v120, 4160, v10
v_lshl_add_u32 v120, v11, 2, v120
s_lshl_b32 s64, s3, 6
v_add_u32 v120, s64, v120          ; LDS: 4160e + 4q + 64w
v_mul_u32_u24 v121, {PSTR}, v11
v_lshl_add_u32 v121, v10, 4, v121  ; q*PSTR + 16e
""")
        s.b0(); s.bw()
        if s.o.get("wg", 1) == 5:
            if s.o.get("wd0"): a(f"s_sleep {s.o['wd0']}")
            s.w_loads()
        if s.o.get("tce", 1): s.bc()
        wp = s.o.get("wp", 5)
        if s.o.get("wdt"): a(f"s_sleep {s.o['wdt']}")
        if wp < 2: s.w_prefetch(62)
        a(f"""
s_mul_i32 s64, s3, {16*PSTR}
s_lshl_b32 s65, s71, 6
s_add_u32 s64, s64, s65
s_add_u32 s64, s64, {UT}
s_add_u32 s65, s64, {128*PSTR}
""")
        s.stamp("p2")
        a(f"s_setprio BPRIO\ns_waitcnt vmcnt({9 if s.o.get('wg', 1) == 5 else (3 if wp < 2 else 1)})")
        s.stamp(2); s.stamp("p3")
        if s.o.get("stop"): a("s_branch L_exit")
        a("s_barrier")
        for k in range(2):
            for i in range(4): a(f"ds_read_b32 v{96+4*k+i}, v120 offset:{1040*i + 512*k}")
        s.nonce_get(31)
        a(f"""
s_waitcnt lgkmcnt(4)
v_cndmask_b32 v99, v99, v31, s[56:57]
buffer_store_dwordx4 v[96:99], v121, s[32:35], s64 offen sc1
s_cmp_ge_u32 s3, 6
s_cbranch_scc1 L_T_p2
s_waitcnt lgkmcnt(0)
v_cndmask_b32 v103, v103, v31, s[56:57]
buffer_store_dwordx4 v[100:103], v121, s[32:35], s65 offen sc1
L_T_p2:
""")
        if s.o.get("ug", 0): s.hint_send("u", "s71", s.o.get("uw", 7))
        s.stamp(3)
        if s.o.get("tfe", 0): s.t_prep(); a("s_setprio BPRIO")
        a(f"""
s_cmp_lt_u32 s2, {NR0}
s_cbranch_scc1 L_Ty
""")
        s.z1_gate_issue("t")
        if wp in (3, 4): s.w_prefetch(62)
        if wp == 6: s.w_sprefetch("t")
        if wp == 5:
            a(f"""
s_barrier
s_sub_u32 s65, s3, 1
s_cmp_ge_u32 s65, 4
s_cbranch_scc1 L_nwp
s_sub_u32 s64, s67, 8
s_lshl_b32 s64, s64, 2
s_add_u32 s64, s64, s65
s_lshl_b32 s64, s64, 6
s_add_u32 s64, s64, s66
s_mul_i32 s64, s64, 450
v_lshlrev_b32 v8, 7, v1
v_min_u32 v8, 448, v8
v_mul_u32_u24 v9, {16*450}, v2
v_add_u32 v8, v8, v9
buffer_load_ushort v60, v8, s[48:51], s64 offen NTW
buffer_load_ushort v61, v8, s[52:55], s64 offen NTW
L_nwp:
""")
        if s.o.get("wg", 1) < 2:
            a("s_barrier")
            s.w_loads()
        if s.o.get("wg", 1) == 3:
            a("s_barrier")
            s.w_early("t")
        if not s.o.get("tce", 1):
            a("s_setprio 0"); s.bc(); a("s_setprio BPRIO")
    def column(s):
        a = s.a
        a(f"L_col:\ns_setprio {s.o.get('pcol', 2)}")
        s.stamp(4)
        s.g_wait("z1", "s58")
        if s.o.get("zs") == 1: s.stamp(7)
        wg = s.o.get("wg", 1)
        a(f"s_waitcnt vmcnt({8 if wg == 1 else 0})\ns_barrier")
        if s.o.get("zs") == 1: s.stamp(1)
        def zl():
            for j in range(4): a(f"buffer_load_dword v{96+j}, v27, s[32:35], s69 offen offset:{512*j} sc1")
        zl()
        if wg == 2: s.w_loads()
        if wg == 3:
            a("s_cmp_lg_u32 s3, 0\ns_cbranch_scc1 L_wl0"); s.w_loads(); a("s_waitcnt vmcnt(8)\ns_branch L_wl1\nL_wl0:\ns_waitcnt vmcnt(0)\nL_wl1:")
        s.cread([(32, "F8RE"), (36, "F8IM"), (40, "G8RE"), (44, "G8IM")])
        if wg != 3: a(f"s_waitcnt vmcnt({8 if wg == 2 else 0})")
        if s.o.get("zs") == 1: s.stamp(2)
        a("s_branch L_chk_z1\nL_poll_z1:")
        zl()
        a("s_waitcnt vmcnt(0)\nL_chk_z1:")
        s.check("z1", [(96 + j, 27, "s69", 512 * j, "s[62:63]") for j in range(4)])
        s.stamp(5)
        s.mfma(104, 64, 96); s.mfma(108, 68, 96)
        s.pack(104, 108, [120, 121, 122, 123])
        for r in range(4): a(f"ds_write_b32 v28, v{120+r} offset:{768*r}")
        a("s_waitcnt lgkmcnt(0)\ns_barrier\nds_read_b128 v[96:99], v29\ns_waitcnt lgkmcnt(0)")
        s.mfma(104, 32, 96); s.mfma(108, 36, 96)
        a("s_waitcnt vmcnt(0)")
        s.twiddle(104, 108, 16, 20, [96, 97, 98, 99], True)
        s.mfma(104, 40, 96); s.mfma(108, 44, 96)
        s.pack(104, 108, [120, 121, 122, 123])
        a("ds_write_b128 v29, v[120:123]\ns_waitcnt lgkmcnt(0)\ns_barrier")
        for j in range(4): a(f"ds_read_b32 v{96+j}, v28 offset:{768*j}")

        a(f"""
s_lshl_b32 s64, s3, 14
s_lshl_b32 s65, s67, 10
s_add_u32 s64, s64, s65
s_lshl_b32 s65, s66, 6
s_add_u32 s64, s64, s65
s_waitcnt lgkmcnt(0)
""")
        s.mfma(104, 72, 96); s.mfma(108, 76, 96)
        if s.o.get("hp", 0) == 0: s.hint_send("z2", "s58", s.o.get("hw", 0))
        s.pack(104, 108, [120, 121, 122, 123])
        for r in range(4): a(f"v_cndmask_b32 v{120+r}, v{120+r}, v31, s[62:63]")
        for r in range(4):
            a(f"s_add_u32 s65, s64, {Z2 + r*131072}")
            a(f"buffer_store_dword v{120+r}, v24, s[32:35], s65 offen sc1")
        if s.o.get("hp", 0) == 1: s.hint_send("z2", "s58", s.o.get("hw", 0))
        s.stamp(6)
        a(f"s_cmp_ge_u32 s2, {NT0}\ns_cbranch_scc1 L_Ty")
    def row_inv(s):
        a = s.a
        a(f"s_setprio {s.o.get('pinv', 3)}")
        a(f"""
s_lshl_b32 s64, s71, 14
s_lshl_b32 s65, s3, 11
s_add_u32 s69, s64, s65
s_add_u32 s69, s69, {Z2}
""")
        s.cread([(32, "R2BRE"), (36, "R2BIM"), (40, "TWIC"), (44, "TWIS"), (48, "R1B0"), (52, "R1B1")])
        a(f"""
v_cvt_f32_u32 v8, s71
v_fmamk_f32 v12, v8, {f2h(1/2048)}, v4
v_mul_f32 v13, v12, v5
""")
        s.matrix(13, 12, 80, 84, True)
        a(f"""
v_and_b32 v10, 1, v2
v_lshl_add_u32 v11, v10, 4, v1        ; n1 = c + 16(g&1)
v_lshlrev_b32 v30, 5, v11
v_lshrrev_b32 v12, 1, v2
v_lshl_add_u32 v30, v12, 4, v30
v_cmp_lt_u32 vcc, 27, v11
v_mov_b32 v12, 0x10000000
v_cndmask_b32 v30, v30, v12, vcc
v_lshlrev_b32 v5, 8, v2
v_lshl_add_u32 v5, v1, 2, v5
v_cmp_eq_u32 s[28:29], 3, v2
""")
        s.g_wait("z2", "s71")
        a("s_waitcnt lgkmcnt(0)\ns_barrier\nL_poll_z2:")
        for t in range(2):
            for j in range(4): a(f"buffer_load_dword v{96+4*t+j}, v5, s[32:35], s69 offen offset:{1024*t+64*j} sc1")
        a("s_waitcnt vmcnt(0)")
        s.check("z2", [(96 + 4 * t + j, 5, "s69", 1024 * t + 64 * j, "s[62:63]") for t in range(2) for j in range(4)])
        if s.o.get("zs") != 1: s.stamp(7)
        if s.o.get("sb"): a(f"s_sleep {s.o['sb']}")
        pk = s.o.get("pk2", True)
        s.mfma(104, 80, 96); s.mfma(108, 84, 96); s.mfma(112, 80, 100); s.mfma(116, 84, 100)
        s.pack(104, 108, [120, 122, 124, 126]); s.pack(112, 116, [121, 123, 125, 127])
        for r in range(4): a(f"ds_write_b64 v25, {V(120+2*r,2)} offset:{1280*r}")
        a(f"""
s_lshl_b32 s64, s3, 8
s_add_u32 s64, s64, s71
s_mul_i32 s64, s64, 1792
s_add_u32 s64, s64, 896
s_add_u32 s65, s64, {128*1792}
s_waitcnt lgkmcnt(0)
s_barrier
ds_read_b128 v[96:99], v26
ds_read_b128 v[100:103], v26 offset:1280
s_waitcnt lgkmcnt(1)
""")
        s.mfma(104, 96, 32); s.mfma(108, 96, 36)
        a("s_waitcnt lgkmcnt(0)")
        s.mfma(112, 100, 32); s.mfma(116, 100, 36)
        s.twiddle(104, 108, 40, 44, [96, 97, 98, 99], True, packed=pk)
        a("v_cndmask_b32_e64 v99, v99, 0, s[28:29]")
        s.mfma(104, 96, 48); s.mfma(108, 96, 52)
        s.twiddle(112, 116, 40, 44, [100, 101, 102, 103], True, packed=pk)
        a("v_cndmask_b32_e64 v103, v103, 0, s[28:29]")
        s.mfma(112, 100, 48); s.mfma(116, 100, 52)
        for t, (d0, d1, P, so) in enumerate(((104, 108, 120, "s64"), (112, 116, 124, "s65"))):
            a(f"""v_cvt_pk_bf16_f32 v{P}, v{d0}, v{d0+1}
v_cvt_pk_bf16_f32 v{P+1}, v{d0+2}, v{d0+3}
v_cvt_pk_bf16_f32 v{P+2}, v{d1}, v{d1+1}
v_cvt_pk_bf16_f32 v{P+3}, v{d1+2}, v{d1+3}
v_permlane16_swap_b32 v{P}, v{P+2}
v_permlane16_swap_b32 v{P+1}, v{P+3}
buffer_store_dwordx4 {V(P,4)}, v30, s[44:47], {so} offen OUTF""")
        s.hint_rearm("z1")
        s.stamp(8)
        a("s_branch L_exit")
    def t_prep(s):
        a = s.a
        a(f"""
s_setprio 0
s_mul_i32 s29, s71, 14336
s_add_u32 s29, s29, {YT}
s_mul_i32 s72, s59, 1792
s_movk_i32 s73, 840
s_cmp_eq_u32 s59, 1
s_cselect_b32 s59, s73, 448
s_mul_i32 s28, s28, 1792
v_mul_u32_u24 v8, {(1<<20)//56+1}, v0
v_lshrrev_b32 v8, 20, v8
v_mul_u32_u24 v9, 56, v8
v_sub_u32 v9, v0, v9               ; grp0
v_add_u32 v10, 512, v0
v_mul_u32_u24 v11, {(1<<20)//56+1}, v10
v_lshrrev_b32 v11, 20, v11         ; row1
v_mul_u32_u24 v12, 56, v11
v_sub_u32 v12, v10, v12            ; grp1
v_lshlrev_b32 v9, 4, v9
v_lshlrev_b32 v12, 4, v12
global_load_dwordx4 v[112:115], v9, s[16:17]
global_load_dwordx4 v[116:119], v12, s[16:17]
v_min_u32 v11, 15, v11
v_mul_u32_u24 v25, 912, v8
v_add_u32 v25, v25, v9
v_mul_u32_u24 v26, 912, v11
v_add_u32 v26, v26, v12
v_lshl_add_u32 v104, v8, 7, v25
v_lshl_add_u32 v108, v11, 7, v26
ds_read_b128 v[104:107], v104
ds_read_b128 v[108:111], v108
v_mul_u32_u24 v48, s72, v8
v_add_u32 v48, v48, v9
v_mul_u32_u24 v49, s72, v11
v_add_u32 v49, v49, v12
v_mov_b32 v13, 0x10000000
v_cmp_gt_u32 vcc, s59, v0
v_cndmask_b32 v48, v13, v48, vcc
v_cmp_gt_u32 vcc, s59, v10
v_cndmask_b32 v49, v13, v49, vcc
v_and_b32 v10, 3, v0
v_mul_u32_u24 v10, 3648, v10
v_and_b32 v11, 0xfffffffc, v0
v_add_u32 v50, v10, v11
v_lshlrev_b32 v30, 4, v0           ; tid*16
v_cmp_gt_u32 vcc, 384, v0
s_mov_b64 s[30:31], vcc
s_waitcnt vmcnt(0) lgkmcnt(0)
""")
        for it in range(2):
            for j in range(4):
                u, d, o = 104 + 4*it + j, 112 + 4*it + j, 80 + 8*it + 2*j
                a(f"""v_lshlrev_b32 v8, 16, v{u}
v_lshlrev_b32 v9, 16, v{d}
v_and_b32 v10, 0xffff0000, v{u}
v_and_b32 v11, 0xffff0000, v{d}
v_mul_f32 v8, v8, v9
v_mul_f32 v10, v10, v11
v_cvt_pk_bf16_f32 v8, v8, v10
v_lshlrev_b32 v{o}, 16, v8
v_and_b32 v{o+1}, 0xffff0000, v8""")
    def t_y(s):
        a = s.a
        a("L_Ty:")
        if not s.o.get("tfe", 0): s.t_prep()
        a("s_add_u32 s64, s29, 8192\nv_mov_b32 v103, v31")
        a("s_setprio BPRIO")
        s.g_wait("y", "s71")
        a(f"""
s_barrier
L_poll_y:
buffer_load_dwordx4 v[96:99], v30, s[32:35], s29 offen sc1
s_mov_b64 exec, s[30:31]
s_cbranch_execz L_y1
buffer_load_dwordx4 v[100:103], v30, s[32:35], s64 offen sc1
L_y1:
s_mov_b64 exec, -1
s_waitcnt vmcnt(0)
""")
        s.check("y", [(99, 30, "s29", 12, "s[56:57]"), (103, 30, "s64", 12, "s[56:57]")])
        if s.o.get("zs") != 1: s.stamp(7)
        for r in range(4): a(f"ds_write_b32 v50, v{96+r} offset:{912*r}")
        a("s_mov_b64 exec, s[30:31]")
        for r in range(4): a(f"ds_write_b32 v50, v{100+r} offset:{912*r+512}")
        a(f"""
s_mov_b64 exec, -1
s_waitcnt lgkmcnt(0)
s_barrier
ds_read_b128 v[96:99], v25
ds_read_b128 v[100:103], v26
""")
        for it in range(2):
            a(f"s_waitcnt lgkmcnt({1-it})")
            for j in range(4):
                y = 96 + 4*it + j
                a(f"v_lshlrev_b32 v{8+2*j}, 16, v{y}\nv_and_b32 v{9+2*j}, 0xffff0000, v{y}")
            for j in range(4): a(f"v_pk_add_f32 {V(8+2*j,2)}, {V(8+2*j,2)}, {V(80+8*it+2*j,2)}")
            for j in range(4): a(f"v_cvt_pk_bf16_f32 v{104+4*it+j}, v{8+2*j}, v{9+2*j}")
            a(f"buffer_store_dwordx4 {V(104+4*it,4)}, v{48+it}, s[44:47], s28 offen OUTF")
        a(f"""
s_add_u32 s64, s71, s3
s_cmp_lg_u32 s64, 0
s_cbranch_scc1 L_noep
s_mov_b32 s61, {EPOCH}
s_mov_b64 exec, 1
buffer_store_dword v31, off, s[32:35], s61
s_mov_b64 exec, -1
L_noep:""")
        if s.o.get("ug", 0): s.hint_rearm("u")
        s.stamp(8)
        a("s_branch L_exit")
    def cmuls(s, lst):
        for d, x, e, t in lst:
            s.a(f"v_pk_mul_f32 {V(t,2)}, {V(x,2)}, {V(e,2)} op_sel:[1,1] op_sel_hi:[1,0] neg_lo:[1,0]")
        for d, x, e, t in lst:
            s.a(f"v_pk_fma_f32 {V(d,2)}, {V(x,2)}, {V(e,2)}, {V(t,2)} op_sel_hi:[0,1,1]")
    def exp2_bf16(s, pairs):
        L_HI = 1.4426950216293335; L_LO = 1.4426950408889634 - L_HI
        for fmt in (f"v_mul_f32 v{{t}}, {f2h(L_HI)}, v{{x}}", "v_exp_f32 v{d}, v{t}", "v_fma_f32 v{u}, v{x}, s71, -v{t}",
                    f"v_fmac_f32 v{{u}}, {f2h(L_LO)}, v{{x}}", f"v_mul_f32 v{{u}}, {f2h(math.log(2))}, v{{u}}",
                    "v_fma_f32 v{d}, v{d}, v{u}, v{d}", "v_cvt_pk_bf16_f32 v{d}, v{d}, v{d}", "v_and_b32 v{d}, 0xffff0000, v{d}"):
            for d, x, t in pairs: s.a(fmt.format(d=d, x=x, t=t, u=t + 1))
    def a_path(s):
        a = s.a
        a("L_A:")
        if s.o.get("ap", 1): a(f"s_setprio {s.o.get('ap', 1)}")
        s.stamp(1); s.stamp("p1")
        s.a("v_lshrrev_b32 v32, 6, v0\nv_and_b32 v3, 63, v0\nv_readfirstlane_b32 s3, v32\nv_and_b32 v1, 15, v0\nv_bfe_u32 v2, v0, 4, 2\ns_mov_b32 s70, 0")
        s.srd(32, "0x10000000")
        s.nonce_issue(115)
        a(f"""
s_lshr_b32 s67, s3, 2              ; ch
s_and_b32 s68, s3, 3               ; q4
v_lshlrev_b32 v25, 4, v3           ; 16*lane
""")
        nl = 1
        def addr_pairs(fl, dst):
            for i in range(0, len(fl), 2):
                a(f"v_cvt_pk_bf16_f32 v{fl[i]}, v{fl[i]}, v{fl[min(i+1, len(fl)-1)]}")
            for i in range(0, len(fl), 2):
                a(f"v_lshlrev_b32 v{fl[i]}, 1, v{fl[i]}")
            for i in range(len(fl)):
                a(f"v_add_u32_sdwa v{dst[i]}, s64, v{fl[i & ~1]} dst_sel:DWORD dst_unused:UNUSED_PAD src0_sel:DWORD src1_sel:WORD_{i & 1}")
        def AG():
            a(f"""
s_mul_i32 s72, s67, {KCH}
s_add_u32 s72, s72, {KC}
s_sub_u32 s64, s72, {2*KB}
v_and_b32 v33, 255, v0
v_lshlrev_b32 v33, 3, v33
v_sub_u32 v33, 2047, v33
v_cvt_f32_i32 v40, v33             ; lag of element 0
""")
            for e in range(1, 9):
                a(f"v_add_f32 v{40+e}, {f2h(-float(e))}, v40")
            a(f"v_mov_b32 v34, {f2h(2064.0)}")
            for e in (8,):
                a(f"v_cmp_gt_f32 vcc, 0, v{40+e}\nv_cndmask_b32 v{40+e}, v{40+e}, v34, vcc")
            addr_pairs(list(range(40, 49)), list(range(8, 17)))
            a("v_max_i32 v15, s72, v15")
        def AS():
            a(f"""
s_mul_i32 s72, s67, {KCH}
s_add_u32 s72, s72, {KC}
s_sub_u32 s64, s72, {2*KB}
""")
            a(f"""
v_lshrrev_b32 v34, 1, v2           ; g>>1
v_and_b32 v35, 1, v2               ; g&1
s_cmp_eq_u32 s68, 1
s_cbranch_scc1 L_sc1
s_cmp_eq_u32 s68, 2
s_cbranch_scc1 L_sc2
v_lshlrev_b32 v36, 7, v34
v_lshl_add_u32 v36, v35, 2, v36    ; 128(g>>1) + 4(g&1) + r
v_mov_b32 v37, 1
v_mov_b32 v38, 2
s_branch L_scd
L_sc1:
v_lshlrev_b32 v36, 7, v2
v_add_u32 v36, 256, v36            ; g<2: 256+128g + 2r
v_lshlrev_b32 v37, 8, v2           ; g>=2: 256g + 128(r>>1) + 4(r&1)
v_cmp_lt_u32 vcc, 1, v2
v_cndmask_b32 v36, v36, v37, vcc
v_cndmask_b32_e64 v37, 2, 4, vcc
v_mov_b32 v38, 128
v_cndmask_b32 v38, 4, v38, vcc
s_branch L_scd
L_sc2:
v_lshlrev_b32 v36, 9, v2
v_add_u32 v36, 1024, v36           ; 1024 + 128(4g+r)
v_mov_b32 v37, 128
v_mov_b32 v38, 256
L_scd:
v_lshl_add_u32 v36, v1, 3, v36
v_add_u32 v37, v36, v37
v_sub_u32 v39, v37, v36
v_add_u32 v38, v36, v38
v_add_u32 v39, v38, v39
v_mov_b32 v34, 2080
v_cmp_lt_u32 vcc, 2048, v36
v_cndmask_b32 v36, v36, v34, vcc
v_cmp_lt_u32 vcc, 2048, v37
v_cndmask_b32 v37, v37, v34, vcc
v_cmp_lt_u32 vcc, 2048, v38
v_cndmask_b32 v38, v38, v34, vcc
v_cmp_lt_u32 vcc, 2048, v39
v_cndmask_b32 v39, v39, v34, vcc
v_cvt_f32_u32 v40, v36
v_cvt_f32_u32 v41, v37
v_cvt_f32_u32 v42, v38
v_cvt_f32_u32 v43, v39
""")
            addr_pairs([40, 41, 42, 43], [20, 21, 22, 23])
            a("v_max_i32 v20, s72, v20")
        def AC():
            a(f"""
v_cmp_eq_u32 s[62:63], 15, v1
s_mul_i32 s69, s67, {CHK}
s_add_u32 s64, s69, {KCP}
v_and_b32 v26, 255, v0
v_lshl_add_u32 v26, v26, 4, s64
v_add_u32 v34, 1, v1
v_and_b32 v34, 1, v34              ; s = (i+1)&1
v_mul_u32_u24 v35, 4158, v34       ; s*4160 - 2s
v_lshlrev_b32 v36, 4, v2
v_lshlrev_b32 v37, 1, v1
v_sub_u32 v36, v36, v37            ; 16g - 2i
s_bfe_u32 s73, s3, 0x10001
s_and_b32 s64, s3, 1
s_lshl_b32 s64, s64, 8              ; 64*4h
s_mul_i32 s65, s73, {CHK}
s_sub_u32 s65, s65, s64
s_add_u32 s72, s65, {KCP + 2*2031 - 192 - 512*7}
v_add3_u32 v27, v35, v36, s72      ; vA
v_add_u32 v17, 1024, v27
v_add_u32 v18, 2048, v27
v_add_u32 v19, 3072, v27
v_lshlrev_b32 v28, 5, v1
v_lshl_add_u32 v28, v2, 4, v28
s_mul_i32 s72, s73, {CHU}
s_sub_u32 s72, s72, s64
s_add_u32 s72, s72, {UA + 448 - 192}
v_add_u32 v28, s72, v28            ; vB
s_lshl_b32 s64, s3, 9
s_add_u32 s64, s64, {UA + 480}
v_lshl_add_u32 v30, v3, 3, s64
v_and_b32 v34, 3, v3
v_cmp_eq_u32 s[28:29], 3, v34
v_cmp_gt_u32 s[30:31], 2, v34
v_lshrrev_b32 v35, 2, v3
v_lshlrev_b32 v35, 8, v35
v_lshl_add_u32 v35, v34, 7, v35
v_add_u32 v113, {UA + 480 + 30}, v35
s_mul_i32 s58, s66, {PSTR}
s_add_u32 s58, s58, {UT}
s_lshl_b32 s64, s3, 10
s_add_u32 s57, s58, s64
s_add_u32 s55, s58, 8192
s_cmp_eq_u32 s3, 7
s_cselect_b64 s[52:53], s[28:29], 0
s_mov_b32 s50, 0x05040100
s_mov_b32 s51, 0x07060302
""")
        a(f"""
s_mul_i32 s59, s3, {WV}
v_mul_u32_u24 v24, {RS}, v1
v_lshl_add_u32 v24, v2, 4, v24
v_add_u32 v24, s59, v24
s_mov_b32 s71, {f2h(1.4426950216293335)}
s_mov_b32 m0, s59
""")
        def uloads():
            u = a.uid()
            a(f"""buffer_load_dwordx4 v[116:119], v25, s[32:35], s57 offen sc1
s_cmp_lg_u32 s3, 7
s_cbranch_scc1 L_ul{u}
buffer_load_dwordx4 v[120:123], v25, s[32:35], s55 offen sc1
L_ul{u}:""")
        early = s.o.get("ae", "SGC")
        for ch in early: {"S": AS, "G": AG, "C": AC}[ch]()
        s.stamp("p2")
        a(f"s_waitcnt vmcnt({nl})")
        s.stamp("p3")
        a("s_cmp_lg_u32 s3, 7\ns_cbranch_scc1 L_a_w\ns_waitcnt vmcnt(5)\nL_a_w:") if False else None
        if s.o.get("bal", 1): a(f"s_cmp_eq_u32 s67, 0\ns_cbranch_scc1 L_bal0\ns_setprio {s.o.get('ap', 1) + 1}\nL_bal0:")
        s.stamp(2); s.stamp("k0")
        if s.o.get("stop"): a("s_branch L_exit")
        s.exp2_bf16([(31, 114, 34), (32, 4, 36)])
        a(f"""
v_mul_f32 v33, v5, v31             ; zi
v_mul_f32 v32, v32, v31            ; -zr
v_mul_f32 v33, 0.15915494, v33     ; revolutions
v_mul_f32 v32, {f2h(-1.4426950408889634)}, v32     ; zr*log2e
v_add_f32 v31, v31, v31
v_mul_f32 v35, {f2h(8.0)}, v33
v_mul_f32 v37, {f2h(128.0)}, v33
v_mul_f32 v34, {f2h(8.0)}, v32
v_mul_f32 v36, {f2h(128.0)}, v32
v_fract_f32 v35, v35
v_fract_f32 v37, v37
v_fract_f32 v33, v33
v_exp_f32 v34, v34
v_cos_f32 v58, v35
v_sin_f32 v59, v35
v_exp_f32 v36, v36
v_cos_f32 v60, v37
v_sin_f32 v61, v37
v_exp_f32 v32, v32
v_cos_f32 v56, v33
v_sin_f32 v57, v33
v_mul_f32 v42, v6, v31
v_mul_f32 v43, v7, v31             ; G0 = 2C dt
v_mul_f32 v58, v58, v34
v_mul_f32_e64 v59, v59, -v34       ; conj E8
v_mul_f32 v60, v60, v36
v_mul_f32 v61, v61, v36
v_mul_f32 v56, v56, v32
v_mul_f32 v57, v57, v32
""")
        s.stamp("k1")
        E1, E8, E128, E2, E4 = 56, 58, 60, 38, 40
        pkr = [54, 55, 62, 63, 4, 5, 6, 7]
        st = {"k": 0}
        def emit(lst):
            ps = []
            for x, buf, row in lst:
                p = pkr[st["k"] % 8]; st["k"] += 1; ps.append(p)
                a(f"v_cvt_pk_bf16_f32 v{p}, v{x}, v{x+1}")
            for p, (x, buf, row) in zip(ps, lst):
                a(f"ds_write_addtid_b32 v{p} offset:{buf*BUF + row*RS}")
        X0, X1, XV, XW, T0, T1, T2, T3 = 42, 44, 46, 32, 48, 50, 52, 108
        GA, GB = 34, 36
        E16 = 110
        a(f"v_mov_b32 v7, 0x3f80\nds_write_addtid_b32 v7 offset:0")
        s.cmuls([(X1, X0, E128, T1), (E16, E8, E8, T2)])
        emit([(E8, 0, 1), (X0, 1, 0)])
        s.cmuls([(GA, X1, E128, T0), (XW, E16, E8, T3), (XV, E16, E16, T2)])
        emit([(X1, 1, 8), (E16, 0, 2), (XW, 0, 3), (XV, 0, 4)])
        for j in range(1, 8):
            l = [(X0, X0, E1, T0), (X1, X1, E1, T1)]
            e = [(X0, 1, j), (X1, 1, 8 + j)]
            if j <= 6: l.append((XW, XW, E16, T3)); e.append((XW, 0, 3 + 2*j))
            if j <= 5: l.append((XV, XV, E16, T2)); e.append((XV, 0, 4 + 2*j))
            if j == 6: l.append((E2, E1, E1, T2))
            if j == 7: l += [(GB, GA, E128, T2), (E4, E2, E2, T3)]
            s.cmuls(l); emit(e)
        s.stamp("k2")
        if s.o.get("bal", 1): a(f"s_setprio {s.o.get('ap', 1)}")
        a("s_waitcnt lgkmcnt(0)")
        s.stamp("k3")
        for ks in range(4): a(f"ds_read_b128 {V(64+4*ks,4)}, v24 offset:{64*ks}")
        for ks in range(4): a(f"ds_read_b128 {V(80+4*ks,4)}, v24 offset:{BUF+64*ks}")
        s.cmuls([(X0, GA, E2, T0), (X1, GB, E2, T1), (XV, GB, E128, T2), (E16, E128, E128, T3)])
        a("s_waitcnt lgkmcnt(4)")
        emit([(GA, 0, 0), (GB, 0, 4), (X0, 0, 1), (X1, 0, 5), (XV, 0, 8)])
        s.cmuls([(X0, X0, E2, T0), (X1, X1, E2, T1), (XW, XV, E128, T2), (GA, XV, E4, T3)])
        a("s_waitcnt lgkmcnt(5)")
        for ks in range(4): s.mfma(96, 80+4*ks, 64+4*ks, None if ks == 0 else 96)
        emit([(X0, 0, 2), (X1, 0, 6), (XW, 0, 10), (GA, 0, 9)])
        s.stamp("k4")
        ug = s.o.get("ug", 0) and not s.o.get("aonly")
        a("s_waitcnt vmcnt(0)")
        s.nonce_get(115)
        s.cmuls([(X0, X0, E2, T0), (X1, X1, E2, T1), (XV, XV, E16, T2), (GA, XW, E4, T3)])
        emit([(X0, 0, 3), (X1, 0, 7), (XV, 0, 12), (GA, 0, 11)])
        s.cmuls([(XW, XW, E16, T0), (GA, XV, E4, T1), (XV, XV, E16, T2)])
        emit([(XW, 0, 14), (GA, 0, 13), (XV, 1, 0)])
        s.cmuls([(GB, XW, E4, T0), (XW, XW, E16, T1), (XV, XV, E16, T2)])
        emit([(GB, 0, 15), (XW, 1, 1), (XV, 1, 2)])
        s.stamp("k5")
        if s.o.get("ul", 1) == 2: uloads()
        a("s_waitcnt lgkmcnt(2)")
        for ks in range(4): a(f"ds_read_b128 {V(80+4*ks,4)}, v24 offset:{64*ks}")
        for h in range(3):
            s.cmuls([(XW, XW, E16, T0), (XV, XV, E16, T1)])
            emit([(XW, 1, 3 + 2*h), (XV, 1, 4 + 2*h)])
            if h == 1:
                a("s_waitcnt lgkmcnt(4)")
                for ks in range(4): s.mfma(100, 80+4*ks, 64+4*ks, None if ks == 0 else 100)
        a("s_waitcnt lgkmcnt(0)")
        for ks in range(4): a(f"ds_read_b128 {V(80+4*ks,4)}, v24 offset:{BUF+64*ks}")
        s.stamp("k6")
        if s.o.get("ul", 1) == 3: uloads()
        a("v_add_u32 v32, s59, v25")
        a(f"ds_write_b128 v32, v[96:99]\nds_write_b128 v32, v[100:103] offset:1024")
        a("s_waitcnt lgkmcnt(2)")
        for ks in range(4): s.mfma(104, 80+4*ks, 64+4*ks, None if ks == 0 else 104)
        a(f"ds_write_b128 v32, v[104:107] offset:2048")
        s.stamp(8); s.stamp("k7"); s.stamp("p4")
        for ch in "SC":
            if ch not in early: {"S": AS, "C": AC}[ch]()
        a("s_waitcnt lgkmcnt(0)\ns_barrier")
        a(f"s_setprio {s.o.get('pe', 3)}")
        s.stamp(3); s.stamp("k8"); s.stamp("e0")
        if s.o.get("ul", 1) == 0: uloads()
        a(f"""
s_cmp_eq_u32 s68, 3
s_cbranch_scc1 L_zp
s_lshl_b32 s72, s68, 10
s_mul_i32 s73, s67, {4*WV}
s_add_u32 s72, s72, s73
v_add_u32 v32, s72, v25
ds_read_b128 v[96:99], v32
ds_read_b128 v[100:103], v32 offset:{WV}
ds_read_b128 v[104:107], v32 offset:{2*WV}
ds_read_b128 v[80:83], v32 offset:{3*WV}
s_waitcnt lgkmcnt(2)
v_pk_add_f32 v[96:97], v[96:97], v[100:101]
v_pk_add_f32 v[98:99], v[98:99], v[102:103]
s_waitcnt lgkmcnt(0)
v_pk_add_f32 v[104:105], v[104:105], v[80:81]
v_pk_add_f32 v[106:107], v[106:107], v[82:83]
v_pk_add_f32 v[96:97], v[96:97], v[104:105]
v_pk_add_f32 v[98:99], v[98:99], v[106:107]
v_cvt_pk_bf16_f32 v96, v96, v97
v_cvt_pk_bf16_f32 v98, v98, v99
ds_write_b16 v20, v96
ds_write_b16_d16_hi v21, v96
ds_write_b16 v22, v98
ds_write_b16_d16_hi v23, v98
s_branch L_zpd
L_zp:
v_mov_b32 v96, 0
v_mov_b32 v97, 0
v_mov_b32 v98, 0
v_mov_b32 v99, 0
s_mul_i32 s72, s67, {KCH}
s_add_u32 s72, s72, {KC + 2*(0x4501 - KB)}
v_mov_b32 v33, s72
ds_write_b16 v33, v96
s_mul_i32 s72, s67, {CHU}
s_add_u32 s72, s72, {UA}
v_add_u32 v33, s72, v25
s_mov_b64 exec, 0x3fffffff
ds_write_b128 v33, v[96:99]          ; zero pad in front of u
s_mov_b64 exec, -1
v_lshrrev_b32 v64, 1, v3
v_mul_u32_u24 v64, 4160, v64
v_and_b32 v65, 1, v3
v_lshl_add_u32 v64, v65, 4, v64
s_add_u32 s72, s69, {KCP + 4096}
v_add_u32 v64, s72, v64""")
        if ug: s.g_wait("u", "s66", wave=7)
        a("L_zpd:")
        if s.o.get("ul", 1) == 1 and not ug: uloads()
        if "G" not in early: AG()
        a("s_waitcnt lgkmcnt(0)")
        s.stamp("e1")
        a("s_barrier")
        s.stamp("e2")
        if ug: uloads()
        for e in range(9): a(f"ds_read_u16 v{32+e}, v{8+e}")
        a(f"""
s_cmp_lg_u32 s68, 3
s_cbranch_scc1 L_nzt
s_mov_b64 exec, 0xf
ds_write_b128 v64, v[96:99]
s_mov_b64 exec, -1
L_nzt:
s_waitcnt lgkmcnt(0)
""")
        for cp in range(2):
            for j in range(4):
                x = cp + 2*j
                a(f"v_lshl_or_b32 v{48+4*cp+j}, v{33+x}, 16, v{32+x}")
            a(f"ds_write_b128 v26, {V(48+4*cp,4)} offset:{4160*cp}")
        s.stamp("e3")
        a("s_branch L_chk_u\nL_poll_u:")
        uloads()
        a("L_chk_u:\ns_waitcnt vmcnt(0)")
        s.check("u", [(119, 25, "s57", 12, "s[28:29]"), (123, 25, "s55", 12, "s[52:53]")])
        s.stamp(4); s.stamp("e4")
        a(f"""v_perm_b32 v56, v117, v116, s50
v_perm_b32 v57, v119, v118, s50
v_perm_b32 v58, v117, v116, s51
v_perm_b32 v59, v119, v118, s51
ds_write_b64 v30, v[56:57]
ds_write_b64 v30, v[58:59] offset:{CHU}
s_waitcnt lgkmcnt(0)
s_barrier
s_cmp_lg_u32 s3, 7
s_cbranch_scc1 L_nlo
s_mov_b64 exec, s[30:31]""")
        for k in range(4):
            a(f"ds_write_b16 v113, v{120+k} offset:{32*k}\nds_write_b16_d16_hi v113, v{120+k} offset:{32*k + CHU}")
        a("s_mov_b64 exec, -1\ns_waitcnt lgkmcnt(0)\nL_nlo:\ns_barrier")
        fill_w = f"""v_lshrrev_b32 v4, 1, v1
v_and_b32 v4, 3, v4
v_xor_b32 v4, v4, v2
v_lshlrev_b32 v4, 4, v4
v_lshl_add_u32 v4, v1, 6, v4
s_lshl_b32 s64, s3, 13
s_add_u32 s65, s64, {XP[1] - 8192}
s_cmp_eq_u32 s3, 0
s_cselect_b32 s64, 0, s65
v_add_u32 v4, s64, v4""".split("\n")
        fill_r = f"""v_lshrrev_b32 v5, 3, v3
v_xor_b32 v5, v5, v3
v_and_b32 v5, 3, v5
v_lshlrev_b32 v5, 4, v5
v_and_b32 v6, 0x3c, v3
v_lshl_add_u32 v5, v6, 4, v5
s_lshl_b32 s64, s3, 10
v_add_u32 v5, s64, v5
v_lshrrev_b32 v6, 2, v3
v_mul_u32_u24 v6, 14336, v6
v_and_b32 v7, 3, v3
v_lshl_add_u32 v6, v7, 4, v6
s_mul_i32 s64, s3, {16*14336}
s_lshl_b32 s65, s66, 6
s_add_u32 s64, s64, s65
s_add_u32 s64, s64, {YT}
v_cmp_eq_u32 s[56:57], 3, v7
v_mov_b32 v11, s60
v_and_b32 v9, 7, v1
v_and_b32 v12, 1, v2
v_lshl_add_u32 v9, v12, 3, v9
v_lshrrev_b32 v12, 1, v9
v_and_b32 v12, 3, v12
v_xor_b32 v12, 3, v12
v_lshlrev_b32 v12, 4, v12
v_lshl_add_u32 v9, v9, 6, v12
s_lshl_b32 s72, s3, 10
s_add_u32 s72, s72, 12
v_add_u32 v9, s72, v9
v_mul_u32_u24 v10, 14336, v2
v_lshl_add_u32 v10, v1, 2, v10
s_mul_i32 s72, s3, {2*14336}
s_add_u32 s65, s65, s72
s_add_u32 s65, s65, {YT + 128*14336}""".split("\n")
        if s.o.get("sa"): a(f"s_sleep {s.o['sa']}")
        s.stamp(5); s.stamp("e5")
        a(f"s_setprio {s.o.get('pc', 1)}")
        a("s_cmp_lt_u32 s3, 4\ns_cbranch_scc1 L_conv")
        a("\n".join(fill_r))
        s.stamp(6); s.stamp("e6")
        a("s_branch L_tC\nL_conv:")
        filler = fill_w + fill_r
        free = [64 + 4*i for i in range(16)]
        Areg, Breg = {}, {}
        pend = []
        q = []
        exports = []
        NC = 4
        def assign(cl, d):
            off = 64 * (NC - 1 - cl)
            ra = free.pop(0); rb = free.pop(0)
            Areg[(cl, d)] = ra; Breg[(cl, d)] = rb
            q.append(((cl, d), f"ds_read_b128 {V(rb,4)}, v28 offset:{512*d + off}"))
            vb = (27, 17, 18, 19)[(7 - d) >> 1]; o = 128 * ((7 - d) & 1) + off // 4
            q.append(((cl, d), f"ds_read2_b32 {V(ra,2)}, v{vb} offset0:{o} offset1:{o+1}"))
            q.append(((cl, d), f"ds_read2_b32 {V(ra+2,2)}, v{vb} offset0:{o+2} offset1:{o+3}"))
        def issue1():
            k, t = q.pop(0); a(t); pend.append(k)
        def wait(cl, d):
            while any(k == (cl, d) for k, _ in q): issue1()
            if (cl, d) in pend:
                idx = max(i for i, k in enumerate(pend) if k == (cl, d))
                a(f"s_waitcnt lgkmcnt({len(pend) - 1 - idx})")
                del pend[:idx + 1]
        first = set(); n = [0]
        left = {T: (T + 1) * NC for T in range(8)}
        def export(T):
            a(f"ds_write_b128 v4, {V(32+4*T,4)} offset:{1024*T}"); pend.append("x")
        def mm(cl, p, qq):
            T = p + qq
            s.mfma(32 + 4*T, Areg[(cl, p)], Breg[(cl, qq)], None if T not in first else 32 + 4*T)
            first.add(T); n[0] += 1
            left[T] -= 1
            if left[T] == 0: exports.append((n[0] + 5, T))
            if q and len(pend) < 15: issue1()
            elif exports and exports[0][0] <= n[0] and len(pend) < 15: export(exports.pop(0)[1])
            elif filler:
                a(filler.pop(0))
                while filler and filler[0].startswith("s_"): a(filler.pop(0))
        todo = [(cl, d) for cl in range(NC) for d in range(8)]
        def refill():
            while todo and len(free) >= 2: assign(*todo.pop(0))
        refill()
        for _ in range(9): issue1()
        for cl in range(NC):
            for d in range(8):
                wait(cl, d)
                prs = [(d, j) for j in range(d) if d + j <= 7] + [(j, d) for j in range(d) if d + j <= 7]
                if 2*d <= 7: prs.append((d, d))
                if cl == NC - 1: prs.sort(key=lambda x: x[0] + x[1])
                for p, qq in prs: mm(cl, p, qq)
                if d >= 4:
                    for k in (7 - d, d):
                        free.append(Areg[(cl, k)]); free.append(Breg[(cl, k)])
                    refill()
        assert not todo and not q and not filler
        s.stamp(6); s.stamp("e6")
        for _, T in exports: export(T)
        a("L_tC:\ns_waitcnt lgkmcnt(0)")
        s.stamp("e7")
        a("s_barrier")
        s.stamp("e8")
        for qq in range(4): a(f"ds_read_b128 {V(64+8*qq,4)}, v5 offset:{XP[qq]}")
        for qq in range(4): a(f"ds_read_b32 v{100+qq}, v9 offset:{XP[qq]}")
        def add4(d, x):
            a(f"v_pk_add_f32 {V(d,2)}, {V(d,2)}, {V(x,2)}\nv_pk_add_f32 {V(d+2,2)}, {V(d+2,2)}, {V(x+2,2)}")
        a("s_waitcnt lgkmcnt(6)"); add4(64, 72)
        a("s_waitcnt lgkmcnt(4)"); add4(80, 88)
        for r in range(4): a(f"v_cvt_pk_bf16_f32 v{96+r}, v{64+r}, v{80+r}")
        a("""v_cndmask_b32 v99, v99, v11, s[56:57]
buffer_store_dwordx4 v[96:99], v6, s[32:35], s64 offen sc1
s_waitcnt lgkmcnt(0)""")
        s.hint_send("y", "s66", s.o.get("yw", 0))
        a("""v_add_f32 v100, v100, v101
v_add_f32 v102, v102, v103
v_cvt_pk_bf16_f32 v100, v100, v102
v_cndmask_b32 v100, v100, v11, s[62:63]
s_mov_b32 exec_hi, 0
buffer_store_dword v100, v10, s[32:35], s65 offen sc1
s_mov_b64 exec, -1""")
        s.stamp(7); s.stamp("e9")
    def table(s):
        T = tables.b_tables()
        buf = np.zeros(TB_SIZE // 4, np.uint32)
        for n, off in TB.items(): buf[off // 4: off // 4 + 256] = T[n].reshape(-1)
        out = [".p2align 8", ".type L_tbl,@object", "L_tbl:"]
        for i in range(0, len(buf), 8):
            out.append(".long " + ",".join(("0x%x" % x) if x else "0" for x in buf[i:i + 8]))
        out.append("L_tbl_end:")
        out.append(f".size L_tbl, {TB_SIZE}")
        return "\n".join(out)
    def build(s):
        a = s.a
        hdr = open("concat_heads__ssm_conv_s4d__spectral_gfnet__prompt.s.ref").read().split("; Override launch")[0]
        a.raw(hdr + f"; @launch grid=({NWG},1,1) block=(512,1,1) lds={LDS_BYTES}")
        a.raw(f'.amdgcn_target "amdgcn-amd-amdhsa--gfx950"\n.text\n.globl {KNAME}\n.p2align 8\n.type {KNAME},@function\n{KNAME}:')
        s.entry(); s.row_s1(); s.t_u(); s.column(); s.row_inv(); s.t_y(); s.a_path()
        a("L_exit:")
        s.stamp(9)
        s.stamp_flush()
        a("L_end:\ns_endpgm")
        a.raw(s.table())
        a.raw(f""".section .rodata,"a"
.p2align 6
.amdhsa_kernel {KNAME}
  .amdhsa_next_free_vgpr 128
  .amdhsa_next_free_sgpr 102
  .amdhsa_accum_offset 128
  .amdhsa_group_segment_fixed_size 0
  .amdhsa_kernarg_size 104
  .amdhsa_user_sgpr_count 2
  .amdhsa_user_sgpr_kernarg_segment_ptr 1
  .amdhsa_system_sgpr_workgroup_id_x 1
.end_amdhsa_kernel""")
        return a.text().replace("BPRIO", str(s.o.get("bp", 3))).replace("    REMAP\n", {0: "", 1: "    s_add_u32 s64, s2, 272\n    s_sub_u32 s2, s2, 224\n    s_cselect_b32 s2, s64, s2\n",
            2: "    s_add_u32 s64, s2, 128\n    s_sub_u32 s65, s2, 352\n    s_cmp_lt_u32 s2, 16\n    s_cselect_b32 s64, s2, s64\n    s_cmp_ge_u32 s2, 368\n    s_cselect_b32 s2, s65, s64\n"}[s.o.get("ord", 0)]).replace("    KSTAMP\n", "    s_memrealtime s[92:93]\n" if s.o.get("ks") else "").replace("    AONLY\n", "    s_endpgm\n" if s.o.get("aonly") else "").replace(" NTC", " nt" if s.o.get("ntc") else "").replace(" NTE", " nt" if s.o.get("nte") else "").replace(" NTP", " nt" if s.o.get("ntp") else "").replace(" NTF", " nt" if s.o.get("nt", 0) else "").replace(" NTW", " nt" if s.o.get("ntw", 0) else "").replace(" NTG", " nt" if s.o.get("ntg", 0) else "").replace(" OUTF", (" " + s.o["outf"]) if s.o.get("outf") else "")
if __name__ == "__main__":
    out = sys.argv[1]; stamps = len(sys.argv) > 2 and sys.argv[2] == "1"
    opts = json.loads(sys.argv[3]) if len(sys.argv) > 3 else {}
    g = G(stamps, opts); t = g.build(); open(out, "w").write(t)
    print("lines", t.count("\n"), "bytes", len(t), "nops", g.a.nops)
```

```python
import sys, math, json
import numpy as np
from asmlib import Asm, f2h
import tables
KNAME = "concat_heads__ssm_conv_s4d__spectral_gfnet__prompt_kernel"
Z1, Z2, UT, YT, STAMP = 0x010000, 0x220000, 0x430000, 0x640000, 0x1000000
EPOCH = 0x630000
HB = {'z1': 0x900000, 'u': 0x980000, 'z2': 0xA00000, 'y': 0xA80000}; HP = {'z1': 128, 'u': 144, 'z2': 256, 'y': 224}
CB = {'z1': 0x900000, 'z2': 0x920000, 'y': 0x940000, 'u': 0x960000}; EARLY = ('z1', 'u'); CT_ = {'z1': 16, 'z2': 32, 'y': 28, 'u': 18}
PSTR = 9216
NR0, NT0, NA0, NWG = 16, 144, 272, 496
LDS_BYTES = 78336
SPIN_MAX = 200000
WV, BUF, RS = 9216, 4608, 288
KC, KCH = 3072, 3072
KB = 0x3F7F
ZS = 0x4502 - KB
KCP, CHK, UA, CHU = 9216, 8320, 69120, 4608
XP = [0, 43008, 51200, 59392]
TB = {n: 1024 * i for i, n in enumerate(["COS28", "NSIN28", "R2RE", "R2IM", "TWRC", "TWRS", "F8RE", "F8IM", "G8RE", "G8IM",
                                          "R2BRE", "R2BIM", "TWIC", "TWIS", "R1B0", "R1B1"])}
TB_SIZE = 16384
T1, EB, CT = 16896, 37376, 49664

def V(a, n=1): return f"v{a}" if n == 1 else f"v[{a}:{a+n-1}]"
def S(a, n=1): return f"s{a}" if n == 1 else f"s[{a}:{a+n-1}]"

class G:
    def __init__(s, stamps=False, opts=None):
        s.a = Asm(); s.stamps = stamps; s.o = opts or {}
    def stamp(s, i):
        if not s.stamps: return
        prof = s.o.get("prof")
        if prof:
            if isinstance(i, str):
                if i[:len(prof)] == prof: s.a(f"s_memtime {S(80+2*int(i[len(prof):]),2)}")
            return
        if isinstance(i, int): s.a(f"s_memrealtime {S(80+2*i,2)}")
    def stamp_flush(s):
        if not s.stamps: return
        a = s.a
        if s.o.get("dbg") == 2:
            a(f"""s_load_dwordx2 s[100:101], s[0:1], 88
s_waitcnt lgkmcnt(0) vmcnt(0)
s_cmp_lg_u32 s3, 0
s_cbranch_scc1 L_end
s_sub_u32 s64, s2, {NT0}
s_cmp_ge_u32 s64, 8
s_cbranch_scc1 L_end
s_lshl_b32 s64, s64, 2
v_mov_b32 v5, s64
v_mov_b32 v4, s80
global_store_dword v5, v4, s[100:101]
v_mov_b32 v4, s98
global_store_dword v5, v4, s[100:101] offset:32
s_waitcnt vmcnt(0)""")
            return
        if s.o.get("dbg"):
            a("""s_load_dwordx2 s[100:101], s[0:1], 88
s_waitcnt lgkmcnt(0) vmcnt(0)
s_mov_b64 exec, 1""")
            def mx(slot, sreg, inv=False):
                if inv: a(f"s_not_b32 s64, {sreg}"); sreg = "s64"
                a(f"v_mov_b32 v4, {sreg}\nv_mov_b32 v5, {4*slot}\nglobal_atomic_umax v5, v4, s[100:101] sc1")
            st = lambda i: f"s{80+2*i}"
            mx(0, st(0), True)
            a(f"s_cmp_ge_u32 s2, {NA0}\ns_cbranch_scc1 L_dA\ns_cmp_ge_u32 s2, {NT0}\ns_cbranch_scc1 L_dT\ns_cmp_lt_u32 s2, {NR0}\ns_cbranch_scc1 L_dE")
            for k, i in enumerate((0, 2, 3, 5, 9)): mx(1 + k, st(i))
            a("s_branch L_dE\nL_dT:")
            for k, i in enumerate((3, 6, 7, 9)): mx(6 + k, st(i))
            a("s_branch L_dE\nL_dA:")
            for k, i in enumerate((0, 2, 3, 5, 6, 7)): mx(10 + k, st(i))
            a("L_dE:\ns_waitcnt vmcnt(0)")
            return
        a("s_waitcnt lgkmcnt(0) vmcnt(0)")
        for i in range(10): a(f"v_mov_b32 v{4+i}, s{80+2*i}")
        a(f"""v_mov_b32 v14, 0
v_mov_b32 v15, s70
v_mov_b32 v2, 0
s_lshl_b32 s64, s2, 3
s_add_u32 s64, s64, s3
s_lshl_b32 s64, s64, 6
s_add_u32 s64, s64, {STAMP}
buffer_store_dwordx4 v[4:7], v2, s[32:35], s64 offen
buffer_store_dwordx4 v[8:11], v2, s[32:35], s64 offen offset:16
buffer_store_dwordx4 v[12:15], v2, s[32:35], s64 offen offset:32
s_waitcnt vmcnt(0)""")
    def srd(s, base, size):
        s.a(f"s_mov_b32 s{base+2}, {size}\ns_mov_b32 s{base+3}, 0x20000")
    def mfma(s, d, A, B, c=None):
        s.a(f"v_mfma_f32_16x16x32_bf16 {V(d,4)}, {V(A,4)}, {V(B,4)}, {'0' if c is None else V(c,4)}")
    def twiddle(s, dre, dim, co, si, P, conj, T=8, packed=False):
        a = s.a
        if packed:
            for h in (0, 2):
                a(f"v_pk_mul_f32 {V(T+h,2)}, {V(dim+h,2)}, {V(si+h,2)}")
                a(f"v_pk_mul_f32 {V(T+4+h,2)}, {V(dre+h,2)}, {V(si+h,2)}")
            for h in (0, 2):
                n = " neg_lo:[0,0,1] neg_hi:[0,0,1]"
                a(f"v_pk_fma_f32 {V(dre+h,2)}, {V(dre+h,2)}, {V(co+h,2)}, {V(T+h,2)}{n if conj else ''}")
                a(f"v_pk_fma_f32 {V(dim+h,2)}, {V(dim+h,2)}, {V(co+h,2)}, {V(T+4+h,2)}{'' if conj else n}")
        else:
            for r in range(4):
                a(f"v_mul_f32 v{T+r}, v{dim+r}, v{si+r}")
                a(f"v_mul_f32 v{T+4+r}, v{dre+r}, v{si+r}")
            for r in range(4):
                a(f"v_fma_f32 v{dre+r}, v{dre+r}, v{co+r}, {'-' if conj else ''}v{T+r}")
                a(f"v_fma_f32 v{dim+r}, v{dim+r}, v{co+r}, {'' if conj else '-'}v{T+4+r}")
        s.pack(dre, dim, P)
    def pack(s, dre, dim, P):
        for r in range(4): s.a(f"v_cvt_pk_bf16_f32 v{P[r]}, v{dre+r}, v{dim+r}")
    def sincos4(s, a0, step, co, si, T=8):
        a = s.a
        a(f"v_add_f32 v{T+1}, v{a0}, v{step}")
        a(f"v_fma_f32 v{T+2}, v{step}, 2.0, v{a0}")
        a(f"v_add_f32 v{T+3}, v{T+2}, v{step}")
        regs = [a0, T+1, T+2, T+3]
        for r in range(4):
            a(f"v_cos_f32 v{co+r}, v{regs[r]}")
            a(f"v_sin_f32 v{si+r}, v{regs[r]}")
    def tbl_srd(s):
        s.a("s_getpc_b64 s[36:37]")
        n = s.a.uid()
        s.a.raw(f"L_pc{n}:")
        s.a(f"s_add_u32 s36, s36, L_tbl-L_pc{n}\ns_addc_u32 s37, s37, 0")
        s.srd(36, TB_SIZE)
    def tload(s, items, vaddr, sbase=None):
        cur = None
        for r, off in items:
            b = off & ~4095
            if b != cur:
                if sbase is None: s.a(f"s_mov_b32 s61, {b}")
                else: s.a(f"s_add_u32 s61, {sbase}, {b}")
                cur = b
            s.a(f"buffer_load_dwordx4 {V(r,4)}, v{vaddr}, s[36:39], s61 offen offset:{off - b}")
        return len(items)
    def nonce_issue(s, vn):
        s.a(f"s_mov_b32 s61, {EPOCH}\nbuffer_load_dword v{vn}, off, s[32:35], s61 NTE")
    def nonce_get(s, vn):
        s.a(f"v_add_u32 v{vn}, 1, v{vn}\nv_readfirstlane_b32 s60, v{vn}")
    def spin(s, tag, sleep):
        s.a(f"""s_add_u32 s70, s70, 1
s_cmp_gt_u32 s70, {SPIN_MAX}
s_cbranch_scc1 L_exit
s_sleep {sleep}
s_branch L_poll_{tag}""")
    def gate_issue(s, tag, K, stride, off, sreg, vt, wave=0):
        s.a(f"""
v_mul_u32_u24 v{vt+1}, {stride}, v3
s_cmp_lg_u32 s3, {wave}
s_cbranch_scc1 L_gi_{tag}
v_mov_b32 v{vt}, 0
s_mov_b64 exec, {hex((1<<K)-1)}
buffer_atomic_or v{vt}, v{vt+1}, s[32:35], {sreg} offen offset:{off} sc0 sc1
s_mov_b64 exec, -1
L_gi_{tag}:""")
    def gate_wait(s, tag, K, stride, off, sreg, vt, wave=0, sentinel=False):
        a = s.a
        a(f"""
s_cmp_lg_u32 s3, {wave}
s_cbranch_scc1 L_gd_{tag}
s_mov_b64 exec, {hex((1<<K)-1)}
s_branch L_gc_{tag}
L_poll_g{tag}:
v_mov_b32 v{vt}, 0
buffer_atomic_or v{vt}, v{vt+1}, s[32:35], {sreg} offen offset:{off} sc0 sc1
L_gc_{tag}:
s_waitcnt vmcnt(0)
v_cmp_{'eq' if sentinel else 'ne'}_u32 vcc, {'-1' if sentinel else 's60'}, v{vt}
s_cbranch_vccz L_gok_{tag}""")
        s.spin("g" + tag, s.o.get("gsl", 1))
        a(f"""L_gok_{tag}:
s_mov_b64 exec, -1
L_gd_{tag}:""")
    def hint_send(s, e, preg, wave=0, tag=""):
        R = s.o.get("R", 16)
        s.a(f"""
s_cmp_lg_u32 s3, {wave}
s_cbranch_scc1 L_hs_{e}{tag}""")
        s.a(f"""s_and_b32 s61, {preg}, 7
s_lshl_b32 s61, s61, 10
s_add_u32 s61, s61, {CB[e]}
s_add_u32 s76, s32, s61
s_addc_u32 s77, s33, 0
s_mov_b32 s100, {63 if e in EARLY else 1}""")
        for r in range(R): s.a(f"s_atomic_{'inc' if e in EARLY else 'add'} s100, s[76:77], {hex(8192*r)}")
        s.a(f"L_hs_{e}{tag}:")
    def hint_fill(s, e, rreg, val, tag, op="swap"):
        s.a(f"""s_lshl_b32 s61, {rreg}, 13
s_add_u32 s61, s61, {CB[e]}
s_add_u32 s76, s32, s61
s_addc_u32 s77, s33, 0
s_mov_b32 s100, {val}""")
        for x in range(8): s.a(f"s_atomic_{op} s100, s[76:77], {hex(1024*x)}")
    def tlb_touch(s):
        if not s.o.get("touch", 1): return
        s.a(f"""s_cmp_lg_u32 s3, 1
s_cbranch_scc1 L_nt
v_min_u32 v8, 4, v3
v_mul_u32_u24 v8, {0x210000}, v8
buffer_load_dword v124, v8, s[32:35], 0 offen offset:64
v_and_b32 v8, 1, v3
v_mul_u32_u24 v8, {0x370000}, v8
global_load_dword v125, v8, s[24:25]
v_mov_b32 v8, 0
global_load_dword v126, v8, s[20:21]
global_load_dword v127, v8, s[22:23]
global_load_dword v123, v8, s[16:17]
L_nt:""")
    def hint_zero(s):
        s.tlb_touch()
        s.a("s_cmp_lg_u32 s3, 7\ns_cbranch_scc1 L_hz0")
        if s.o.get("ug", 0): s.hint_fill("u", "s2", 0, "d", "add")
        s.hint_fill("z1", "s2", 0, "c", "add")
        s.a("L_hz0:")
        s.a("s_cmp_lg_u32 s3, 6\ns_cbranch_scc1 L_hz1")
        s.hint_fill("z2", "s2", 0, "a")
        s.a("L_hz1:\ns_cmp_lg_u32 s3, 5\ns_cbranch_scc1 L_hz")
        s.hint_fill("y", "s2", 0, "b")
        s.a("L_hz:")
    def hint_rearm(s, e):
        s.a(f"s_cmp_ge_u32 s71, 16\ns_cbranch_scc1 L_ra_{e}\ns_cmp_lg_u32 s3, 1\ns_cbranch_scc1 L_ra_{e}")
        s.hint_fill(e, "s71", -1, "r")
        s.a(f"L_ra_{e}:")
    def g_wait(s, e, creg, wave=0):
        a = s.a
        R = s.o.get("R", 16); dl = s.o.get("dl", {}); tg = CT_[e]; sh = 1 if e in EARLY else 0
        a(f"""s_cmp_lg_u32 s3, {wave}
s_cbranch_scc1 L_hd_{e}
s_lshr_b32 s61, {creg}, 3
s_and_b32 s61, s61, {R-1}
s_lshl_b32 s61, s61, 13
s_add_u32 s61, s61, {CB[e]}
s_add_u32 s24, s32, s61
s_addc_u32 s25, s33, 0
s_mov_b32 s101, 0""")
        for k in range(8): a(f"s_mov_b32 s{72+k}, 0")
        if e == "z1" and dl.get("z1t"):
            a(f"s_cmp_ge_u32 s2, {NT0}\ns_cbranch_scc1 L_dlt\ns_sleep {dl.get('z1r', 0)}\ns_branch L_dlr\nL_dlt:\ns_sleep {dl['z1t']}\nL_dlr:")
        elif dl.get(e): a(f"s_sleep {dl[e]}")
        a(f"L_poll_h{e}:")
        for k in range(8):
            if sh: a(f"s_add_u32 s61, s{72+k}, 1\ns_lshr_b32 s61, s61, 1")
            a(f"""s_cmp_eq_u32 {'s61' if sh else 's%d' % (72+k)}, {tg >> sh}
s_cbranch_scc1 L_hp{k}_{e}
s_mov_b32 s{72+k}, 0
s_atomic_add s{72+k}, s[24:25], {hex(1024*k)} glc
L_hp{k}_{e}:""")
        a("s_add_u32 s101, s101, 1\ns_add_u32 s70, s70, 1\ns_waitcnt lgkmcnt(0)")
        a("s_mov_b32 s100, 0")
        for k in range(8):
            if sh: a(f"s_add_u32 s61, s{72+k}, 1\ns_lshr_b32 s61, s61, 1\ns_xor_b32 s61, s61, {tg >> 1}")
            else: a(f"s_xor_b32 s61, s{72+k}, {tg}")
            a("s_or_b32 s100, s100, s61")
        a(f"""s_cbranch_scc0 L_hd_{e}
s_sleep {s.o.get("gsl", 1)}
s_cmp_lt_u32 s101, {s.o.get("NF", 32)}
s_cbranch_scc1 L_poll_h{e}
L_hd_{e}:""")
    def w_sprefetch(s, tag):
        a = s.a
        a(f"""s_cmp_eq_u32 s3, 0
s_cbranch_scc1 L_sp_{tag}
s_mov_b32 s27, s3
L_sp1_{tag}:
s_lshl_b32 s61, s67, 3
s_add_u32 s61, s61, s27
s_lshl_b32 s61, s61, 4
s_add_u32 s61, s61, s66
s_mul_i32 s61, s61, 450
s_and_b32 s61, s61, -4
s_min_u32 s61, s61, {921600 - 452}
s_add_u32 s24, s48, s61
s_addc_u32 s25, s49, 0""")
        st = s.o.get("pst", 128)
        offs = list(range(0, 449, st)) + ([448] if 448 % st else [])
        for o in offs: a(f"s_load_dword s23, s[24:25], {o}")
        a("s_add_u32 s24, s52, s61\ns_addc_u32 s25, s53, 0")
        for o in offs: a(f"s_load_dword s23, s[24:25], {o}")
        a(f"""s_cmp_lg_u32 s27, 4
s_mov_b32 s27, 0
s_cbranch_scc0 L_sp1_{tag}
L_sp_{tag}:""")
    def check(s, tag, items):
        a = s.a
        m = [S(r, 2) for r in (72, 74, 76, 78, 48, 50, 52, 40)[:len(items)]]
        for mi, it in zip(m, items): a(f"v_cmp_ne_u32 {mi}, s60, v{it[0]}")
        same = len({it[4] for it in items}) == 1
        def merge(pre):
            if pre:
                for mi, it in zip(m, items): a(f"s_and_b64 {mi}, {mi}, {it[4]}")
            a(f"s_or_b64 vcc, {m[0]}, {m[1]}")
            for mi in m[2:]: a(f"s_or_b64 vcc, vcc, {mi}")
        if same:
            merge(False); a(f"s_and_b64 vcc, vcc, {items[0][4]}\ns_cbranch_scc0 L_got_{tag}")
            for mi, it in zip(m, items): a(f"s_and_b64 {mi}, {mi}, {it[4]}")
        else:
            merge(True); a(f"s_cbranch_scc0 L_got_{tag}")
        if s.o.get("aonly") or s.o.get("loud"):
            if s.o.get("aonly"): a(f"s_branch L_got_{tag}")
            else: s.spin(tag, s.o.get("sl", 4))
            a(f"L_got_{tag}:"); return
        a(f"""L_q_{tag}:
s_add_u32 s70, s70, 1
s_cmp_gt_u32 s70, {SPIN_MAX}
s_cbranch_scc1 L_exit""")
        for k, (mi, it) in enumerate(zip(m, items)):
            a(f"""s_mov_b64 exec, {mi}
s_cbranch_execz L_q{k}_{tag}
v_mov_b32 v{it[0]}, 0
buffer_atomic_or v{it[0]}, v{it[1]}, s[32:35], {it[2]} offen offset:{it[3]} sc0 sc1
L_q{k}_{tag}:""")
        a("s_mov_b64 exec, -1\ns_waitcnt vmcnt(0)")
        for mi, it in zip(m, items):
            a(f"v_cmp_ne_u32 vcc, s60, v{it[0]}\ns_and_b64 {mi}, {mi}, vcc")
        merge(False)
        a(f"""s_cbranch_scc0 L_poll_{tag}
s_sleep {s.o.get("qsl", 2)}
s_branch L_q_{tag}
L_got_{tag}:""")
    def gk(s, n):
        K = s.o.get("K", 8)
        st = (n - 1) // (K - 1) if K > 1 else 1
        if st % 2 == 0: st -= 1
        return K, 64 * st
    def lanes(s):
        s.a("""v_lshrrev_b32 v4, 6, v0
v_and_b32 v3, 63, v0
v_readfirstlane_b32 s3, v4
v_and_b32 v1, 15, v0
v_bfe_u32 v2, v0, 4, 2
s_mov_b32 s70, 0""")
    def prefetch(s, tag):
        if s.o.get("nopf"): return
        s.a(f"""
s_cmp_lg_u32 s3, 7
s_cbranch_scc1 L_nopf_{tag}
s_lshr_b32 s64, s2, 3
s_and_b32 s64, s64, 1
s_lshl_b32 s64, s64, 13
s_sub_u32 s74, s36, L_tbl-{KNAME}
s_subb_u32 s75, s37, 0
v_lshl_add_u32 v124, v3, 7, s64
v_min_u32 v124, L_tbl-{KNAME}-4, v124
global_load_dword v124, v124, s[74:75]
L_nopf_{tag}:""")

    def entry(s):
        a = s.a
        s.stamp(0); s.stamp("p0")
        if s.o.get("s0"): a(f"s_sleep {s.o['s0']}")
        a(f"""
s_load_dwordx16 s[4:19], s[0:1], 0
s_load_dwordx8 s[20:27], s[0:1], 64
s_load_dwordx2 s[32:33], s[0:1], 96
s_getpc_b64 s[36:37]
L_pc:
v_cmp_gt_u32 vcc, 8, v0
s_bfe_u32 s66, s2, 0x50003
s_lshl_b32 s66, s66, 10
s_and_saveexec_b64 s[64:65], vcc
s_cbranch_execz L_nopf
v_lshl_add_u32 v124, v0, 7, s66
v_min_u32 v124, L_tbl_end-L_pc-4, v124
{'s_nop 0' if s.o.get('nopf') else 'global_load_dword v124, v124, s[36:37] NTP'}    ; pull 1 KiB of the code into this XCD's L2 (speed only)
L_nopf:
s_mov_b64 exec, -1
s_cmp_ge_u32 s2, {NWG}
s_cbranch_scc1 L_end
REMAP
s_cmp_lt_u32 s2, {NA0}
s_cbranch_scc1 L_B
s_sub_u32 s66, s2, {NA0}           ; pair
s_lshl_b32 s64, s66, 10
v_lshl_add_u32 v24, v0, 1, s64
s_lshl_b32 s64, s66, 1
v_lshrrev_b32 v25, 8, v0
v_add_lshl_u32 v25, v25, s64, 1
s_waitcnt lgkmcnt(0)
KSTAMP
global_load_short_d16_hi v114, v25, s[14:15] NTF
global_load_short_d16_hi v4, v24, s[6:7] NTF
global_load_short_d16_hi v5, v24, s[8:9] NTF
global_load_short_d16_hi v6, v24, s[10:11] NTF
global_load_short_d16_hi v7, v24, s[12:13] NTF
s_branch L_A
L_B:
AONLY
v_lshrrev_b32 v4, 6, v0
v_and_b32 v3, 63, v0
v_readfirstlane_b32 s3, v4
v_lshlrev_b32 v7, 4, v3            ; lane*16
s_sub_u32 s58, s2, {NR0}
s_add_u32 s36, s36, L_tbl-L_pc
s_addc_u32 s37, s37, 0
s_mov_b32 s38, {TB_SIZE}
s_mov_b32 s39, 0x20000
s_mov_b32 s42, 1835008
s_mov_b32 s43, 0x20000
s_cmp_lt_u32 s58, 128
s_cbranch_scc0 L_pT
s_mov_b32 s71, s58
s_lshl_b32 s64, s3, 8
s_add_u32 s64, s64, s58
s_mov_b32 s66, {128*896}
s_lshl_b32 s65, s3, 11
s_movk_i32 s67, 1024
s_waitcnt lgkmcnt(0)
s_mov_b64 s[40:41], s[18:19]
s_branch L_pC
L_pT:
s_sub_u32 s71, s2, {NT0}
s_lshl_b32 s28, s71, 4             ; main blocks: rows 16*blk + j
s_lshl_b32 s64, s2, 7
s_add_u32 s64, s64, 15             ; leftover blocks: rows 128*b + 15 + 16j
s_add_u32 s65, s2, 128
s_cmp_lt_u32 s2, {NR0}
s_cselect_b32 s28, s64, s28
s_cselect_b32 s71, s65, s71
s_cselect_b32 s59, 16, 1
s_cselect_b32 s66, 0, {8*896}
s_mul_i32 s64, s59, s3
s_add_u32 s64, s64, s28
s_mul_i32 s65, s3, 1040
s_movk_i32 s67, {8*1040}
s_waitcnt lgkmcnt(0)
s_mov_b64 s[40:41], s[4:5]
L_pC:
KSTAMP
s_mul_i32 s64, s64, 896
s_mov_b32 m0, s65
s_add_u32 s66, s66, s64
buffer_load_dwordx4 v7, s[40:43], s64 offen NTF lds
s_add_u32 m0, s65, s67
buffer_load_dwordx4 v7, s[40:43], s66 offen NTF lds
s_mov_b32 s34, 0x10000000
s_mov_b32 s35, 0x20000
v_and_b32 v1, 15, v0
v_bfe_u32 v2, v0, 4, 2
s_mov_b32 s70, 0
""")
        s.stamp(1); s.stamp("p1")
        a("s_cmp_lt_u32 s58, 128\ns_cbranch_scc0 L_T")
    def cread(s, items):
        for r, n in items: s.a(f"ds_read_b128 {V(r,4)}, v7 offset:{CT + TB[n]}")
    def matrix(s, a0, step, re, im, conj):
        s.sincos4(a0, step, 96, 100)
        for j in range(4):
            s.a(f"v_cvt_pk_bf16_f32 v{re+j}, v{96+j}, {'-' if conj else ''}v{100+j}")
            s.a(f"v_cvt_pk_bf16_f32 v{im+j}, {'' if conj else '-'}v{100+j}, v{96+j}")
    def b0(s):
        a = s.a
        s.srd(44, 3670016); s.srd(48, 921600); s.srd(52, 921600)
        a(f"""
v_cmp_eq_u32 s[62:63], 15, v1
s_mov_b64 s[44:45], s[24:25]
s_mov_b64 s[48:49], s[20:21]
s_mov_b64 s[52:53], s[22:23]
s_and_b32 s66, s58, 15         ; f1
s_lshr_b32 s67, s58, 4         ; k2
v_lshlrev_b32 v10, 2, v1
v_lshl_add_u32 v24, v2, 19, v10    ; g*524288 + 4c
v_cvt_f32_u32 v4, v1
v_lshlrev_b32 v5, 2, v2
v_cvt_f32_u32 v5, v5
v_mul_f32 v4, {f2h(1/16)}, v4          ; c/16
""")
    def bw(s):
        s.a(f"""
s_mul_i32 s64, s67, 56
s_sub_u32 s65, 896, s64
s_cmp_lt_u32 s67, 8
s_cselect_b32 s64, s64, s65
s_cselect_b32 s65, 2, -2
v_and_b32 v8, 1, v2
v_lshrrev_b32 v9, 1, v2
v_mul_i32_i24 v6, s65, v1
v_mul_u32_u24 v10, {1024*450}, v8
v_mul_u32_u24 v11, {16*450}, v9
v_add_u32 v6, s64, v6
v_add3_u32 v6, v6, v10, v11
s_lshl_b32 s64, s3, 5
s_add_u32 s64, s64, s66
s_mul_i32 s68, s64, 450        ; W soffset r=0
""")
    def bc(s):
        a = s.a
        a(f"""
v_and_b32 v8, 1, v2
v_lshrrev_b32 v9, 1, v2
v_lshlrev_b32 v10, 2, v1
v_lshl_add_u32 v27, v2, 11, v10    ; Z1 poll: g*2048 + 4c
v_mul_u32_u24 v12, 48, v1
v_mul_u32_u24 v28, 3072, v2
s_lshl_b32 s64, s3, 2
s_add_u32 s64, s64, {EB}
v_add3_u32 v28, v28, v12, s64          ; E b32: 4g*768 + 48c + 4w
v_mul_u32_u24 v9, 768, v9
v_lshl_add_u32 v9, v8, 4, v9
s_mul_i32 s64, s3, 1536
s_add_u32 s64, s64, {EB}
v_add3_u32 v29, v9, v12, s64           ; E b128
v_cvt_f32_u32 v8, s3
v_mul_f32 v8, {f2h(1/8)}, v8           ; b/8
v_add_f32 v13, v5, v8
v_mul_f32 v13, v13, v4
v_fmamk_f32 v12, v8, {f2h(1/16)}, v4
""")
        s.matrix(13, 4, 64, 68, False)
        a("v_mul_f32 v13, v12, v5")
        s.matrix(13, 12, 72, 76, True)
    def w_prefetch(s, d):
        s.a(f"""
s_lshl_b32 s64, s67, 3
s_add_u32 s64, s64, s3
s_lshl_b32 s64, s64, 4
s_add_u32 s64, s64, s66
s_mul_i32 s64, s64, 450
v_lshlrev_b32 v8, 7, v3
v_min_u32 v8, 448, v8
buffer_load_ushort v{d}, v8, s[48:51], s64 offen NTW
buffer_load_ushort v{d+1}, v8, s[52:55], s64 offen NTW
""")
        return 2
    def w_early(s, tag):
        a = s.a
        a(f"s_cmp_eq_u32 s3, 0\ns_cbranch_scc1 L_we_{tag}")
        s.w_loads()
        a(f"s_cmp_lg_u32 s3, 1\ns_cbranch_scc1 L_we_{tag}\ns_mul_i32 s61, s66, 450")
        for r in range(4):
            a(f"buffer_load_ushort v{88+r}, v6, s[48:51], s61 offen NTG")
            a(f"buffer_load_ushort v{92+r}, v6, s[52:55], s61 offen NTG")
            if r < 3: a(f"s_add_u32 s61, s61, {256*450}")
        a(f"L_we_{tag}:")
    def w_loads(s):
        a = s.a
        if s.o.get("now"):
            for r in range(8): a(f"buffer_load_dword v{16+r}, off, s[36:39], 0")
            return
        for r in range(4):
            a(f"buffer_load_short_d16_hi v{16+r}, v6, s[48:51], s68 offen NTG")
            a(f"buffer_load_short_d16_hi v{20+r}, v6, s[52:55], s68 offen NTG")
            if r < 3: a(f"s_add_u32 s68, s68, {256*450}")
    def row_s1(s):
        a = s.a
        def late_loads():
            a(f"s_lshl_b32 s64, s3, 10\ns_add_u32 m0, s64, {CT}\nbuffer_load_dwordx4 v7, s[36:39], s64 offen lds")
            s.nonce_issue(31)
        if s.o.get("cpos", 1) == -1: late_loads()
        s.b0()
        if s.o.get("cpos", 1) == 0: late_loads()
        wp = s.o.get("wp", 5)
        if s.o.get("wg", 1) == 5:
            s.bw()
            if s.o.get("wd0"): a(f"s_sleep {s.o['wd0']}")
            s.w_loads()
        a(f"""
v_cvt_f32_u32 v8, s71
v_mul_f32 v8, {f2h(1/128)}, v8             ; sigma/128
v_add_f32 v13, v5, v8
v_mul_f32 v13, v13, v4
""")
        s.matrix(13, 4, 56, 60, False)
        if s.o.get("cpos", 1) == 1: late_loads()
        a(f"""
v_mul_u32_u24 v25, 5120, v2
v_mul_u32_u24 v8, 80, v1
s_lshl_b32 s64, s3, 3
s_add_u32 s64, s64, {T1}
v_add3_u32 v25, v25, v8, s64          ; T write: g*5120 + 80c + 8w
s_mul_i32 s64, s3, 2560
s_add_u32 s64, s64, {T1}
v_lshl_add_u32 v26, v2, 4, v8
v_add_u32 v26, s64, v26               ; T read: 2w*1280 + 80c + 16g
s_lshl_b32 s65, s3, 11
v_lshl_add_u32 v120, v3, 3, s65
""")
        if s.o.get("wg", 1) != 5: s.bw()
        if s.o.get("bce"): s.bc()
        if s.o.get("wd"): a(f"s_sleep {s.o['wd']}")
        if wp == 1: s.w_prefetch(94)
        s.stamp("p2")
        a(f"s_setprio BPRIO\ns_waitcnt vmcnt({8 if s.o.get('wg', 1) == 5 else (2 if wp < 2 else 0)})")
        s.stamp(2); s.stamp("s0"); s.stamp("p3")
        if s.o.get("stop"): a("s_branch L_exit")
        a("s_barrier")
        s.stamp("s1")
        pk = s.o.get("pk", True)
        a(f"""
ds_read_b64_tr_b16 v[96:97], v120
ds_read_b64_tr_b16 v[98:99], v120 offset:512
""")
        s.cread([(32, "COS28"), (36, "NSIN28")])
        a(f"""
ds_read_b64_tr_b16 v[100:101], v120 offset:1024
ds_read_b64_tr_b16 v[102:103], v120 offset:1536
""")
        s.cread([(48, "TWRC"), (52, "TWRS"), (40, "R2RE"), (44, "R2IM")])
        if s.o.get("wg", 1) == 0: s.w_loads()
        if wp == 3: s.w_prefetch(94)
        s.stamp("s2")
        s.nonce_get(31)
        a("s_waitcnt lgkmcnt(6)")
        s.mfma(104, 96, 32); s.mfma(108, 96, 36)
        a("s_waitcnt lgkmcnt(4)")
        s.mfma(112, 100, 32); s.mfma(116, 100, 36)
        a("s_waitcnt lgkmcnt(0)")
        s.stamp("s3")
        s.twiddle(104, 108, 48, 52, [96, 97, 98, 99], False, packed=pk)
        s.mfma(104, 40, 96); s.mfma(108, 44, 96)
        s.twiddle(112, 116, 48, 52, [100, 101, 102, 103], False, packed=pk)
        s.mfma(112, 40, 100); s.mfma(116, 44, 100)
        s.stamp("s4")
        s.pack(104, 108, [120, 122, 124, 126]); s.pack(112, 116, [121, 123, 125, 127])
        for r in range(4): a(f"ds_write_b64 v25, {V(120+2*r,2)} offset:{1280*r}")
        a(f"""
s_lshl_b32 s64, s71, 6
s_lshl_b32 s65, s3, 14
s_add_u32 s64, s64, s65            ; sigma*64 + 2w*8192
s_waitcnt lgkmcnt(0)""")
        s.stamp("s5")
        a("s_barrier")
        s.stamp("s6")
        a(f"""
ds_read_b128 v[96:99], v26
ds_read_b128 v[100:103], v26 offset:1280
s_waitcnt lgkmcnt(1)
""")
        s.mfma(104, 56, 96); s.mfma(108, 60, 96)
        a("s_waitcnt lgkmcnt(0)")
        s.mfma(112, 56, 100); s.mfma(116, 60, 100)
        if s.o.get("hp", 0) == 0: s.hint_send("z1", "s71", s.o.get("hw", 0))
        s.stamp("s7")
        for t, (dr, di, P) in enumerate(((104, 108, 120), (112, 116, 124))):
            s.pack(dr, di, [P, P+1, P+2, P+3])
            for r in range(4): a(f"v_cndmask_b32 v{P+r}, v{P+r}, v31, s[62:63]")
            for r in range(4):
                a(f"s_add_u32 s65, s64, {Z1 + t*8192 + r*131072}")
                a(f"buffer_store_dword v{P+r}, v24, s[32:35], s65 offen sc1")
        if s.o.get("hp", 0) == 1: s.hint_send("z1", "s71", s.o.get("hw", 0))
        s.stamp(3); s.stamp("s8")
        s.z1_gate_issue("r")
        a(f"""s_barrier
s_lshl_b32 s64, s3, 10
s_add_u32 s64, s64, 8192
s_add_u32 m0, s64, {CT}
buffer_load_dwordx4 v7, s[36:39], s64 offen lds""")
        if s.o.get("wg", 1) == 1: s.w_loads()
        if s.o.get("wg", 1) == 3: s.w_early("r")
        if wp == 4: s.w_prefetch(94)
        if wp == 6: s.w_sprefetch("r")
        if not s.o.get("bce"):
            a("s_setprio 0"); s.bc(); a("s_setprio BPRIO")
        a("s_branch L_col")
    def z1_gate_issue(s, tag):
        s.a(f"""
s_lshl_b32 s64, s66, 4
s_add_u32 s64, s64, s67
s_lshl_b32 s64, s64, 13
s_lshl_b32 s65, s3, 6
s_add_u32 s69, s64, s65
s_add_u32 s69, s69, {Z1}           ; Z1 + unit*8192 + w*64
""")
    def t_u(s):
        a = s.a
        a(f"L_T:\ns_cmp_ge_u32 s2, {NR0}\ns_cbranch_scc1 L_hz")
        s.hint_zero()
        a(f"""
v_and_b32 v10, 3, v3
v_lshrrev_b32 v11, 2, v3
v_cmp_eq_u32 s[56:57], 3, v10
v_mul_u32_u24 v120, 4160, v10
v_lshl_add_u32 v120, v11, 2, v120
s_lshl_b32 s64, s3, 6
v_add_u32 v120, s64, v120          ; LDS: 4160e + 4q + 64w
v_mul_u32_u24 v121, {PSTR}, v11
v_lshl_add_u32 v121, v10, 4, v121  ; q*PSTR + 16e
""")
        s.b0(); s.nonce_issue(31); s.bw()
        if s.o.get("wg", 1) == 5:
            if s.o.get("wd0"): a(f"s_sleep {s.o['wd0']}")
            s.w_loads()
        if s.o.get("tce", 1): s.bc()
        wp = s.o.get("wp", 5)
        if s.o.get("wdt"): a(f"s_sleep {s.o['wdt']}")
        if wp < 2: s.w_prefetch(62)
        a(f"""
s_mul_i32 s64, s3, {16*PSTR}
s_lshl_b32 s65, s71, 6
s_add_u32 s64, s64, s65
s_add_u32 s64, s64, {UT}
s_add_u32 s65, s64, {128*PSTR}
""")
        s.stamp("p2")
        a(f"s_setprio BPRIO\ns_waitcnt vmcnt({8 if s.o.get('wg', 1) == 5 else (2 if wp < 2 else 0)})")
        s.stamp(2); s.stamp("p3")
        if s.o.get("stop"): a("s_branch L_exit")
        a("s_barrier")
        for k in range(2):
            for i in range(4): a(f"ds_read_b32 v{96+4*k+i}, v120 offset:{1040*i + 512*k}")
        s.nonce_get(31)
        a(f"""
s_waitcnt lgkmcnt(4)
v_cndmask_b32 v99, v99, v31, s[56:57]
buffer_store_dwordx4 v[96:99], v121, s[32:35], s64 offen sc1
s_cmp_ge_u32 s3, 6
s_cbranch_scc1 L_T_p2
s_waitcnt lgkmcnt(0)
v_cndmask_b32 v103, v103, v31, s[56:57]
buffer_store_dwordx4 v[100:103], v121, s[32:35], s65 offen sc1
L_T_p2:
""")
        if s.o.get("ug", 0): s.hint_send("u", "s71", s.o.get("uw", 7))
        s.stamp(3)
        if s.o.get("tfe", 0): s.t_prep(); a("s_setprio BPRIO")
        a(f"""
s_cmp_lt_u32 s2, {NR0}
s_cbranch_scc1 L_Ty
""")
        s.z1_gate_issue("t")
        a(f"s_and_b32 s64, s3, 3\ns_lshl_b32 s64, s64, 10\ns_add_u32 s64, s64, {TB['F8RE']}\ns_add_u32 m0, s64, {CT}\nbuffer_load_dwordx4 v7, s[36:39], s64 offen lds")
        if wp in (3, 4): s.w_prefetch(62)
        if wp == 6: s.w_sprefetch("t")
        if wp == 5:
            a(f"""
s_barrier
s_sub_u32 s65, s3, 1
s_cmp_ge_u32 s65, 4
s_cbranch_scc1 L_nwp
s_sub_u32 s64, s67, 8
s_lshl_b32 s64, s64, 2
s_add_u32 s64, s64, s65
s_lshl_b32 s64, s64, 6
s_add_u32 s64, s64, s66
s_mul_i32 s64, s64, 450
v_lshlrev_b32 v8, 7, v1
v_min_u32 v8, 448, v8
v_mul_u32_u24 v9, {16*450}, v2
v_add_u32 v8, v8, v9
buffer_load_ushort v60, v8, s[48:51], s64 offen NTW
buffer_load_ushort v61, v8, s[52:55], s64 offen NTW
L_nwp:
""")
        if s.o.get("wg", 1) < 2:
            a("s_barrier")
            s.w_loads()
        if s.o.get("wg", 1) == 3:
            a("s_barrier")
            s.w_early("t")
        if not s.o.get("tce", 1):
            a("s_setprio 0"); s.bc(); a("s_setprio BPRIO")
    def column(s):
        a = s.a
        a(f"L_col:\ns_setprio {s.o.get('pcol', 2)}")
        s.stamp(4)
        s.g_wait("z1", "s58")
        if s.o.get("zs") == 1: s.stamp(7)
        wg = s.o.get("wg", 1)
        a(f"s_waitcnt vmcnt({8 if wg == 1 else 0})\ns_barrier")
        if s.o.get("zs") == 1: s.stamp(1)
        def zl():
            for j in range(4): a(f"buffer_load_dword v{96+j}, v27, s[32:35], s69 offen offset:{512*j} sc1")
        zl()
        if wg == 2: s.w_loads()
        if wg == 3:
            a("s_cmp_lg_u32 s3, 0\ns_cbranch_scc1 L_wl0"); s.w_loads(); a("s_waitcnt vmcnt(8)\ns_branch L_wl1\nL_wl0:\ns_waitcnt vmcnt(0)\nL_wl1:")
        s.cread([(32, "F8RE"), (36, "F8IM"), (40, "G8RE"), (44, "G8IM")])
        if wg != 3: a(f"s_waitcnt vmcnt({8 if wg == 2 else 0})")
        if s.o.get("zs") == 1: s.stamp(2)
        a("s_branch L_chk_z1\nL_poll_z1:")
        zl()
        a("s_waitcnt vmcnt(0)\nL_chk_z1:")
        s.check("z1", [(96 + j, 27, "s69", 512 * j, "s[62:63]") for j in range(4)])
        s.stamp(5)
        s.mfma(104, 64, 96); s.mfma(108, 68, 96)
        s.pack(104, 108, [120, 121, 122, 123])
        for r in range(4): a(f"ds_write_b32 v28, v{120+r} offset:{768*r}")
        a("s_waitcnt lgkmcnt(0)\ns_barrier\nds_read_b128 v[96:99], v29\ns_waitcnt lgkmcnt(0)")
        s.mfma(104, 32, 96); s.mfma(108, 36, 96)
        a("s_waitcnt vmcnt(0)")
        s.twiddle(104, 108, 16, 20, [96, 97, 98, 99], True)
        s.mfma(104, 40, 96); s.mfma(108, 44, 96)
        s.pack(104, 108, [120, 121, 122, 123])
        a("ds_write_b128 v29, v[120:123]\ns_waitcnt lgkmcnt(0)\ns_barrier")
        for j in range(4): a(f"ds_read_b32 v{96+j}, v28 offset:{768*j}")

        a(f"""
s_lshl_b32 s64, s3, 14
s_lshl_b32 s65, s67, 10
s_add_u32 s64, s64, s65
s_lshl_b32 s65, s66, 6
s_add_u32 s64, s64, s65
s_waitcnt lgkmcnt(0)
""")
        s.mfma(104, 72, 96); s.mfma(108, 76, 96)
        if s.o.get("hp", 0) == 0: s.hint_send("z2", "s58", s.o.get("hw", 0))
        s.pack(104, 108, [120, 121, 122, 123])
        for r in range(4): a(f"v_cndmask_b32 v{120+r}, v{120+r}, v31, s[62:63]")
        for r in range(4):
            a(f"s_add_u32 s65, s64, {Z2 + r*131072}")
            a(f"buffer_store_dword v{120+r}, v24, s[32:35], s65 offen sc1")
        if s.o.get("hp", 0) == 1: s.hint_send("z2", "s58", s.o.get("hw", 0))
        s.stamp(6)
        a(f"s_cmp_ge_u32 s2, {NT0}\ns_cbranch_scc1 L_Ty")
    def row_inv(s):
        a = s.a
        a(f"s_setprio {s.o.get('pinv', 3)}")
        a(f"""
s_lshl_b32 s64, s71, 14
s_lshl_b32 s65, s3, 11
s_add_u32 s69, s64, s65
s_add_u32 s69, s69, {Z2}
""")
        s.cread([(32, "R2BRE"), (36, "R2BIM"), (40, "TWIC"), (44, "TWIS"), (48, "R1B0"), (52, "R1B1")])
        a(f"""
v_cvt_f32_u32 v8, s71
v_fmamk_f32 v12, v8, {f2h(1/2048)}, v4
v_mul_f32 v13, v12, v5
""")
        s.matrix(13, 12, 80, 84, True)
        a(f"""
v_and_b32 v10, 1, v2
v_lshl_add_u32 v11, v10, 4, v1        ; n1 = c + 16(g&1)
v_lshlrev_b32 v30, 5, v11
v_lshrrev_b32 v12, 1, v2
v_lshl_add_u32 v30, v12, 4, v30
v_cmp_lt_u32 vcc, 27, v11
v_mov_b32 v12, 0x10000000
v_cndmask_b32 v30, v30, v12, vcc
v_lshlrev_b32 v5, 8, v2
v_lshl_add_u32 v5, v1, 2, v5
v_cmp_eq_u32 s[28:29], 3, v2
""")
        s.g_wait("z2", "s71")
        a("s_waitcnt lgkmcnt(0)\ns_barrier\nL_poll_z2:")
        for t in range(2):
            for j in range(4): a(f"buffer_load_dword v{96+4*t+j}, v5, s[32:35], s69 offen offset:{1024*t+64*j} sc1")
        a("s_waitcnt vmcnt(0)")
        s.check("z2", [(96 + 4 * t + j, 5, "s69", 1024 * t + 64 * j, "s[62:63]") for t in range(2) for j in range(4)])
        if s.o.get("zs") != 1: s.stamp(7)
        if s.o.get("sb"): a(f"s_sleep {s.o['sb']}")
        pk = s.o.get("pk2", True)
        s.mfma(104, 80, 96); s.mfma(108, 84, 96); s.mfma(112, 80, 100); s.mfma(116, 84, 100)
        s.pack(104, 108, [120, 122, 124, 126]); s.pack(112, 116, [121, 123, 125, 127])
        for r in range(4): a(f"ds_write_b64 v25, {V(120+2*r,2)} offset:{1280*r}")
        a(f"""
s_lshl_b32 s64, s3, 8
s_add_u32 s64, s64, s71
s_mul_i32 s64, s64, 1792
s_add_u32 s64, s64, 896
s_add_u32 s65, s64, {128*1792}
s_waitcnt lgkmcnt(0)
s_barrier
ds_read_b128 v[96:99], v26
ds_read_b128 v[100:103], v26 offset:1280
s_waitcnt lgkmcnt(1)
""")
        s.mfma(104, 96, 32); s.mfma(108, 96, 36)
        a("s_waitcnt lgkmcnt(0)")
        s.mfma(112, 100, 32); s.mfma(116, 100, 36)
        s.twiddle(104, 108, 40, 44, [96, 97, 98, 99], True, packed=pk)
        a("v_cndmask_b32_e64 v99, v99, 0, s[28:29]")
        s.mfma(104, 96, 48); s.mfma(108, 96, 52)
        s.twiddle(112, 116, 40, 44, [100, 101, 102, 103], True, packed=pk)
        a("v_cndmask_b32_e64 v103, v103, 0, s[28:29]")
        s.mfma(112, 100, 48); s.mfma(116, 100, 52)
        for t, (d0, d1, P, so) in enumerate(((104, 108, 120, "s64"), (112, 116, 124, "s65"))):
            a(f"""v_cvt_pk_bf16_f32 v{P}, v{d0}, v{d0+1}
v_cvt_pk_bf16_f32 v{P+1}, v{d0+2}, v{d0+3}
v_cvt_pk_bf16_f32 v{P+2}, v{d1}, v{d1+1}
v_cvt_pk_bf16_f32 v{P+3}, v{d1+2}, v{d1+3}
v_permlane16_swap_b32 v{P}, v{P+2}
v_permlane16_swap_b32 v{P+1}, v{P+3}
buffer_store_dwordx4 {V(P,4)}, v30, s[44:47], {so} offen OUTF""")
        s.hint_rearm("z1")
        s.stamp(8)
        a("s_branch L_exit")
    def t_prep(s):
        a = s.a
        a(f"""
s_setprio 0
s_mul_i32 s29, s71, 14336
s_add_u32 s29, s29, {YT}
s_mul_i32 s72, s59, 1792
s_movk_i32 s73, 840
s_cmp_eq_u32 s59, 1
s_cselect_b32 s59, s73, 448
s_mul_i32 s28, s28, 1792
v_mul_u32_u24 v8, {(1<<20)//56+1}, v0
v_lshrrev_b32 v8, 20, v8
v_mul_u32_u24 v9, 56, v8
v_sub_u32 v9, v0, v9               ; grp0
v_add_u32 v10, 512, v0
v_mul_u32_u24 v11, {(1<<20)//56+1}, v10
v_lshrrev_b32 v11, 20, v11         ; row1
v_mul_u32_u24 v12, 56, v11
v_sub_u32 v12, v10, v12            ; grp1
v_lshlrev_b32 v9, 4, v9
v_lshlrev_b32 v12, 4, v12
global_load_dwordx4 v[112:115], v9, s[16:17]
global_load_dwordx4 v[116:119], v12, s[16:17]
v_min_u32 v11, 15, v11
v_mul_u32_u24 v25, 912, v8
v_add_u32 v25, v25, v9
v_mul_u32_u24 v26, 912, v11
v_add_u32 v26, v26, v12
v_lshl_add_u32 v104, v8, 7, v25
v_lshl_add_u32 v108, v11, 7, v26
ds_read_b128 v[104:107], v104
ds_read_b128 v[108:111], v108
v_mul_u32_u24 v48, s72, v8
v_add_u32 v48, v48, v9
v_mul_u32_u24 v49, s72, v11
v_add_u32 v49, v49, v12
v_mov_b32 v13, 0x10000000
v_cmp_gt_u32 vcc, s59, v0
v_cndmask_b32 v48, v13, v48, vcc
v_cmp_gt_u32 vcc, s59, v10
v_cndmask_b32 v49, v13, v49, vcc
v_and_b32 v10, 3, v0
v_mul_u32_u24 v10, 3648, v10
v_and_b32 v11, 0xfffffffc, v0
v_add_u32 v50, v10, v11
v_lshlrev_b32 v30, 4, v0           ; tid*16
v_cmp_gt_u32 vcc, 384, v0
s_mov_b64 s[30:31], vcc
s_waitcnt vmcnt(0) lgkmcnt(0)
""")
        for it in range(2):
            for j in range(4):
                u, d, o = 104 + 4*it + j, 112 + 4*it + j, 80 + 8*it + 2*j
                a(f"""v_lshlrev_b32 v8, 16, v{u}
v_lshlrev_b32 v9, 16, v{d}
v_and_b32 v10, 0xffff0000, v{u}
v_and_b32 v11, 0xffff0000, v{d}
v_mul_f32 v8, v8, v9
v_mul_f32 v10, v10, v11
v_cvt_pk_bf16_f32 v8, v8, v10
v_lshlrev_b32 v{o}, 16, v8
v_and_b32 v{o+1}, 0xffff0000, v8""")
    def t_y(s):
        a = s.a
        a("L_Ty:")
        if not s.o.get("tfe", 0): s.t_prep()
        a("s_add_u32 s64, s29, 8192\nv_mov_b32 v103, v31")
        a("s_setprio BPRIO")
        s.g_wait("y", "s71")
        a(f"""
s_barrier
L_poll_y:
buffer_load_dwordx4 v[96:99], v30, s[32:35], s29 offen sc1
s_mov_b64 exec, s[30:31]
s_cbranch_execz L_y1
buffer_load_dwordx4 v[100:103], v30, s[32:35], s64 offen sc1
L_y1:
s_mov_b64 exec, -1
s_waitcnt vmcnt(0)
""")
        s.check("y", [(99, 30, "s29", 12, "s[56:57]"), (103, 30, "s64", 12, "s[56:57]")])
        if s.o.get("zs") != 1: s.stamp(7)
        for r in range(4): a(f"ds_write_b32 v50, v{96+r} offset:{912*r}")
        a("s_mov_b64 exec, s[30:31]")
        for r in range(4): a(f"ds_write_b32 v50, v{100+r} offset:{912*r+512}")
        a(f"""
s_mov_b64 exec, -1
s_waitcnt lgkmcnt(0)
s_barrier
ds_read_b128 v[96:99], v25
ds_read_b128 v[100:103], v26
""")
        for it in range(2):
            a(f"s_waitcnt lgkmcnt({1-it})")
            for j in range(4):
                y = 96 + 4*it + j
                a(f"v_lshlrev_b32 v{8+2*j}, 16, v{y}\nv_and_b32 v{9+2*j}, 0xffff0000, v{y}")
            for j in range(4): a(f"v_pk_add_f32 {V(8+2*j,2)}, {V(8+2*j,2)}, {V(80+8*it+2*j,2)}")
            for j in range(4): a(f"v_cvt_pk_bf16_f32 v{104+4*it+j}, v{8+2*j}, v{9+2*j}")
            a(f"buffer_store_dwordx4 {V(104+4*it,4)}, v{48+it}, s[44:47], s28 offen OUTF")
        a(f"""
s_add_u32 s64, s71, s3
s_cmp_lg_u32 s64, 0
s_cbranch_scc1 L_noep
s_mov_b32 s61, {EPOCH}
s_mov_b64 exec, 1
buffer_store_dword v31, off, s[32:35], s61
s_mov_b64 exec, -1
L_noep:""")
        if s.o.get("ug", 0): s.hint_rearm("u")
        s.stamp(8)
        a("s_branch L_exit")
    def cmuls(s, lst):
        for d, x, e, t in lst:
            s.a(f"v_pk_mul_f32 {V(t,2)}, {V(x,2)}, {V(e,2)} op_sel:[1,1] op_sel_hi:[1,0] neg_lo:[1,0]")
        for d, x, e, t in lst:
            s.a(f"v_pk_fma_f32 {V(d,2)}, {V(x,2)}, {V(e,2)}, {V(t,2)} op_sel_hi:[0,1,1]")
    def exp2_bf16(s, pairs):
        L_HI = 1.4426950216293335; L_LO = 1.4426950408889634 - L_HI
        for fmt in (f"v_mul_f32 v{{t}}, {f2h(L_HI)}, v{{x}}", "v_exp_f32 v{d}, v{t}", "v_fma_f32 v{u}, v{x}, s71, -v{t}",
                    f"v_fmac_f32 v{{u}}, {f2h(L_LO)}, v{{x}}", f"v_mul_f32 v{{u}}, {f2h(math.log(2))}, v{{u}}",
                    "v_fma_f32 v{d}, v{d}, v{u}, v{d}", "v_cvt_pk_bf16_f32 v{d}, v{d}, v{d}", "v_and_b32 v{d}, 0xffff0000, v{d}"):
            for d, x, t in pairs: s.a(fmt.format(d=d, x=x, t=t, u=t + 1))
    def a_path(s):
        a = s.a
        a("L_A:")
        if s.o.get("ap", 1): a(f"s_setprio {s.o.get('ap', 1)}")
        s.stamp(1); s.stamp("p1")
        s.a("v_lshrrev_b32 v32, 6, v0\nv_and_b32 v3, 63, v0\nv_readfirstlane_b32 s3, v32\nv_and_b32 v1, 15, v0\nv_bfe_u32 v2, v0, 4, 2\ns_mov_b32 s70, 0")
        s.srd(32, "0x10000000")
        s.nonce_issue(115)
        a(f"""
s_lshr_b32 s67, s3, 2              ; ch
s_and_b32 s68, s3, 3               ; q4
v_lshlrev_b32 v25, 4, v3           ; 16*lane
""")
        nl = 1
        def addr_pairs(fl, dst):
            for i in range(0, len(fl), 2):
                a(f"v_cvt_pk_bf16_f32 v{fl[i]}, v{fl[i]}, v{fl[min(i+1, len(fl)-1)]}")
            for i in range(0, len(fl), 2):
                a(f"v_lshlrev_b32 v{fl[i]}, 1, v{fl[i]}")
            for i in range(len(fl)):
                a(f"v_add_u32_sdwa v{dst[i]}, s64, v{fl[i & ~1]} dst_sel:DWORD dst_unused:UNUSED_PAD src0_sel:DWORD src1_sel:WORD_{i & 1}")
        def AG():
            a(f"""
s_mul_i32 s72, s67, {KCH}
s_add_u32 s72, s72, {KC}
s_sub_u32 s64, s72, {2*KB}
v_and_b32 v33, 255, v0
v_lshlrev_b32 v33, 3, v33
v_sub_u32 v33, 2047, v33
v_cvt_f32_i32 v40, v33             ; lag of element 0
""")
            for e in range(1, 9):
                a(f"v_add_f32 v{40+e}, {f2h(-float(e))}, v40")
            a(f"v_mov_b32 v34, {f2h(2064.0)}")
            for e in (8,):
                a(f"v_cmp_gt_f32 vcc, 0, v{40+e}\nv_cndmask_b32 v{40+e}, v{40+e}, v34, vcc")
            addr_pairs(list(range(40, 49)), list(range(8, 17)))
            a("v_max_i32 v15, s72, v15")
        def AS():
            a(f"""
s_mul_i32 s72, s67, {KCH}
s_add_u32 s72, s72, {KC}
s_sub_u32 s64, s72, {2*KB}
""")
            a(f"""
v_lshrrev_b32 v34, 1, v2           ; g>>1
v_and_b32 v35, 1, v2               ; g&1
s_cmp_eq_u32 s68, 1
s_cbranch_scc1 L_sc1
s_cmp_eq_u32 s68, 2
s_cbranch_scc1 L_sc2
v_lshlrev_b32 v36, 7, v34
v_lshl_add_u32 v36, v35, 2, v36    ; 128(g>>1) + 4(g&1) + r
v_mov_b32 v37, 1
v_mov_b32 v38, 2
s_branch L_scd
L_sc1:
v_lshlrev_b32 v36, 7, v2
v_add_u32 v36, 256, v36            ; g<2: 256+128g + 2r
v_lshlrev_b32 v37, 8, v2           ; g>=2: 256g + 128(r>>1) + 4(r&1)
v_cmp_lt_u32 vcc, 1, v2
v_cndmask_b32 v36, v36, v37, vcc
v_cndmask_b32_e64 v37, 2, 4, vcc
v_mov_b32 v38, 128
v_cndmask_b32 v38, 4, v38, vcc
s_branch L_scd
L_sc2:
v_lshlrev_b32 v36, 9, v2
v_add_u32 v36, 1024, v36           ; 1024 + 128(4g+r)
v_mov_b32 v37, 128
v_mov_b32 v38, 256
L_scd:
v_lshl_add_u32 v36, v1, 3, v36
v_add_u32 v37, v36, v37
v_sub_u32 v39, v37, v36
v_add_u32 v38, v36, v38
v_add_u32 v39, v38, v39
v_mov_b32 v34, 2080
v_cmp_lt_u32 vcc, 2048, v36
v_cndmask_b32 v36, v36, v34, vcc
v_cmp_lt_u32 vcc, 2048, v37
v_cndmask_b32 v37, v37, v34, vcc
v_cmp_lt_u32 vcc, 2048, v38
v_cndmask_b32 v38, v38, v34, vcc
v_cmp_lt_u32 vcc, 2048, v39
v_cndmask_b32 v39, v39, v34, vcc
v_cvt_f32_u32 v40, v36
v_cvt_f32_u32 v41, v37
v_cvt_f32_u32 v42, v38
v_cvt_f32_u32 v43, v39
""")
            addr_pairs([40, 41, 42, 43], [20, 21, 22, 23])
            a("v_max_i32 v20, s72, v20")
        def AC():
            a(f"""
v_cmp_eq_u32 s[62:63], 15, v1
s_mul_i32 s69, s67, {CHK}
s_add_u32 s64, s69, {KCP}
v_and_b32 v26, 255, v0
v_lshl_add_u32 v26, v26, 4, s64
v_add_u32 v34, 1, v1
v_and_b32 v34, 1, v34              ; s = (i+1)&1
v_mul_u32_u24 v35, 4158, v34       ; s*4160 - 2s
v_lshlrev_b32 v36, 4, v2
v_lshlrev_b32 v37, 1, v1
v_sub_u32 v36, v36, v37            ; 16g - 2i
s_bfe_u32 s73, s3, 0x10001
s_and_b32 s64, s3, 1
s_lshl_b32 s64, s64, 8              ; 64*4h
s_mul_i32 s65, s73, {CHK}
s_sub_u32 s65, s65, s64
s_add_u32 s72, s65, {KCP + 2*2031 - 192 - 512*7}
v_add3_u32 v27, v35, v36, s72      ; vA
v_add_u32 v17, 1024, v27
v_add_u32 v18, 2048, v27
v_add_u32 v19, 3072, v27
v_lshlrev_b32 v28, 5, v1
v_lshl_add_u32 v28, v2, 4, v28
s_mul_i32 s72, s73, {CHU}
s_sub_u32 s72, s72, s64
s_add_u32 s72, s72, {UA + 448 - 192}
v_add_u32 v28, s72, v28            ; vB
s_lshl_b32 s64, s3, 9
s_add_u32 s64, s64, {UA + 480}
v_lshl_add_u32 v30, v3, 3, s64
v_and_b32 v34, 3, v3
v_cmp_eq_u32 s[28:29], 3, v34
v_cmp_gt_u32 s[30:31], 2, v34
v_lshrrev_b32 v35, 2, v3
v_lshlrev_b32 v35, 8, v35
v_lshl_add_u32 v35, v34, 7, v35
v_add_u32 v113, {UA + 480 + 30}, v35
s_mul_i32 s58, s66, {PSTR}
s_add_u32 s58, s58, {UT}
s_lshl_b32 s64, s3, 10
s_add_u32 s57, s58, s64
s_add_u32 s55, s58, 8192
s_cmp_eq_u32 s3, 7
s_cselect_b64 s[52:53], s[28:29], 0
s_mov_b32 s50, 0x05040100
s_mov_b32 s51, 0x07060302
""")
        a(f"""
s_mul_i32 s59, s3, {WV}
v_mul_u32_u24 v24, {RS}, v1
v_lshl_add_u32 v24, v2, 4, v24
v_add_u32 v24, s59, v24
s_mov_b32 s71, {f2h(1.4426950216293335)}
s_mov_b32 m0, s59
""")
        def uloads():
            u = a.uid()
            a(f"""buffer_load_dwordx4 v[116:119], v25, s[32:35], s57 offen sc1
s_cmp_lg_u32 s3, 7
s_cbranch_scc1 L_ul{u}
buffer_load_dwordx4 v[120:123], v25, s[32:35], s55 offen sc1
L_ul{u}:""")
        early = s.o.get("ae", "SGC")
        for ch in early: {"S": AS, "G": AG, "C": AC}[ch]()
        s.stamp("p2")
        a(f"s_waitcnt vmcnt({nl})")
        s.stamp("p3")
        a("s_cmp_lg_u32 s3, 7\ns_cbranch_scc1 L_a_w\ns_waitcnt vmcnt(5)\nL_a_w:") if False else None
        if s.o.get("bal", 1): a(f"s_cmp_eq_u32 s67, 0\ns_cbranch_scc1 L_bal0\ns_setprio {s.o.get('ap', 1) + 1}\nL_bal0:")
        s.stamp(2); s.stamp("k0")
        if s.o.get("stop"): a("s_branch L_exit")
        s.exp2_bf16([(31, 114, 34), (32, 4, 36)])
        a(f"""
v_mul_f32 v33, v5, v31             ; zi
v_mul_f32 v32, v32, v31            ; -zr
v_mul_f32 v33, 0.15915494, v33     ; revolutions
v_mul_f32 v32, {f2h(-1.4426950408889634)}, v32     ; zr*log2e
v_add_f32 v31, v31, v31
v_mul_f32 v35, {f2h(8.0)}, v33
v_mul_f32 v37, {f2h(128.0)}, v33
v_mul_f32 v34, {f2h(8.0)}, v32
v_mul_f32 v36, {f2h(128.0)}, v32
v_fract_f32 v35, v35
v_fract_f32 v37, v37
v_fract_f32 v33, v33
v_exp_f32 v34, v34
v_cos_f32 v58, v35
v_sin_f32 v59, v35
v_exp_f32 v36, v36
v_cos_f32 v60, v37
v_sin_f32 v61, v37
v_exp_f32 v32, v32
v_cos_f32 v56, v33
v_sin_f32 v57, v33
v_mul_f32 v42, v6, v31
v_mul_f32 v43, v7, v31             ; G0 = 2C dt
v_mul_f32 v58, v58, v34
v_mul_f32_e64 v59, v59, -v34       ; conj E8
v_mul_f32 v60, v60, v36
v_mul_f32 v61, v61, v36
v_mul_f32 v56, v56, v32
v_mul_f32 v57, v57, v32
""")
        s.stamp("k1")
        E1, E8, E128, E2, E4 = 56, 58, 60, 38, 40
        pkr = [54, 55, 62, 63, 4, 5, 6, 7]
        st = {"k": 0}
        def emit(lst):
            ps = []
            for x, buf, row in lst:
                p = pkr[st["k"] % 8]; st["k"] += 1; ps.append(p)
                a(f"v_cvt_pk_bf16_f32 v{p}, v{x}, v{x+1}")
            for p, (x, buf, row) in zip(ps, lst):
                a(f"ds_write_addtid_b32 v{p} offset:{buf*BUF + row*RS}")
        X0, X1, XV, XW, T0, T1, T2, T3 = 42, 44, 46, 32, 48, 50, 52, 108
        GA, GB = 34, 36
        E16 = 110
        a(f"v_mov_b32 v7, 0x3f80\nds_write_addtid_b32 v7 offset:0")
        s.cmuls([(X1, X0, E128, T1), (E16, E8, E8, T2)])
        emit([(E8, 0, 1), (X0, 1, 0)])
        s.cmuls([(GA, X1, E128, T0), (XW, E16, E8, T3), (XV, E16, E16, T2)])
        emit([(X1, 1, 8), (E16, 0, 2), (XW, 0, 3), (XV, 0, 4)])
        for j in range(1, 8):
            l = [(X0, X0, E1, T0), (X1, X1, E1, T1)]
            e = [(X0, 1, j), (X1, 1, 8 + j)]
            if j <= 6: l.append((XW, XW, E16, T3)); e.append((XW, 0, 3 + 2*j))
            if j <= 5: l.append((XV, XV, E16, T2)); e.append((XV, 0, 4 + 2*j))
            if j == 6: l.append((E2, E1, E1, T2))
            if j == 7: l += [(GB, GA, E128, T2), (E4, E2, E2, T3)]
            s.cmuls(l); emit(e)
        s.stamp("k2")
        if s.o.get("bal", 1): a(f"s_setprio {s.o.get('ap', 1)}")
        a("s_waitcnt lgkmcnt(0)")
        s.stamp("k3")
        for ks in range(4): a(f"ds_read_b128 {V(64+4*ks,4)}, v24 offset:{64*ks}")
        for ks in range(4): a(f"ds_read_b128 {V(80+4*ks,4)}, v24 offset:{BUF+64*ks}")
        s.cmuls([(X0, GA, E2, T0), (X1, GB, E2, T1), (XV, GB, E128, T2), (E16, E128, E128, T3)])
        a("s_waitcnt lgkmcnt(4)")
        emit([(GA, 0, 0), (GB, 0, 4), (X0, 0, 1), (X1, 0, 5), (XV, 0, 8)])
        s.cmuls([(X0, X0, E2, T0), (X1, X1, E2, T1), (XW, XV, E128, T2), (GA, XV, E4, T3)])
        a("s_waitcnt lgkmcnt(5)")
        for ks in range(4): s.mfma(96, 80+4*ks, 64+4*ks, None if ks == 0 else 96)
        emit([(X0, 0, 2), (X1, 0, 6), (XW, 0, 10), (GA, 0, 9)])
        s.stamp("k4")
        ug = s.o.get("ug", 0) and not s.o.get("aonly")
        a("s_waitcnt vmcnt(0)")
        s.nonce_get(115)
        s.cmuls([(X0, X0, E2, T0), (X1, X1, E2, T1), (XV, XV, E16, T2), (GA, XW, E4, T3)])
        emit([(X0, 0, 3), (X1, 0, 7), (XV, 0, 12), (GA, 0, 11)])
        s.cmuls([(XW, XW, E16, T0), (GA, XV, E4, T1), (XV, XV, E16, T2)])
        emit([(XW, 0, 14), (GA, 0, 13), (XV, 1, 0)])
        s.cmuls([(GB, XW, E4, T0), (XW, XW, E16, T1), (XV, XV, E16, T2)])
        emit([(GB, 0, 15), (XW, 1, 1), (XV, 1, 2)])
        s.stamp("k5")
        if s.o.get("ul", 1) == 2: uloads()
        a("s_waitcnt lgkmcnt(2)")
        for ks in range(4): a(f"ds_read_b128 {V(80+4*ks,4)}, v24 offset:{64*ks}")
        for h in range(3):
            s.cmuls([(XW, XW, E16, T0), (XV, XV, E16, T1)])
            emit([(XW, 1, 3 + 2*h), (XV, 1, 4 + 2*h)])
            if h == 1:
                a("s_waitcnt lgkmcnt(4)")
                for ks in range(4): s.mfma(100, 80+4*ks, 64+4*ks, None if ks == 0 else 100)
        a("s_waitcnt lgkmcnt(0)")
        for ks in range(4): a(f"ds_read_b128 {V(80+4*ks,4)}, v24 offset:{BUF+64*ks}")
        s.stamp("k6")
        if s.o.get("ul", 1) == 3: uloads()
        a("v_add_u32 v32, s59, v25")
        a(f"ds_write_b128 v32, v[96:99]\nds_write_b128 v32, v[100:103] offset:1024")
        a("s_waitcnt lgkmcnt(2)")
        for ks in range(4): s.mfma(104, 80+4*ks, 64+4*ks, None if ks == 0 else 104)
        a(f"ds_write_b128 v32, v[104:107] offset:2048")
        s.stamp(8); s.stamp("k7"); s.stamp("p4")
        for ch in "SC":
            if ch not in early: {"S": AS, "C": AC}[ch]()
        a("s_waitcnt lgkmcnt(0)\ns_barrier")
        a(f"s_setprio {s.o.get('pe', 3)}")
        s.stamp(3); s.stamp("k8"); s.stamp("e0")
        if s.o.get("ul", 1) == 0: uloads()
        a(f"""
s_cmp_eq_u32 s68, 3
s_cbranch_scc1 L_zp
s_lshl_b32 s72, s68, 10
s_mul_i32 s73, s67, {4*WV}
s_add_u32 s72, s72, s73
v_add_u32 v32, s72, v25
ds_read_b128 v[96:99], v32
ds_read_b128 v[100:103], v32 offset:{WV}
ds_read_b128 v[104:107], v32 offset:{2*WV}
ds_read_b128 v[80:83], v32 offset:{3*WV}
s_waitcnt lgkmcnt(2)
v_pk_add_f32 v[96:97], v[96:97], v[100:101]
v_pk_add_f32 v[98:99], v[98:99], v[102:103]
s_waitcnt lgkmcnt(0)
v_pk_add_f32 v[104:105], v[104:105], v[80:81]
v_pk_add_f32 v[106:107], v[106:107], v[82:83]
v_pk_add_f32 v[96:97], v[96:97], v[104:105]
v_pk_add_f32 v[98:99], v[98:99], v[106:107]
v_cvt_pk_bf16_f32 v96, v96, v97
v_cvt_pk_bf16_f32 v98, v98, v99
ds_write_b16 v20, v96
ds_write_b16_d16_hi v21, v96
ds_write_b16 v22, v98
ds_write_b16_d16_hi v23, v98
s_branch L_zpd
L_zp:
v_mov_b32 v96, 0
v_mov_b32 v97, 0
v_mov_b32 v98, 0
v_mov_b32 v99, 0
s_mul_i32 s72, s67, {KCH}
s_add_u32 s72, s72, {KC + 2*(0x4501 - KB)}
v_mov_b32 v33, s72
ds_write_b16 v33, v96
s_mul_i32 s72, s67, {CHU}
s_add_u32 s72, s72, {UA}
v_add_u32 v33, s72, v25
s_mov_b64 exec, 0x3fffffff
ds_write_b128 v33, v[96:99]          ; zero pad in front of u
s_mov_b64 exec, -1
v_lshrrev_b32 v64, 1, v3
v_mul_u32_u24 v64, 4160, v64
v_and_b32 v65, 1, v3
v_lshl_add_u32 v64, v65, 4, v64
s_add_u32 s72, s69, {KCP + 4096}
v_add_u32 v64, s72, v64""")
        if ug: s.g_wait("u", "s66", wave=7)
        a("L_zpd:")
        if s.o.get("ul", 1) == 1 and not ug: uloads()
        if "G" not in early: AG()
        a("s_waitcnt lgkmcnt(0)")
        s.stamp("e1")
        a("s_barrier")
        s.stamp("e2")
        if ug: uloads()
        for e in range(9): a(f"ds_read_u16 v{32+e}, v{8+e}")
        a(f"""
s_cmp_lg_u32 s68, 3
s_cbranch_scc1 L_nzt
s_mov_b64 exec, 0xf
ds_write_b128 v64, v[96:99]
s_mov_b64 exec, -1
L_nzt:
s_waitcnt lgkmcnt(0)
""")
        for cp in range(2):
            for j in range(4):
                x = cp + 2*j
                a(f"v_lshl_or_b32 v{48+4*cp+j}, v{33+x}, 16, v{32+x}")
            a(f"ds_write_b128 v26, {V(48+4*cp,4)} offset:{4160*cp}")
        s.stamp("e3")
        a("s_branch L_chk_u\nL_poll_u:")
        uloads()
        a("L_chk_u:\ns_waitcnt vmcnt(0)")
        s.check("u", [(119, 25, "s57", 12, "s[28:29]"), (123, 25, "s55", 12, "s[52:53]")])
        s.stamp(4); s.stamp("e4")
        a(f"""v_perm_b32 v56, v117, v116, s50
v_perm_b32 v57, v119, v118, s50
v_perm_b32 v58, v117, v116, s51
v_perm_b32 v59, v119, v118, s51
ds_write_b64 v30, v[56:57]
ds_write_b64 v30, v[58:59] offset:{CHU}
s_waitcnt lgkmcnt(0)
s_barrier
s_cmp_lg_u32 s3, 7
s_cbranch_scc1 L_nlo
s_mov_b64 exec, s[30:31]""")
        for k in range(4):
            a(f"ds_write_b16 v113, v{120+k} offset:{32*k}\nds_write_b16_d16_hi v113, v{120+k} offset:{32*k + CHU}")
        a("s_mov_b64 exec, -1\ns_waitcnt lgkmcnt(0)\nL_nlo:\ns_barrier")
        fill_w = f"""v_lshrrev_b32 v4, 1, v1
v_and_b32 v4, 3, v4
v_xor_b32 v4, v4, v2
v_lshlrev_b32 v4, 4, v4
v_lshl_add_u32 v4, v1, 6, v4
s_lshl_b32 s64, s3, 13
s_add_u32 s65, s64, {XP[1] - 8192}
s_cmp_eq_u32 s3, 0
s_cselect_b32 s64, 0, s65
v_add_u32 v4, s64, v4""".split("\n")
        fill_r = f"""v_lshrrev_b32 v5, 3, v3
v_xor_b32 v5, v5, v3
v_and_b32 v5, 3, v5
v_lshlrev_b32 v5, 4, v5
v_and_b32 v6, 0x3c, v3
v_lshl_add_u32 v5, v6, 4, v5
s_lshl_b32 s64, s3, 10
v_add_u32 v5, s64, v5
v_lshrrev_b32 v6, 2, v3
v_mul_u32_u24 v6, 14336, v6
v_and_b32 v7, 3, v3
v_lshl_add_u32 v6, v7, 4, v6
s_mul_i32 s64, s3, {16*14336}
s_lshl_b32 s65, s66, 6
s_add_u32 s64, s64, s65
s_add_u32 s64, s64, {YT}
v_cmp_eq_u32 s[56:57], 3, v7
v_mov_b32 v11, s60
v_and_b32 v9, 7, v1
v_and_b32 v12, 1, v2
v_lshl_add_u32 v9, v12, 3, v9
v_lshrrev_b32 v12, 1, v9
v_and_b32 v12, 3, v12
v_xor_b32 v12, 3, v12
v_lshlrev_b32 v12, 4, v12
v_lshl_add_u32 v9, v9, 6, v12
s_lshl_b32 s72, s3, 10
s_add_u32 s72, s72, 12
v_add_u32 v9, s72, v9
v_mul_u32_u24 v10, 14336, v2
v_lshl_add_u32 v10, v1, 2, v10
s_mul_i32 s72, s3, {2*14336}
s_add_u32 s65, s65, s72
s_add_u32 s65, s65, {YT + 128*14336}""".split("\n")
        if s.o.get("sa"): a(f"s_sleep {s.o['sa']}")
        s.stamp(5); s.stamp("e5")
        a(f"s_setprio {s.o.get('pc', 1)}")
        a("s_cmp_lt_u32 s3, 4\ns_cbranch_scc1 L_conv")
        a("\n".join(fill_r))
        s.stamp(6); s.stamp("e6")
        a("s_branch L_tC\nL_conv:")
        filler = fill_w + fill_r
        free = [64 + 4*i for i in range(16)]
        Areg, Breg = {}, {}
        pend = []
        q = []
        exports = []
        NC = 4
        def assign(cl, d):
            off = 64 * (NC - 1 - cl)
            ra = free.pop(0); rb = free.pop(0)
            Areg[(cl, d)] = ra; Breg[(cl, d)] = rb
            q.append(((cl, d), f"ds_read_b128 {V(rb,4)}, v28 offset:{512*d + off}"))
            vb = (27, 17, 18, 19)[(7 - d) >> 1]; o = 128 * ((7 - d) & 1) + off // 4
            q.append(((cl, d), f"ds_read2_b32 {V(ra,2)}, v{vb} offset0:{o} offset1:{o+1}"))
            q.append(((cl, d), f"ds_read2_b32 {V(ra+2,2)}, v{vb} offset0:{o+2} offset1:{o+3}"))
        def issue1():
            k, t = q.pop(0); a(t); pend.append(k)
        def wait(cl, d):
            while any(k == (cl, d) for k, _ in q): issue1()
            if (cl, d) in pend:
                idx = max(i for i, k in enumerate(pend) if k == (cl, d))
                a(f"s_waitcnt lgkmcnt({len(pend) - 1 - idx})")
                del pend[:idx + 1]
        first = set(); n = [0]
        left = {T: (T + 1) * NC for T in range(8)}
        def export(T):
            a(f"ds_write_b128 v4, {V(32+4*T,4)} offset:{1024*T}"); pend.append("x")
        def mm(cl, p, qq):
            T = p + qq
            s.mfma(32 + 4*T, Areg[(cl, p)], Breg[(cl, qq)], None if T not in first else 32 + 4*T)
            first.add(T); n[0] += 1
            left[T] -= 1
            if left[T] == 0: exports.append((n[0] + 5, T))
            if q and len(pend) < 15: issue1()
            elif exports and exports[0][0] <= n[0] and len(pend) < 15: export(exports.pop(0)[1])
            elif filler:
                a(filler.pop(0))
                while filler and filler[0].startswith("s_"): a(filler.pop(0))
        todo = [(cl, d) for cl in range(NC) for d in range(8)]
        def refill():
            while todo and len(free) >= 2: assign(*todo.pop(0))
        refill()
        for _ in range(9): issue1()
        for cl in range(NC):
            for d in range(8):
                wait(cl, d)
                prs = [(d, j) for j in range(d) if d + j <= 7] + [(j, d) for j in range(d) if d + j <= 7]
                if 2*d <= 7: prs.append((d, d))
                if cl == NC - 1: prs.sort(key=lambda x: x[0] + x[1])
                for p, qq in prs: mm(cl, p, qq)
                if d >= 4:
                    for k in (7 - d, d):
                        free.append(Areg[(cl, k)]); free.append(Breg[(cl, k)])
                    refill()
        assert not todo and not q and not filler
        s.stamp(6); s.stamp("e6")
        for _, T in exports: export(T)
        a("L_tC:\ns_waitcnt lgkmcnt(0)")
        s.stamp("e7")
        a("s_barrier")
        s.stamp("e8")
        for qq in range(4): a(f"ds_read_b128 {V(64+8*qq,4)}, v5 offset:{XP[qq]}")
        for qq in range(4): a(f"ds_read_b32 v{100+qq}, v9 offset:{XP[qq]}")
        def add4(d, x):
            a(f"v_pk_add_f32 {V(d,2)}, {V(d,2)}, {V(x,2)}\nv_pk_add_f32 {V(d+2,2)}, {V(d+2,2)}, {V(x+2,2)}")
        a("s_waitcnt lgkmcnt(6)"); add4(64, 72)
        a("s_waitcnt lgkmcnt(4)"); add4(80, 88)
        for r in range(4): a(f"v_cvt_pk_bf16_f32 v{96+r}, v{64+r}, v{80+r}")
        a("""v_cndmask_b32 v99, v99, v11, s[56:57]
buffer_store_dwordx4 v[96:99], v6, s[32:35], s64 offen sc1
s_waitcnt lgkmcnt(0)""")
        s.hint_send("y", "s66", s.o.get("yw", 0))
        a("""v_add_f32 v100, v100, v101
v_add_f32 v102, v102, v103
v_cvt_pk_bf16_f32 v100, v100, v102
v_cndmask_b32 v100, v100, v11, s[62:63]
s_mov_b32 exec_hi, 0
buffer_store_dword v100, v10, s[32:35], s65 offen sc1
s_mov_b64 exec, -1""")
        s.stamp(7); s.stamp("e9")
    def table(s):
        T = tables.b_tables()
        buf = np.zeros(TB_SIZE // 4, np.uint32)
        for n, off in TB.items(): buf[off // 4: off // 4 + 256] = T[n].reshape(-1)
        out = [".p2align 8", ".type L_tbl,@object", "L_tbl:"]
        for i in range(0, len(buf), 8):
            out.append(".long " + ",".join(("0x%x" % x) if x else "0" for x in buf[i:i + 8]))
        out.append("L_tbl_end:")
        out.append(f".size L_tbl, {TB_SIZE}")
        return "\n".join(out)
    def build(s):
        a = s.a
        hdr = open("concat_heads__ssm_conv_s4d__spectral_gfnet__prompt.s.ref").read().split("; Override launch")[0]
        a.raw(hdr + f"; @launch grid=({NWG},1,1) block=(512,1,1) lds={LDS_BYTES}")
        a.raw(f'.amdgcn_target "amdgcn-amd-amdhsa--gfx950"\n.text\n.globl {KNAME}\n.p2align 8\n.type {KNAME},@function\n{KNAME}:')
        s.entry(); s.row_s1(); s.t_u(); s.column(); s.row_inv(); s.t_y(); s.a_path()
        a("L_exit:")
        s.stamp(9)
        s.stamp_flush()
        a("L_end:\ns_endpgm")
        a.raw(s.table())
        a.raw(f""".section .rodata,"a"
.p2align 6
.amdhsa_kernel {KNAME}
  .amdhsa_next_free_vgpr 128
  .amdhsa_next_free_sgpr 102
  .amdhsa_accum_offset 128
  .amdhsa_group_segment_fixed_size 0
  .amdhsa_kernarg_size 104
  .amdhsa_user_sgpr_count 2
  .amdhsa_user_sgpr_kernarg_segment_ptr 1
  .amdhsa_system_sgpr_workgroup_id_x 1
.end_amdhsa_kernel""")
        return a.text().replace("BPRIO", str(s.o.get("bp", 3))).replace("    REMAP\n", {0: "", 1: "    s_add_u32 s64, s2, 272\n    s_sub_u32 s2, s2, 224\n    s_cselect_b32 s2, s64, s2\n",
            2: "    s_add_u32 s64, s2, 128\n    s_sub_u32 s65, s2, 352\n    s_cmp_lt_u32 s2, 16\n    s_cselect_b32 s64, s2, s64\n    s_cmp_ge_u32 s2, 368\n    s_cselect_b32 s2, s65, s64\n"}[s.o.get("ord", 0)]).replace("    KSTAMP\n", "    s_memrealtime s[92:93]\n" if s.o.get("ks") else "").replace("    AONLY\n", "    s_endpgm\n" if s.o.get("aonly") else "").replace(" NTC", " nt" if s.o.get("ntc") else "").replace(" NTE", " nt" if s.o.get("nte") else "").replace(" NTP", " nt" if s.o.get("ntp") else "").replace(" NTF", " nt" if s.o.get("nt", 0) else "").replace(" NTW", " nt" if s.o.get("ntw", 0) else "").replace(" NTG", " nt" if s.o.get("ntg", 0) else "").replace(" OUTF", (" " + s.o.get("outf", "sc1")))
if __name__ == "__main__":
    out = sys.argv[1]; stamps = len(sys.argv) > 2 and sys.argv[2] == "1"
    opts = json.loads(sys.argv[3]) if len(sys.argv) > 3 else {}
    g = G(stamps, opts); t = g.build(); open(out, "w").write(t)
    print("lines", t.count("\n"), "bytes", len(t), "nops", g.a.nops)
```

```python
import sys, math, json
import numpy as np
from asmlib import Asm, f2h
import tables
KNAME = "concat_heads__ssm_conv_s4d__spectral_gfnet__prompt_kernel"
Z1, Z2, UT, YT, STAMP = 0x010000, 0x220000, 0x430000, 0x640000, 0x1000000
EPOCH = 0x630000
HB = {'z1': 0x900000, 'u': 0x980000, 'z2': 0xA00000, 'y': 0xA80000}; HP = {'z1': 128, 'u': 144, 'z2': 256, 'y': 224}
CB = {'z1': 0x900000, 'z2': 0x920000, 'y': 0x940000, 'u': 0x960000}; EARLY = ('z1', 'u'); CT_ = {'z1': 16, 'z2': 32, 'y': 28, 'u': 18}
PSTR = 9216
NR0, NT0, NA0, NWG = 16, 144, 272, 496
LDS_BYTES = 78336
SPIN_MAX = 200000
WV, BUF, RS = 9216, 4608, 288
KC, KCH = 3072, 3072
KB = 0x3F7F
ZS = 0x4502 - KB
KCP, CHK, UA, CHU = 9216, 8320, 69120, 4608
XP = [0, 43008, 51200, 59392]
TB = {n: 1024 * i for i, n in enumerate(["COS28", "NSIN28", "R2RE", "R2IM", "TWRC", "TWRS", "F8RE", "F8IM", "G8RE", "G8IM",
                                          "R2BRE", "R2BIM", "TWIC", "TWIS", "R1B0", "R1B1"])}
TB_SIZE = 16384
T1, EB, CT = 16896, 37376, 49664

def V(a, n=1): return f"v{a}" if n == 1 else f"v[{a}:{a+n-1}]"
def S(a, n=1): return f"s{a}" if n == 1 else f"s[{a}:{a+n-1}]"

class G:
    def __init__(s, stamps=False, opts=None):
        s.a = Asm(); s.stamps = stamps; s.o = opts or {}
    def stamp(s, i):
        if not s.stamps: return
        prof = s.o.get("prof")
        if prof:
            if isinstance(i, str):
                if i[:len(prof)] == prof: s.a(f"s_memtime {S(80+2*int(i[len(prof):]),2)}")
            return
        if isinstance(i, int): s.a(f"s_memrealtime {S(80+2*i,2)}")
    def stamp_flush(s):
        if not s.stamps: return
        a = s.a
        if s.o.get("dbg") == 2:
            a(f"""s_load_dwordx2 s[100:101], s[0:1], 88
s_waitcnt lgkmcnt(0) vmcnt(0)
s_cmp_lg_u32 s3, 0
s_cbranch_scc1 L_end
s_sub_u32 s64, s2, {NT0}
s_cmp_ge_u32 s64, 8
s_cbranch_scc1 L_end
s_lshl_b32 s64, s64, 2
v_mov_b32 v5, s64
v_mov_b32 v4, s80
global_store_dword v5, v4, s[100:101]
v_mov_b32 v4, s98
global_store_dword v5, v4, s[100:101] offset:32
s_waitcnt vmcnt(0)""")
            return
        if s.o.get("dbg"):
            a("""s_load_dwordx2 s[100:101], s[0:1], 88
s_waitcnt lgkmcnt(0) vmcnt(0)
s_mov_b64 exec, 1""")
            def mx(slot, sreg, inv=False):
                if inv: a(f"s_not_b32 s64, {sreg}"); sreg = "s64"
                a(f"v_mov_b32 v4, {sreg}\nv_mov_b32 v5, {4*slot}\nglobal_atomic_umax v5, v4, s[100:101] sc1")
            st = lambda i: f"s{80+2*i}"
            mx(0, st(0), True)
            a(f"s_cmp_ge_u32 s2, {NA0}\ns_cbranch_scc1 L_dA\ns_cmp_ge_u32 s2, {NT0}\ns_cbranch_scc1 L_dT\ns_cmp_lt_u32 s2, {NR0}\ns_cbranch_scc1 L_dE")
            for k, i in enumerate((0, 2, 3, 5, 9)): mx(1 + k, st(i))
            a("s_branch L_dE\nL_dT:")
            for k, i in enumerate((3, 6, 7, 9)): mx(6 + k, st(i))
            a("s_branch L_dE\nL_dA:")
            for k, i in enumerate((0, 2, 3, 5, 6, 7)): mx(10 + k, st(i))
            a("L_dE:\ns_waitcnt vmcnt(0)")
            return
        a("s_waitcnt lgkmcnt(0) vmcnt(0)")
        for i in range(10): a(f"v_mov_b32 v{4+i}, s{80+2*i}")
        a(f"""v_mov_b32 v14, 0
v_mov_b32 v15, s70
v_mov_b32 v2, 0
s_lshl_b32 s64, s2, 3
s_add_u32 s64, s64, s3
s_lshl_b32 s64, s64, 6
s_add_u32 s64, s64, {STAMP}
buffer_store_dwordx4 v[4:7], v2, s[32:35], s64 offen
buffer_store_dwordx4 v[8:11], v2, s[32:35], s64 offen offset:16
buffer_store_dwordx4 v[12:15], v2, s[32:35], s64 offen offset:32
s_waitcnt vmcnt(0)""")
    def srd(s, base, size):
        s.a(f"s_mov_b32 s{base+2}, {size}\ns_mov_b32 s{base+3}, 0x20000")
    def mfma(s, d, A, B, c=None):
        s.a(f"v_mfma_f32_16x16x32_bf16 {V(d,4)}, {V(A,4)}, {V(B,4)}, {'0' if c is None else V(c,4)}")
    def twiddle(s, dre, dim, co, si, P, conj, T=8, packed=False):
        a = s.a
        if packed:
            for h in (0, 2):
                a(f"v_pk_mul_f32 {V(T+h,2)}, {V(dim+h,2)}, {V(si+h,2)}")
                a(f"v_pk_mul_f32 {V(T+4+h,2)}, {V(dre+h,2)}, {V(si+h,2)}")
            for h in (0, 2):
                n = " neg_lo:[0,0,1] neg_hi:[0,0,1]"
                a(f"v_pk_fma_f32 {V(dre+h,2)}, {V(dre+h,2)}, {V(co+h,2)}, {V(T+h,2)}{n if conj else ''}")
                a(f"v_pk_fma_f32 {V(dim+h,2)}, {V(dim+h,2)}, {V(co+h,2)}, {V(T+4+h,2)}{'' if conj else n}")
        else:
            for r in range(4):
                a(f"v_mul_f32 v{T+r}, v{dim+r}, v{si+r}")
                a(f"v_mul_f32 v{T+4+r}, v{dre+r}, v{si+r}")
            for r in range(4):
                a(f"v_fma_f32 v{dre+r}, v{dre+r}, v{co+r}, {'-' if conj else ''}v{T+r}")
                a(f"v_fma_f32 v{dim+r}, v{dim+r}, v{co+r}, {'' if conj else '-'}v{T+4+r}")
        s.pack(dre, dim, P)
    def pack(s, dre, dim, P):
        for r in range(4): s.a(f"v_cvt_pk_bf16_f32 v{P[r]}, v{dre+r}, v{dim+r}")
    def sincos4(s, a0, step, co, si, T=8):
        a = s.a
        a(f"v_add_f32 v{T+1}, v{a0}, v{step}")
        a(f"v_fma_f32 v{T+2}, v{step}, 2.0, v{a0}")
        a(f"v_add_f32 v{T+3}, v{T+2}, v{step}")
        regs = [a0, T+1, T+2, T+3]
        for r in range(4):
            a(f"v_cos_f32 v{co+r}, v{regs[r]}")
            a(f"v_sin_f32 v{si+r}, v{regs[r]}")
    def tbl_srd(s):
        s.a("s_getpc_b64 s[36:37]")
        n = s.a.uid()
        s.a.raw(f"L_pc{n}:")
        s.a(f"s_add_u32 s36, s36, L_tbl-L_pc{n}\ns_addc_u32 s37, s37, 0")
        s.srd(36, TB_SIZE)
    def tload(s, items, vaddr, sbase=None):
        cur = None
        for r, off in items:
            b = off & ~4095
            if b != cur:
                if sbase is None: s.a(f"s_mov_b32 s61, {b}")
                else: s.a(f"s_add_u32 s61, {sbase}, {b}")
                cur = b
            s.a(f"buffer_load_dwordx4 {V(r,4)}, v{vaddr}, s[36:39], s61 offen offset:{off - b}")
        return len(items)
    def nonce_issue(s, vn):
        s.a(f"s_mov_b32 s61, {EPOCH}\nbuffer_load_dword v{vn}, off, s[32:35], s61 NTE")
    def nonce_get(s, vn):
        s.a(f"v_add_u32 v{vn}, 1, v{vn}\nv_readfirstlane_b32 s60, v{vn}")
    def spin(s, tag, sleep):
        s.a(f"""s_add_u32 s70, s70, 1
s_cmp_gt_u32 s70, {SPIN_MAX}
s_cbranch_scc1 L_exit
s_sleep {sleep}
s_branch L_poll_{tag}""")
    def gate_issue(s, tag, K, stride, off, sreg, vt, wave=0):
        s.a(f"""
v_mul_u32_u24 v{vt+1}, {stride}, v3
s_cmp_lg_u32 s3, {wave}
s_cbranch_scc1 L_gi_{tag}
v_mov_b32 v{vt}, 0
s_mov_b64 exec, {hex((1<<K)-1)}
buffer_atomic_or v{vt}, v{vt+1}, s[32:35], {sreg} offen offset:{off} sc0 sc1
s_mov_b64 exec, -1
L_gi_{tag}:""")
    def gate_wait(s, tag, K, stride, off, sreg, vt, wave=0, sentinel=False):
        a = s.a
        a(f"""
s_cmp_lg_u32 s3, {wave}
s_cbranch_scc1 L_gd_{tag}
s_mov_b64 exec, {hex((1<<K)-1)}
s_branch L_gc_{tag}
L_poll_g{tag}:
v_mov_b32 v{vt}, 0
buffer_atomic_or v{vt}, v{vt+1}, s[32:35], {sreg} offen offset:{off} sc0 sc1
L_gc_{tag}:
s_waitcnt vmcnt(0)
v_cmp_{'eq' if sentinel else 'ne'}_u32 vcc, {'-1' if sentinel else 's60'}, v{vt}
s_cbranch_vccz L_gok_{tag}""")
        s.spin("g" + tag, s.o.get("gsl", 1))
        a(f"""L_gok_{tag}:
s_mov_b64 exec, -1
L_gd_{tag}:""")
    def hint_send(s, e, preg, wave=0, tag=""):
        R = s.o.get("R", 16)
        s.a(f"""
s_cmp_lg_u32 s3, {wave}
s_cbranch_scc1 L_hs_{e}{tag}""")
        s.a(f"""s_and_b32 s61, {preg}, 7
s_lshl_b32 s61, s61, 10
s_add_u32 s61, s61, {CB[e]}
s_add_u32 s76, s32, s61
s_addc_u32 s77, s33, 0
s_mov_b32 s100, {63 if e in EARLY else 1}""")
        for r in range(R): s.a(f"s_atomic_{'inc' if e in EARLY else 'add'} s100, s[76:77], {hex(8192*r)}")
        s.a(f"L_hs_{e}{tag}:")
    def hint_fill(s, e, rreg, val, tag, op="swap"):
        s.a(f"""s_lshl_b32 s61, {rreg}, 13
s_add_u32 s61, s61, {CB[e]}
s_add_u32 s76, s32, s61
s_addc_u32 s77, s33, 0
s_mov_b32 s100, {val}""")
        for x in range(8): s.a(f"s_atomic_{op} s100, s[76:77], {hex(1024*x)}")
    def tlb_touch(s):
        if not s.o.get("touch", 0): return
        s.a(f"""s_cmp_lg_u32 s3, 1
s_cbranch_scc1 L_nt
v_min_u32 v8, 4, v3
v_mul_u32_u24 v8, {0x210000}, v8
buffer_load_dword v124, v8, s[32:35], 0 offen offset:64
v_and_b32 v8, 1, v3
v_mul_u32_u24 v8, {0x370000}, v8
global_load_dword v125, v8, s[24:25]
v_mov_b32 v8, 0
global_load_dword v126, v8, s[20:21]
global_load_dword v127, v8, s[22:23]
global_load_dword v123, v8, s[16:17]
L_nt:""")
    def hint_zero(s):
        s.tlb_touch()
        s.a("s_cmp_lg_u32 s3, 7\ns_cbranch_scc1 L_hz0")
        if s.o.get("ug", 0): s.hint_fill("u", "s2", 0, "d", "add")
        s.hint_fill("z1", "s2", 0, "c", "add")
        s.a("L_hz0:")
        s.a("s_cmp_lg_u32 s3, 6\ns_cbranch_scc1 L_hz1")
        s.hint_fill("z2", "s2", 0, "a")
        s.a("L_hz1:\ns_cmp_lg_u32 s3, 5\ns_cbranch_scc1 L_hz")
        s.hint_fill("y", "s2", 0, "b")
        s.a("L_hz:")
    def hint_rearm(s, e):
        s.a(f"s_cmp_ge_u32 s71, 16\ns_cbranch_scc1 L_ra_{e}\ns_cmp_lg_u32 s3, 1\ns_cbranch_scc1 L_ra_{e}")
        s.hint_fill(e, "s71", -1, "r")
        s.a(f"L_ra_{e}:")
    def g_wait(s, e, creg, wave=0):
        a = s.a
        R = s.o.get("R", 16); dl = s.o.get("dl", {}); tg = CT_[e]; sh = 1 if e in EARLY else 0
        a(f"""s_cmp_lg_u32 s3, {wave}
s_cbranch_scc1 L_hd_{e}
s_lshr_b32 s61, {creg}, 3
s_and_b32 s61, s61, {R-1}
s_lshl_b32 s61, s61, 13
s_add_u32 s61, s61, {CB[e]}
s_add_u32 s24, s32, s61
s_addc_u32 s25, s33, 0
s_mov_b32 s101, 0""")
        for k in range(8): a(f"s_mov_b32 s{72+k}, 0")
        if e == "z1" and dl.get("z1t"):
            a(f"s_cmp_ge_u32 s2, {NT0}\ns_cbranch_scc1 L_dlt\ns_sleep {dl.get('z1r', 0)}\ns_branch L_dlr\nL_dlt:\ns_sleep {dl['z1t']}\nL_dlr:")
        elif dl.get(e): a(f"s_sleep {dl[e]}")
        a(f"L_poll_h{e}:")
        for k in range(8):
            if sh: a(f"s_add_u32 s61, s{72+k}, 1\ns_lshr_b32 s61, s61, 1")
            a(f"""s_cmp_eq_u32 {'s61' if sh else 's%d' % (72+k)}, {tg >> sh}
s_cbranch_scc1 L_hp{k}_{e}
s_mov_b32 s{72+k}, 0
s_atomic_add s{72+k}, s[24:25], {hex(1024*k)} glc
L_hp{k}_{e}:""")
        a("s_add_u32 s101, s101, 1\ns_add_u32 s70, s70, 1\ns_waitcnt lgkmcnt(0)")
        a("s_mov_b32 s100, 0")
        for k in range(8):
            if sh: a(f"s_add_u32 s61, s{72+k}, 1\ns_lshr_b32 s61, s61, 1\ns_xor_b32 s61, s61, {tg >> 1}")
            else: a(f"s_xor_b32 s61, s{72+k}, {tg}")
            a("s_or_b32 s100, s100, s61")
        a(f"""s_cbranch_scc0 L_hd_{e}
s_sleep {s.o.get("gsl", 1)}
s_cmp_lt_u32 s101, {s.o.get("NF", 32)}
s_cbranch_scc1 L_poll_h{e}
L_hd_{e}:""")
    def w_sprefetch(s, tag):
        a = s.a
        a(f"""s_cmp_eq_u32 s3, 0
s_cbranch_scc1 L_sp_{tag}
s_mov_b32 s27, s3
L_sp1_{tag}:
s_lshl_b32 s61, s67, 3
s_add_u32 s61, s61, s27
s_lshl_b32 s61, s61, 4
s_add_u32 s61, s61, s66
s_mul_i32 s61, s61, 450
s_and_b32 s61, s61, -4
s_min_u32 s61, s61, {921600 - 452}
s_add_u32 s24, s48, s61
s_addc_u32 s25, s49, 0""")
        st = s.o.get("pst", 128)
        offs = list(range(0, 449, st)) + ([448] if 448 % st else [])
        for o in offs: a(f"s_load_dword s23, s[24:25], {o}")
        a("s_add_u32 s24, s52, s61\ns_addc_u32 s25, s53, 0")
        for o in offs: a(f"s_load_dword s23, s[24:25], {o}")
        a(f"""s_cmp_lg_u32 s27, 4
s_mov_b32 s27, 0
s_cbranch_scc0 L_sp1_{tag}
L_sp_{tag}:""")
    def check(s, tag, items):
        a = s.a
        m = [S(r, 2) for r in (72, 74, 76, 78, 48, 50, 52, 40)[:len(items)]]
        for mi, it in zip(m, items): a(f"v_cmp_ne_u32 {mi}, s60, v{it[0]}")
        same = len({it[4] for it in items}) == 1
        def merge(pre):
            if pre:
                for mi, it in zip(m, items): a(f"s_and_b64 {mi}, {mi}, {it[4]}")
            a(f"s_or_b64 vcc, {m[0]}, {m[1]}")
            for mi in m[2:]: a(f"s_or_b64 vcc, vcc, {mi}")
        if same:
            merge(False); a(f"s_and_b64 vcc, vcc, {items[0][4]}\ns_cbranch_scc0 L_got_{tag}")
            for mi, it in zip(m, items): a(f"s_and_b64 {mi}, {mi}, {it[4]}")
        else:
            merge(True); a(f"s_cbranch_scc0 L_got_{tag}")
        if s.o.get("aonly") or s.o.get("loud"):
            if s.o.get("aonly"): a(f"s_branch L_got_{tag}")
            else: s.spin(tag, s.o.get("sl", 4))
            a(f"L_got_{tag}:"); return
        a(f"""L_q_{tag}:
s_add_u32 s70, s70, 1
s_cmp_gt_u32 s70, {SPIN_MAX}
s_cbranch_scc1 L_exit""")
        for k, (mi, it) in enumerate(zip(m, items)):
            a(f"""s_mov_b64 exec, {mi}
s_cbranch_execz L_q{k}_{tag}
v_mov_b32 v{it[0]}, 0
buffer_atomic_or v{it[0]}, v{it[1]}, s[32:35], {it[2]} offen offset:{it[3]} sc0 sc1
L_q{k}_{tag}:""")
        a("s_mov_b64 exec, -1\ns_waitcnt vmcnt(0)")
        for mi, it in zip(m, items):
            a(f"v_cmp_ne_u32 vcc, s60, v{it[0]}\ns_and_b64 {mi}, {mi}, vcc")
        merge(False)
        a(f"""s_cbranch_scc0 L_poll_{tag}
s_sleep {s.o.get("qsl", 2)}
s_branch L_q_{tag}
L_got_{tag}:""")
    def gk(s, n):
        K = s.o.get("K", 8)
        st = (n - 1) // (K - 1) if K > 1 else 1
        if st % 2 == 0: st -= 1
        return K, 64 * st
    def lanes(s):
        s.a("""v_lshrrev_b32 v4, 6, v0
v_and_b32 v3, 63, v0
v_readfirstlane_b32 s3, v4
v_and_b32 v1, 15, v0
v_bfe_u32 v2, v0, 4, 2
s_mov_b32 s70, 0""")
    def prefetch(s, tag):
        if s.o.get("nopf"): return
        s.a(f"""
s_cmp_lg_u32 s3, 7
s_cbranch_scc1 L_nopf_{tag}
s_lshr_b32 s64, s2, 3
s_and_b32 s64, s64, 1
s_lshl_b32 s64, s64, 13
s_sub_u32 s74, s36, L_tbl-{KNAME}
s_subb_u32 s75, s37, 0
v_lshl_add_u32 v124, v3, 7, s64
v_min_u32 v124, L_tbl-{KNAME}-4, v124
global_load_dword v124, v124, s[74:75]
L_nopf_{tag}:""")

    def entry(s):
        a = s.a
        s.stamp(0); s.stamp("p0")
        if s.o.get("s0"): a(f"s_sleep {s.o['s0']}")
        a(f"""
s_load_dwordx16 s[4:19], s[0:1], 0
s_load_dwordx8 s[20:27], s[0:1], 64
s_load_dwordx2 s[32:33], s[0:1], 96
s_getpc_b64 s[36:37]
L_pc:
v_cmp_gt_u32 vcc, 8, v0
s_bfe_u32 s66, s2, 0x50003
s_lshl_b32 s66, s66, 10
s_and_saveexec_b64 s[64:65], vcc
s_cbranch_execz L_nopf
v_lshl_add_u32 v124, v0, 7, s66
v_min_u32 v124, L_tbl_end-L_pc-4, v124
{'s_nop 0' if s.o.get('nopf') else 'global_load_dword v124, v124, s[36:37] NTP'}    ; pull 1 KiB of the code into this XCD's L2 (speed only)
L_nopf:
s_mov_b64 exec, -1
s_cmp_ge_u32 s2, {NWG}
s_cbranch_scc1 L_end
REMAP
s_cmp_lt_u32 s2, {NA0}
s_cbranch_scc1 L_B
s_sub_u32 s66, s2, {NA0}           ; pair
s_lshl_b32 s64, s66, 10
v_lshl_add_u32 v24, v0, 1, s64
s_lshl_b32 s64, s66, 1
v_lshrrev_b32 v25, 8, v0
v_add_lshl_u32 v25, v25, s64, 1
s_waitcnt lgkmcnt(0)
KSTAMP
global_load_short_d16_hi v114, v25, s[14:15] NTF
global_load_short_d16_hi v4, v24, s[6:7] NTF
global_load_short_d16_hi v5, v24, s[8:9] NTF
global_load_short_d16_hi v6, v24, s[10:11] NTF
global_load_short_d16_hi v7, v24, s[12:13] NTF
s_branch L_A
L_B:
AONLY
v_lshrrev_b32 v4, 6, v0
v_and_b32 v3, 63, v0
v_readfirstlane_b32 s3, v4
v_lshlrev_b32 v7, 4, v3            ; lane*16
s_sub_u32 s58, s2, {NR0}
s_add_u32 s36, s36, L_tbl-L_pc
s_addc_u32 s37, s37, 0
s_mov_b32 s38, {TB_SIZE}
s_mov_b32 s39, 0x20000
s_mov_b32 s42, 1835008
s_mov_b32 s43, 0x20000
s_cmp_lt_u32 s58, 128
s_cbranch_scc0 L_pT
s_mov_b32 s71, s58
s_lshl_b32 s64, s3, 8
s_add_u32 s64, s64, s58
s_mov_b32 s66, {128*896}
s_lshl_b32 s65, s3, 11
s_movk_i32 s67, 1024
s_waitcnt lgkmcnt(0)
s_mov_b64 s[40:41], s[18:19]
s_branch L_pC
L_pT:
s_sub_u32 s71, s2, {NT0}
s_lshl_b32 s28, s71, 4             ; main blocks: rows 16*blk + j
s_lshl_b32 s64, s2, 7
s_add_u32 s64, s64, 15             ; leftover blocks: rows 128*b + 15 + 16j
s_add_u32 s65, s2, 128
s_cmp_lt_u32 s2, {NR0}
s_cselect_b32 s28, s64, s28
s_cselect_b32 s71, s65, s71
s_cselect_b32 s59, 16, 1
s_cselect_b32 s66, 0, {8*896}
s_mul_i32 s64, s59, s3
s_add_u32 s64, s64, s28
s_mul_i32 s65, s3, 1040
s_movk_i32 s67, {8*1040}
s_waitcnt lgkmcnt(0)
s_mov_b64 s[40:41], s[4:5]
L_pC:
KSTAMP
s_mul_i32 s64, s64, 896
s_mov_b32 m0, s65
s_add_u32 s66, s66, s64
buffer_load_dwordx4 v7, s[40:43], s64 offen NTF lds
s_add_u32 m0, s65, s67
buffer_load_dwordx4 v7, s[40:43], s66 offen NTF lds
s_mov_b32 s34, 0x10000000
s_mov_b32 s35, 0x20000
v_and_b32 v1, 15, v0
v_bfe_u32 v2, v0, 4, 2
s_mov_b32 s70, 0
""")
        s.stamp(1); s.stamp("p1")
        a("s_cmp_lt_u32 s58, 128\ns_cbranch_scc0 L_T")
    def cread(s, items):
        for r, n in items: s.a(f"ds_read_b128 {V(r,4)}, v7 offset:{CT + TB[n]}")
    def matrix(s, a0, step, re, im, conj):
        s.sincos4(a0, step, 96, 100)
        for j in range(4):
            s.a(f"v_cvt_pk_bf16_f32 v{re+j}, v{96+j}, {'-' if conj else ''}v{100+j}")
            s.a(f"v_cvt_pk_bf16_f32 v{im+j}, {'' if conj else '-'}v{100+j}, v{96+j}")
    def b0(s):
        a = s.a
        s.srd(44, 3670016); s.srd(48, 921600); s.srd(52, 921600)
        a(f"""
v_cmp_eq_u32 s[62:63], 15, v1
s_mov_b64 s[44:45], s[24:25]
s_mov_b64 s[48:49], s[20:21]
s_mov_b64 s[52:53], s[22:23]
s_and_b32 s66, s58, 15         ; f1
s_lshr_b32 s67, s58, 4         ; k2
v_lshlrev_b32 v10, 2, v1
v_lshl_add_u32 v24, v2, 19, v10    ; g*524288 + 4c
v_cvt_f32_u32 v4, v1
v_lshlrev_b32 v5, 2, v2
v_cvt_f32_u32 v5, v5
v_mul_f32 v4, {f2h(1/16)}, v4          ; c/16
""")
    def bw(s):
        s.a(f"""
s_mul_i32 s64, s67, 56
s_sub_u32 s65, 896, s64
s_cmp_lt_u32 s67, 8
s_cselect_b32 s64, s64, s65
s_cselect_b32 s65, 2, -2
v_and_b32 v8, 1, v2
v_lshrrev_b32 v9, 1, v2
v_mul_i32_i24 v6, s65, v1
v_mul_u32_u24 v10, {1024*450}, v8
v_mul_u32_u24 v11, {16*450}, v9
v_add_u32 v6, s64, v6
v_add3_u32 v6, v6, v10, v11
s_lshl_b32 s64, s3, 5
s_add_u32 s64, s64, s66
s_mul_i32 s68, s64, 450        ; W soffset r=0
""")
    def bc(s):
        a = s.a
        a(f"""
v_and_b32 v8, 1, v2
v_lshrrev_b32 v9, 1, v2
v_lshlrev_b32 v10, 2, v1
v_lshl_add_u32 v27, v2, 11, v10    ; Z1 poll: g*2048 + 4c
v_mul_u32_u24 v12, 48, v1
v_mul_u32_u24 v28, 3072, v2
s_lshl_b32 s64, s3, 2
s_add_u32 s64, s64, {EB}
v_add3_u32 v28, v28, v12, s64          ; E b32: 4g*768 + 48c + 4w
v_mul_u32_u24 v9, 768, v9
v_lshl_add_u32 v9, v8, 4, v9
s_mul_i32 s64, s3, 1536
s_add_u32 s64, s64, {EB}
v_add3_u32 v29, v9, v12, s64           ; E b128
v_cvt_f32_u32 v8, s3
v_mul_f32 v8, {f2h(1/8)}, v8           ; b/8
v_add_f32 v13, v5, v8
v_mul_f32 v13, v13, v4
v_fmamk_f32 v12, v8, {f2h(1/16)}, v4
""")
        s.matrix(13, 4, 64, 68, False)
        a("v_mul_f32 v13, v12, v5")
        s.matrix(13, 12, 72, 76, True)
    def w_prefetch(s, d):
        s.a(f"""
s_lshl_b32 s64, s67, 3
s_add_u32 s64, s64, s3
s_lshl_b32 s64, s64, 4
s_add_u32 s64, s64, s66
s_mul_i32 s64, s64, 450
v_lshlrev_b32 v8, 7, v3
v_min_u32 v8, 448, v8
buffer_load_ushort v{d}, v8, s[48:51], s64 offen NTW
buffer_load_ushort v{d+1}, v8, s[52:55], s64 offen NTW
""")
        return 2
    def w_early(s, tag):
        a = s.a
        a(f"s_cmp_eq_u32 s3, 0\ns_cbranch_scc1 L_we_{tag}")
        s.w_loads()
        a(f"s_cmp_lg_u32 s3, 1\ns_cbranch_scc1 L_we_{tag}\ns_mul_i32 s61, s66, 450")
        for r in range(4):
            a(f"buffer_load_ushort v{88+r}, v6, s[48:51], s61 offen NTG")
            a(f"buffer_load_ushort v{92+r}, v6, s[52:55], s61 offen NTG")
            if r < 3: a(f"s_add_u32 s61, s61, {256*450}")
        a(f"L_we_{tag}:")
    def w_loads(s):
        a = s.a
        if s.o.get("now"):
            for r in range(8): a(f"buffer_load_dword v{16+r}, off, s[36:39], 0")
            return
        for r in range(4):
            a(f"buffer_load_short_d16_hi v{16+r}, v6, s[48:51], s68 offen NTG")
            a(f"buffer_load_short_d16_hi v{20+r}, v6, s[52:55], s68 offen NTG")
            if r < 3: a(f"s_add_u32 s68, s68, {256*450}")
    def row_s1(s):
        a = s.a
        def late_loads():
            a(f"s_lshl_b32 s64, s3, 10\ns_add_u32 m0, s64, {CT}\nbuffer_load_dwordx4 v7, s[36:39], s64 offen lds")
            s.nonce_issue(31)
        if s.o.get("cpos", 1) == -1: late_loads()
        s.b0()
        if s.o.get("cpos", 1) == 0: late_loads()
        wp = s.o.get("wp", 5)
        if s.o.get("wg", 1) == 5:
            s.bw()
            if s.o.get("wd0"): a(f"s_sleep {s.o['wd0']}")
            s.w_loads()
        a(f"""
v_cvt_f32_u32 v8, s71
v_mul_f32 v8, {f2h(1/128)}, v8             ; sigma/128
v_add_f32 v13, v5, v8
v_mul_f32 v13, v13, v4
""")
        s.matrix(13, 4, 56, 60, False)
        if s.o.get("cpos", 1) == 1: late_loads()
        a(f"""
v_mul_u32_u24 v25, 5120, v2
v_mul_u32_u24 v8, 80, v1
s_lshl_b32 s64, s3, 3
s_add_u32 s64, s64, {T1}
v_add3_u32 v25, v25, v8, s64          ; T write: g*5120 + 80c + 8w
s_mul_i32 s64, s3, 2560
s_add_u32 s64, s64, {T1}
v_lshl_add_u32 v26, v2, 4, v8
v_add_u32 v26, s64, v26               ; T read: 2w*1280 + 80c + 16g
s_lshl_b32 s65, s3, 11
v_lshl_add_u32 v120, v3, 3, s65
""")
        if s.o.get("wg", 1) != 5: s.bw()
        if s.o.get("bce"): s.bc()
        if s.o.get("wd"): a(f"s_sleep {s.o['wd']}")
        if wp == 1: s.w_prefetch(94)
        s.stamp("p2")
        a(f"s_setprio BPRIO\ns_waitcnt vmcnt({8 if s.o.get('wg', 1) == 5 else (2 if wp < 2 else 0)})")
        s.stamp(2); s.stamp("s0"); s.stamp("p3")
        if s.o.get("stop"): a("s_branch L_exit")
        a("s_barrier")
        s.stamp("s1")
        pk = s.o.get("pk", True)
        a(f"""
ds_read_b64_tr_b16 v[96:97], v120
ds_read_b64_tr_b16 v[98:99], v120 offset:512
""")
        s.cread([(32, "COS28"), (36, "NSIN28")])
        a(f"""
ds_read_b64_tr_b16 v[100:101], v120 offset:1024
ds_read_b64_tr_b16 v[102:103], v120 offset:1536
""")
        s.cread([(48, "TWRC"), (52, "TWRS"), (40, "R2RE"), (44, "R2IM")])
        if s.o.get("wg", 1) == 0: s.w_loads()
        if wp == 3: s.w_prefetch(94)
        s.stamp("s2")
        s.nonce_get(31)
        a("s_waitcnt lgkmcnt(6)")
        s.mfma(104, 96, 32); s.mfma(108, 96, 36)
        a("s_waitcnt lgkmcnt(4)")
        s.mfma(112, 100, 32); s.mfma(116, 100, 36)
        a("s_waitcnt lgkmcnt(0)")
        s.stamp("s3")
        s.twiddle(104, 108, 48, 52, [96, 97, 98, 99], False, packed=pk)
        s.mfma(104, 40, 96); s.mfma(108, 44, 96)
        s.twiddle(112, 116, 48, 52, [100, 101, 102, 103], False, packed=pk)
        s.mfma(112, 40, 100); s.mfma(116, 44, 100)
        s.stamp("s4")
        s.pack(104, 108, [120, 122, 124, 126]); s.pack(112, 116, [121, 123, 125, 127])
        for r in range(4): a(f"ds_write_b64 v25, {V(120+2*r,2)} offset:{1280*r}")
        a(f"""
s_lshl_b32 s64, s71, 6
s_lshl_b32 s65, s3, 14
s_add_u32 s64, s64, s65            ; sigma*64 + 2w*8192
s_waitcnt lgkmcnt(0)""")
        s.stamp("s5")
        a("s_barrier")
        s.stamp("s6")
        a(f"""
ds_read_b128 v[96:99], v26
ds_read_b128 v[100:103], v26 offset:1280
s_waitcnt lgkmcnt(1)
""")
        s.mfma(104, 56, 96); s.mfma(108, 60, 96)
        a("s_waitcnt lgkmcnt(0)")
        s.mfma(112, 56, 100); s.mfma(116, 60, 100)
        if s.o.get("hp", 0) == 0: s.hint_send("z1", "s71", s.o.get("hw", 0))
        s.stamp("s7")
        for t, (dr, di, P) in enumerate(((104, 108, 120), (112, 116, 124))):
            s.pack(dr, di, [P, P+1, P+2, P+3])
            for r in range(4): a(f"v_cndmask_b32 v{P+r}, v{P+r}, v31, s[62:63]")
            for r in range(4):
                a(f"s_add_u32 s65, s64, {Z1 + t*8192 + r*131072}")
                a(f"buffer_store_dword v{P+r}, v24, s[32:35], s65 offen sc1")
        if s.o.get("hp", 0) == 1: s.hint_send("z1", "s71", s.o.get("hw", 0))
        s.stamp(3); s.stamp("s8")
        s.z1_gate_issue("r")
        a(f"""s_barrier
s_lshl_b32 s64, s3, 10
s_add_u32 s64, s64, 8192
s_add_u32 m0, s64, {CT}
buffer_load_dwordx4 v7, s[36:39], s64 offen lds""")
        if s.o.get("wg", 1) == 1: s.w_loads()
        if s.o.get("wg", 1) == 3: s.w_early("r")
        if wp == 4: s.w_prefetch(94)
        if wp == 6: s.w_sprefetch("r")
        if not s.o.get("bce"):
            a("s_setprio 0"); s.bc(); a("s_setprio BPRIO")
        a("s_branch L_col")
    def z1_gate_issue(s, tag):
        s.a(f"""
s_lshl_b32 s64, s66, 4
s_add_u32 s64, s64, s67
s_lshl_b32 s64, s64, 13
s_lshl_b32 s65, s3, 6
s_add_u32 s69, s64, s65
s_add_u32 s69, s69, {Z1}           ; Z1 + unit*8192 + w*64
""")
    def t_u(s):
        a = s.a
        a(f"L_T:\ns_cmp_ge_u32 s2, {NR0}\ns_cbranch_scc1 L_hz")
        s.hint_zero()
        a(f"""
v_and_b32 v10, 3, v3
v_lshrrev_b32 v11, 2, v3
v_cmp_eq_u32 s[56:57], 3, v10
v_mul_u32_u24 v120, 4160, v10
v_lshl_add_u32 v120, v11, 2, v120
s_lshl_b32 s64, s3, 6
v_add_u32 v120, s64, v120          ; LDS: 4160e + 4q + 64w
v_mul_u32_u24 v121, {PSTR}, v11
v_lshl_add_u32 v121, v10, 4, v121  ; q*PSTR + 16e
""")
        s.b0(); s.nonce_issue(31); s.bw()
        if s.o.get("wg", 1) == 5:
            if s.o.get("wd0"): a(f"s_sleep {s.o['wd0']}")
            s.w_loads()
        if s.o.get("tce", 1): s.bc()
        wp = s.o.get("wp", 5)
        if s.o.get("wdt"): a(f"s_sleep {s.o['wdt']}")
        if wp < 2: s.w_prefetch(62)
        a(f"""
s_mul_i32 s64, s3, {16*PSTR}
s_lshl_b32 s65, s71, 6
s_add_u32 s64, s64, s65
s_add_u32 s64, s64, {UT}
s_add_u32 s65, s64, {128*PSTR}
""")
        s.stamp("p2")
        a(f"s_setprio BPRIO\ns_waitcnt vmcnt({8 if s.o.get('wg', 1) == 5 else (2 if wp < 2 else 0)})")
        s.stamp(2); s.stamp("p3")
        if s.o.get("stop"): a("s_branch L_exit")
        a("s_barrier")
        for k in range(2):
            for i in range(4): a(f"ds_read_b32 v{96+4*k+i}, v120 offset:{1040*i + 512*k}")
        s.nonce_get(31)
        a(f"""
s_waitcnt lgkmcnt(4)
v_cndmask_b32 v99, v99, v31, s[56:57]
buffer_store_dwordx4 v[96:99], v121, s[32:35], s64 offen sc1
s_cmp_ge_u32 s3, 6
s_cbranch_scc1 L_T_p2
s_waitcnt lgkmcnt(0)
v_cndmask_b32 v103, v103, v31, s[56:57]
buffer_store_dwordx4 v[100:103], v121, s[32:35], s65 offen sc1
L_T_p2:
""")
        if s.o.get("ug", 0): s.hint_send("u", "s71", s.o.get("uw", 7))
        s.stamp(3)
        if s.o.get("tfe", 0): s.t_prep(); a("s_setprio BPRIO")
        a(f"""
s_cmp_lt_u32 s2, {NR0}
s_cbranch_scc1 L_Ty
""")
        s.z1_gate_issue("t")
        a(f"s_and_b32 s64, s3, 3\ns_lshl_b32 s64, s64, 10\ns_add_u32 s64, s64, {TB['F8RE']}\ns_add_u32 m0, s64, {CT}\nbuffer_load_dwordx4 v7, s[36:39], s64 offen lds")
        if wp in (3, 4): s.w_prefetch(62)
        if wp == 6: s.w_sprefetch("t")
        if wp == 5:
            a(f"""
s_barrier
s_sub_u32 s65, s3, 1
s_cmp_ge_u32 s65, 4
s_cbranch_scc1 L_nwp
s_sub_u32 s64, s67, 8
s_lshl_b32 s64, s64, 2
s_add_u32 s64, s64, s65
s_lshl_b32 s64, s64, 6
s_add_u32 s64, s64, s66
s_mul_i32 s64, s64, 450
v_lshlrev_b32 v8, 7, v1
v_min_u32 v8, 448, v8
v_mul_u32_u24 v9, {16*450}, v2
v_add_u32 v8, v8, v9
buffer_load_ushort v60, v8, s[48:51], s64 offen NTW
buffer_load_ushort v61, v8, s[52:55], s64 offen NTW
L_nwp:
""")
        if s.o.get("wg", 1) < 2:
            a("s_barrier")
            s.w_loads()
        if s.o.get("wg", 1) == 3:
            a("s_barrier")
            s.w_early("t")
        if not s.o.get("tce", 1):
            a("s_setprio 0"); s.bc(); a("s_setprio BPRIO")
    def column(s):
        a = s.a
        a(f"L_col:\ns_setprio {s.o.get('pcol', 2)}")
        s.stamp(4)
        s.g_wait("z1", "s58")
        if s.o.get("zs") == 1: s.stamp(7)
        wg = s.o.get("wg", 1)
        a(f"s_waitcnt vmcnt({8 if wg == 1 else 0})\ns_barrier")
        if s.o.get("zs") == 1: s.stamp(1)
        def zl():
            for j in range(4): a(f"buffer_load_dword v{96+j}, v27, s[32:35], s69 offen offset:{512*j} sc1")
        zl()
        if wg == 2: s.w_loads()
        if wg == 3:
            a("s_cmp_lg_u32 s3, 0\ns_cbranch_scc1 L_wl0"); s.w_loads(); a("s_waitcnt vmcnt(8)\ns_branch L_wl1\nL_wl0:\ns_waitcnt vmcnt(0)\nL_wl1:")
        s.cread([(32, "F8RE"), (36, "F8IM"), (40, "G8RE"), (44, "G8IM")])
        if wg != 3: a(f"s_waitcnt vmcnt({8 if wg == 2 else 0})")
        if s.o.get("zs") == 1: s.stamp(2)
        a("s_branch L_chk_z1\nL_poll_z1:")
        zl()
        a("s_waitcnt vmcnt(0)\nL_chk_z1:")
        s.check("z1", [(96 + j, 27, "s69", 512 * j, "s[62:63]") for j in range(4)])
        s.stamp(5)
        s.mfma(104, 64, 96); s.mfma(108, 68, 96)
        s.pack(104, 108, [120, 121, 122, 123])
        for r in range(4): a(f"ds_write_b32 v28, v{120+r} offset:{768*r}")
        a("s_waitcnt lgkmcnt(0)\ns_barrier\nds_read_b128 v[96:99], v29\ns_waitcnt lgkmcnt(0)")
        s.mfma(104, 32, 96); s.mfma(108, 36, 96)
        a("s_waitcnt vmcnt(0)")
        s.twiddle(104, 108, 16, 20, [96, 97, 98, 99], True)
        s.mfma(104, 40, 96); s.mfma(108, 44, 96)
        s.pack(104, 108, [120, 121, 122, 123])
        a("ds_write_b128 v29, v[120:123]\ns_waitcnt lgkmcnt(0)\ns_barrier")
        for j in range(4): a(f"ds_read_b32 v{96+j}, v28 offset:{768*j}")

        a(f"""
s_lshl_b32 s64, s3, 14
s_lshl_b32 s65, s67, 10
s_add_u32 s64, s64, s65
s_lshl_b32 s65, s66, 6
s_add_u32 s64, s64, s65
s_waitcnt lgkmcnt(0)
""")
        s.mfma(104, 72, 96); s.mfma(108, 76, 96)
        if s.o.get("hp", 0) == 0: s.hint_send("z2", "s58", s.o.get("hw", 0))
        s.pack(104, 108, [120, 121, 122, 123])
        for r in range(4): a(f"v_cndmask_b32 v{120+r}, v{120+r}, v31, s[62:63]")
        for r in range(4):
            a(f"s_add_u32 s65, s64, {Z2 + r*131072}")
            a(f"buffer_store_dword v{120+r}, v24, s[32:35], s65 offen sc1")
        if s.o.get("hp", 0) == 1: s.hint_send("z2", "s58", s.o.get("hw", 0))
        s.stamp(6)
        a(f"s_cmp_ge_u32 s2, {NT0}\ns_cbranch_scc1 L_Ty")
    def row_inv(s):
        a = s.a
        a(f"s_setprio {s.o.get('pinv', 3)}")
        a(f"""
s_lshl_b32 s64, s71, 14
s_lshl_b32 s65, s3, 11
s_add_u32 s69, s64, s65
s_add_u32 s69, s69, {Z2}
""")
        s.cread([(32, "R2BRE"), (36, "R2BIM"), (40, "TWIC"), (44, "TWIS"), (48, "R1B0"), (52, "R1B1")])
        a(f"""
v_cvt_f32_u32 v8, s71
v_fmamk_f32 v12, v8, {f2h(1/2048)}, v4
v_mul_f32 v13, v12, v5
""")
        s.matrix(13, 12, 80, 84, True)
        a(f"""
v_and_b32 v10, 1, v2
v_lshl_add_u32 v11, v10, 4, v1        ; n1 = c + 16(g&1)
v_lshlrev_b32 v30, 5, v11
v_lshrrev_b32 v12, 1, v2
v_lshl_add_u32 v30, v12, 4, v30
v_cmp_lt_u32 vcc, 27, v11
v_mov_b32 v12, 0x10000000
v_cndmask_b32 v30, v30, v12, vcc
v_lshlrev_b32 v5, 8, v2
v_lshl_add_u32 v5, v1, 2, v5
v_cmp_eq_u32 s[28:29], 3, v2
""")
        s.g_wait("z2", "s71")
        a("s_waitcnt lgkmcnt(0)\ns_barrier\nL_poll_z2:")
        for t in range(2):
            for j in range(4): a(f"buffer_load_dword v{96+4*t+j}, v5, s[32:35], s69 offen offset:{1024*t+64*j} sc1")
        a("s_waitcnt vmcnt(0)")
        s.check("z2", [(96 + 4 * t + j, 5, "s69", 1024 * t + 64 * j, "s[62:63]") for t in range(2) for j in range(4)])
        if s.o.get("zs") != 1: s.stamp(7)
        if s.o.get("sb"): a(f"s_sleep {s.o['sb']}")
        pk = s.o.get("pk2", True)
        s.mfma(104, 80, 96); s.mfma(108, 84, 96); s.mfma(112, 80, 100); s.mfma(116, 84, 100)
        s.pack(104, 108, [120, 122, 124, 126]); s.pack(112, 116, [121, 123, 125, 127])
        for r in range(4): a(f"ds_write_b64 v25, {V(120+2*r,2)} offset:{1280*r}")
        a(f"""
s_lshl_b32 s64, s3, 8
s_add_u32 s64, s64, s71
s_mul_i32 s64, s64, 1792
s_add_u32 s64, s64, 896
s_add_u32 s65, s64, {128*1792}
s_waitcnt lgkmcnt(0)
s_barrier
ds_read_b128 v[96:99], v26
ds_read_b128 v[100:103], v26 offset:1280
s_waitcnt lgkmcnt(1)
""")
        s.mfma(104, 96, 32); s.mfma(108, 96, 36)
        a("s_waitcnt lgkmcnt(0)")
        s.mfma(112, 100, 32); s.mfma(116, 100, 36)
        s.twiddle(104, 108, 40, 44, [96, 97, 98, 99], True, packed=pk)
        a("v_cndmask_b32_e64 v99, v99, 0, s[28:29]")
        s.mfma(104, 96, 48); s.mfma(108, 96, 52)
        s.twiddle(112, 116, 40, 44, [100, 101, 102, 103], True, packed=pk)
        a("v_cndmask_b32_e64 v103, v103, 0, s[28:29]")
        s.mfma(112, 100, 48); s.mfma(116, 100, 52)
        for t, (d0, d1, P, so) in enumerate(((104, 108, 120, "s64"), (112, 116, 124, "s65"))):
            a(f"""v_cvt_pk_bf16_f32 v{P}, v{d0}, v{d0+1}
v_cvt_pk_bf16_f32 v{P+1}, v{d0+2}, v{d0+3}
v_cvt_pk_bf16_f32 v{P+2}, v{d1}, v{d1+1}
v_cvt_pk_bf16_f32 v{P+3}, v{d1+2}, v{d1+3}
v_permlane16_swap_b32 v{P}, v{P+2}
v_permlane16_swap_b32 v{P+1}, v{P+3}
buffer_store_dwordx4 {V(P,4)}, v30, s[44:47], {so} offen OUTF""")
        s.hint_rearm("z1")
        s.stamp(8)
        a("s_branch L_exit")
    def t_prep(s):
        a = s.a
        a(f"""
s_setprio 0
s_mul_i32 s29, s71, 14336
s_add_u32 s29, s29, {YT}
s_mul_i32 s72, s59, 1792
s_movk_i32 s73, 840
s_cmp_eq_u32 s59, 1
s_cselect_b32 s59, s73, 448
s_mul_i32 s28, s28, 1792
v_mul_u32_u24 v8, {(1<<20)//56+1}, v0
v_lshrrev_b32 v8, 20, v8
v_mul_u32_u24 v9, 56, v8
v_sub_u32 v9, v0, v9               ; grp0
v_add_u32 v10, 512, v0
v_mul_u32_u24 v11, {(1<<20)//56+1}, v10
v_lshrrev_b32 v11, 20, v11         ; row1
v_mul_u32_u24 v12, 56, v11
v_sub_u32 v12, v10, v12            ; grp1
v_lshlrev_b32 v9, 4, v9
v_lshlrev_b32 v12, 4, v12
global_load_dwordx4 v[112:115], v9, s[16:17]
global_load_dwordx4 v[116:119], v12, s[16:17]
v_min_u32 v11, 15, v11
v_mul_u32_u24 v25, 912, v8
v_add_u32 v25, v25, v9
v_mul_u32_u24 v26, 912, v11
v_add_u32 v26, v26, v12
v_lshl_add_u32 v104, v8, 7, v25
v_lshl_add_u32 v108, v11, 7, v26
ds_read_b128 v[104:107], v104
ds_read_b128 v[108:111], v108
v_mul_u32_u24 v48, s72, v8
v_add_u32 v48, v48, v9
v_mul_u32_u24 v49, s72, v11
v_add_u32 v49, v49, v12
v_mov_b32 v13, 0x10000000
v_cmp_gt_u32 vcc, s59, v0
v_cndmask_b32 v48, v13, v48, vcc
v_cmp_gt_u32 vcc, s59, v10
v_cndmask_b32 v49, v13, v49, vcc
v_and_b32 v10, 3, v0
v_mul_u32_u24 v10, 3648, v10
v_and_b32 v11, 0xfffffffc, v0
v_add_u32 v50, v10, v11
v_lshlrev_b32 v30, 4, v0           ; tid*16
v_cmp_gt_u32 vcc, 384, v0
s_mov_b64 s[30:31], vcc
s_waitcnt vmcnt(0) lgkmcnt(0)
""")
        for it in range(2):
            for j in range(4):
                u, d, o = 104 + 4*it + j, 112 + 4*it + j, 80 + 8*it + 2*j
                a(f"""v_lshlrev_b32 v8, 16, v{u}
v_lshlrev_b32 v9, 16, v{d}
v_and_b32 v10, 0xffff0000, v{u}
v_and_b32 v11, 0xffff0000, v{d}
v_mul_f32 v8, v8, v9
v_mul_f32 v10, v10, v11
v_cvt_pk_bf16_f32 v8, v8, v10
v_lshlrev_b32 v{o}, 16, v8
v_and_b32 v{o+1}, 0xffff0000, v8""")
    def t_y(s):
        a = s.a
        a("L_Ty:")
        if not s.o.get("tfe", 0): s.t_prep()
        a("s_add_u32 s64, s29, 8192\nv_mov_b32 v103, v31")
        a("s_setprio BPRIO")
        s.g_wait("y", "s71")
        a(f"""
s_barrier
L_poll_y:
buffer_load_dwordx4 v[96:99], v30, s[32:35], s29 offen sc1
s_mov_b64 exec, s[30:31]
s_cbranch_execz L_y1
buffer_load_dwordx4 v[100:103], v30, s[32:35], s64 offen sc1
L_y1:
s_mov_b64 exec, -1
s_waitcnt vmcnt(0)
""")
        s.check("y", [(99, 30, "s29", 12, "s[56:57]"), (103, 30, "s64", 12, "s[56:57]")])
        if s.o.get("zs") != 1: s.stamp(7)
        for r in range(4): a(f"ds_write_b32 v50, v{96+r} offset:{912*r}")
        a("s_mov_b64 exec, s[30:31]")
        for r in range(4): a(f"ds_write_b32 v50, v{100+r} offset:{912*r+512}")
        a(f"""
s_mov_b64 exec, -1
s_waitcnt lgkmcnt(0)
s_barrier
ds_read_b128 v[96:99], v25
ds_read_b128 v[100:103], v26
""")
        for it in range(2):
            a(f"s_waitcnt lgkmcnt({1-it})")
            for j in range(4):
                y = 96 + 4*it + j
                a(f"v_lshlrev_b32 v{8+2*j}, 16, v{y}\nv_and_b32 v{9+2*j}, 0xffff0000, v{y}")
            for j in range(4): a(f"v_pk_add_f32 {V(8+2*j,2)}, {V(8+2*j,2)}, {V(80+8*it+2*j,2)}")
            for j in range(4): a(f"v_cvt_pk_bf16_f32 v{104+4*it+j}, v{8+2*j}, v{9+2*j}")
            a(f"buffer_store_dwordx4 {V(104+4*it,4)}, v{48+it}, s[44:47], s28 offen OUTF")
        a(f"""
s_add_u32 s64, s71, s3
s_cmp_lg_u32 s64, 0
s_cbranch_scc1 L_noep
s_mov_b32 s61, {EPOCH}
s_mov_b64 exec, 1
buffer_store_dword v31, off, s[32:35], s61
s_mov_b64 exec, -1
L_noep:""")
        if s.o.get("ug", 0): s.hint_rearm("u")
        s.stamp(8)
        a("s_branch L_exit")
    def cmuls(s, lst):
        for d, x, e, t in lst:
            s.a(f"v_pk_mul_f32 {V(t,2)}, {V(x,2)}, {V(e,2)} op_sel:[1,1] op_sel_hi:[1,0] neg_lo:[1,0]")
        for d, x, e, t in lst:
            s.a(f"v_pk_fma_f32 {V(d,2)}, {V(x,2)}, {V(e,2)}, {V(t,2)} op_sel_hi:[0,1,1]")
    def exp2_bf16(s, pairs):
        L_HI = 1.4426950216293335; L_LO = 1.4426950408889634 - L_HI
        for fmt in (f"v_mul_f32 v{{t}}, {f2h(L_HI)}, v{{x}}", "v_exp_f32 v{d}, v{t}", "v_fma_f32 v{u}, v{x}, s71, -v{t}",
                    f"v_fmac_f32 v{{u}}, {f2h(L_LO)}, v{{x}}", f"v_mul_f32 v{{u}}, {f2h(math.log(2))}, v{{u}}",
                    "v_fma_f32 v{d}, v{d}, v{u}, v{d}", "v_cvt_pk_bf16_f32 v{d}, v{d}, v{d}", "v_and_b32 v{d}, 0xffff0000, v{d}"):
            for d, x, t in pairs: s.a(fmt.format(d=d, x=x, t=t, u=t + 1))
    def a_path(s):
        a = s.a
        a("L_A:")
        if s.o.get("ap", 1): a(f"s_setprio {s.o.get('ap', 1)}")
        s.stamp(1); s.stamp("p1")
        s.a("v_lshrrev_b32 v32, 6, v0\nv_and_b32 v3, 63, v0\nv_readfirstlane_b32 s3, v32\nv_and_b32 v1, 15, v0\nv_bfe_u32 v2, v0, 4, 2\ns_mov_b32 s70, 0")
        s.srd(32, "0x10000000")
        s.nonce_issue(115)
        a(f"""
s_lshr_b32 s67, s3, 2              ; ch
s_and_b32 s68, s3, 3               ; q4
v_lshlrev_b32 v25, 4, v3           ; 16*lane
""")
        nl = 1
        def addr_pairs(fl, dst):
            for i in range(0, len(fl), 2):
                a(f"v_cvt_pk_bf16_f32 v{fl[i]}, v{fl[i]}, v{fl[min(i+1, len(fl)-1)]}")
            for i in range(0, len(fl), 2):
                a(f"v_lshlrev_b32 v{fl[i]}, 1, v{fl[i]}")
            for i in range(len(fl)):
                a(f"v_add_u32_sdwa v{dst[i]}, s64, v{fl[i & ~1]} dst_sel:DWORD dst_unused:UNUSED_PAD src0_sel:DWORD src1_sel:WORD_{i & 1}")
        def AG():
            a(f"""
s_mul_i32 s72, s67, {KCH}
s_add_u32 s72, s72, {KC}
s_sub_u32 s64, s72, {2*KB}
v_and_b32 v33, 255, v0
v_lshlrev_b32 v33, 3, v33
v_sub_u32 v33, 2047, v33
v_cvt_f32_i32 v40, v33             ; lag of element 0
""")
            for e in range(1, 9):
                a(f"v_add_f32 v{40+e}, {f2h(-float(e))}, v40")
            a(f"v_mov_b32 v34, {f2h(2064.0)}")
            for e in (8,):
                a(f"v_cmp_gt_f32 vcc, 0, v{40+e}\nv_cndmask_b32 v{40+e}, v{40+e}, v34, vcc")
            addr_pairs(list(range(40, 49)), list(range(8, 17)))
            a("v_max_i32 v15, s72, v15")
        def AS():
            a(f"""
s_mul_i32 s72, s67, {KCH}
s_add_u32 s72, s72, {KC}
s_sub_u32 s64, s72, {2*KB}
""")
            a(f"""
v_lshrrev_b32 v34, 1, v2           ; g>>1
v_and_b32 v35, 1, v2               ; g&1
s_cmp_eq_u32 s68, 1
s_cbranch_scc1 L_sc1
s_cmp_eq_u32 s68, 2
s_cbranch_scc1 L_sc2
v_lshlrev_b32 v36, 7, v34
v_lshl_add_u32 v36, v35, 2, v36    ; 128(g>>1) + 4(g&1) + r
v_mov_b32 v37, 1
v_mov_b32 v38, 2
s_branch L_scd
L_sc1:
v_lshlrev_b32 v36, 7, v2
v_add_u32 v36, 256, v36            ; g<2: 256+128g + 2r
v_lshlrev_b32 v37, 8, v2           ; g>=2: 256g + 128(r>>1) + 4(r&1)
v_cmp_lt_u32 vcc, 1, v2
v_cndmask_b32 v36, v36, v37, vcc
v_cndmask_b32_e64 v37, 2, 4, vcc
v_mov_b32 v38, 128
v_cndmask_b32 v38, 4, v38, vcc
s_branch L_scd
L_sc2:
v_lshlrev_b32 v36, 9, v2
v_add_u32 v36, 1024, v36           ; 1024 + 128(4g+r)
v_mov_b32 v37, 128
v_mov_b32 v38, 256
L_scd:
v_lshl_add_u32 v36, v1, 3, v36
v_add_u32 v37, v36, v37
v_sub_u32 v39, v37, v36
v_add_u32 v38, v36, v38
v_add_u32 v39, v38, v39
v_mov_b32 v34, 2080
v_cmp_lt_u32 vcc, 2048, v36
v_cndmask_b32 v36, v36, v34, vcc
v_cmp_lt_u32 vcc, 2048, v37
v_cndmask_b32 v37, v37, v34, vcc
v_cmp_lt_u32 vcc, 2048, v38
v_cndmask_b32 v38, v38, v34, vcc
v_cmp_lt_u32 vcc, 2048, v39
v_cndmask_b32 v39, v39, v34, vcc
v_cvt_f32_u32 v40, v36
v_cvt_f32_u32 v41, v37
v_cvt_f32_u32 v42, v38
v_cvt_f32_u32 v43, v39
""")
            addr_pairs([40, 41, 42, 43], [20, 21, 22, 23])
            a("v_max_i32 v20, s72, v20")
        def AC():
            a(f"""
v_cmp_eq_u32 s[62:63], 15, v1
s_mul_i32 s69, s67, {CHK}
s_add_u32 s64, s69, {KCP}
v_and_b32 v26, 255, v0
v_lshl_add_u32 v26, v26, 4, s64
v_add_u32 v34, 1, v1
v_and_b32 v34, 1, v34              ; s = (i+1)&1
v_mul_u32_u24 v35, 4158, v34       ; s*4160 - 2s
v_lshlrev_b32 v36, 4, v2
v_lshlrev_b32 v37, 1, v1
v_sub_u32 v36, v36, v37            ; 16g - 2i
s_bfe_u32 s73, s3, 0x10001
s_and_b32 s64, s3, 1
s_lshl_b32 s64, s64, 8              ; 64*4h
s_mul_i32 s65, s73, {CHK}
s_sub_u32 s65, s65, s64
s_add_u32 s72, s65, {KCP + 2*2031 - 192 - 512*7}
v_add3_u32 v27, v35, v36, s72      ; vA
v_add_u32 v17, 1024, v27
v_add_u32 v18, 2048, v27
v_add_u32 v19, 3072, v27
v_lshlrev_b32 v28, 5, v1
v_lshl_add_u32 v28, v2, 4, v28
s_mul_i32 s72, s73, {CHU}
s_sub_u32 s72, s72, s64
s_add_u32 s72, s72, {UA + 448 - 192}
v_add_u32 v28, s72, v28            ; vB
s_lshl_b32 s64, s3, 9
s_add_u32 s64, s64, {UA + 480}
v_lshl_add_u32 v30, v3, 3, s64
v_and_b32 v34, 3, v3
v_cmp_eq_u32 s[28:29], 3, v34
v_cmp_gt_u32 s[30:31], 2, v34
v_lshrrev_b32 v35, 2, v3
v_lshlrev_b32 v35, 8, v35
v_lshl_add_u32 v35, v34, 7, v35
v_add_u32 v113, {UA + 480 + 30}, v35
s_mul_i32 s58, s66, {PSTR}
s_add_u32 s58, s58, {UT}
s_lshl_b32 s64, s3, 10
s_add_u32 s57, s58, s64
s_add_u32 s55, s58, 8192
s_cmp_eq_u32 s3, 7
s_cselect_b64 s[52:53], s[28:29], 0
s_mov_b32 s50, 0x05040100
s_mov_b32 s51, 0x07060302
""")
        a(f"""
s_mul_i32 s59, s3, {WV}
v_mul_u32_u24 v24, {RS}, v1
v_lshl_add_u32 v24, v2, 4, v24
v_add_u32 v24, s59, v24
s_mov_b32 s71, {f2h(1.4426950216293335)}
s_mov_b32 m0, s59
""")
        def uloads():
            u = a.uid()
            a(f"""buffer_load_dwordx4 v[116:119], v25, s[32:35], s57 offen sc1
s_cmp_lg_u32 s3, 7
s_cbranch_scc1 L_ul{u}
buffer_load_dwordx4 v[120:123], v25, s[32:35], s55 offen sc1
L_ul{u}:""")
        early = s.o.get("ae", "SGC")
        for ch in early: {"S": AS, "G": AG, "C": AC}[ch]()
        s.stamp("p2")
        a(f"s_waitcnt vmcnt({nl})")
        s.stamp("p3")
        a("s_cmp_lg_u32 s3, 7\ns_cbranch_scc1 L_a_w\ns_waitcnt vmcnt(5)\nL_a_w:") if False else None
        if s.o.get("bal", 1): a(f"s_cmp_eq_u32 s67, 0\ns_cbranch_scc1 L_bal0\ns_setprio {s.o.get('ap', 1) + 1}\nL_bal0:")
        s.stamp(2); s.stamp("k0")
        if s.o.get("stop"): a("s_branch L_exit")
        s.exp2_bf16([(31, 114, 34), (32, 4, 36)])
        a(f"""
v_mul_f32 v33, v5, v31             ; zi
v_mul_f32 v32, v32, v31            ; -zr
v_mul_f32 v33, 0.15915494, v33     ; revolutions
v_mul_f32 v32, {f2h(-1.4426950408889634)}, v32     ; zr*log2e
v_add_f32 v31, v31, v31
v_mul_f32 v35, {f2h(8.0)}, v33
v_mul_f32 v37, {f2h(128.0)}, v33
v_mul_f32 v34, {f2h(8.0)}, v32
v_mul_f32 v36, {f2h(128.0)}, v32
v_fract_f32 v35, v35
v_fract_f32 v37, v37
v_fract_f32 v33, v33
v_exp_f32 v34, v34
v_cos_f32 v58, v35
v_sin_f32 v59, v35
v_exp_f32 v36, v36
v_cos_f32 v60, v37
v_sin_f32 v61, v37
v_exp_f32 v32, v32
v_cos_f32 v56, v33
v_sin_f32 v57, v33
v_mul_f32 v42, v6, v31
v_mul_f32 v43, v7, v31             ; G0 = 2C dt
v_mul_f32 v58, v58, v34
v_mul_f32_e64 v59, v59, -v34       ; conj E8
v_mul_f32 v60, v60, v36
v_mul_f32 v61, v61, v36
v_mul_f32 v56, v56, v32
v_mul_f32 v57, v57, v32
""")
        s.stamp("k1")
        E1, E8, E128, E2, E4 = 56, 58, 60, 38, 40
        pkr = [54, 55, 62, 63, 4, 5, 6, 7]
        st = {"k": 0}
        def emit(lst):
            ps = []
            for x, buf, row in lst:
                p = pkr[st["k"] % 8]; st["k"] += 1; ps.append(p)
                a(f"v_cvt_pk_bf16_f32 v{p}, v{x}, v{x+1}")
            for p, (x, buf, row) in zip(ps, lst):
                a(f"ds_write_addtid_b32 v{p} offset:{buf*BUF + row*RS}")
        X0, X1, XV, XW, T0, T1, T2, T3 = 42, 44, 46, 32, 48, 50, 52, 108
        GA, GB = 34, 36
        E16 = 110
        a(f"v_mov_b32 v7, 0x3f80\nds_write_addtid_b32 v7 offset:0")
        s.cmuls([(X1, X0, E128, T1), (E16, E8, E8, T2)])
        emit([(E8, 0, 1), (X0, 1, 0)])
        s.cmuls([(GA, X1, E128, T0), (XW, E16, E8, T3), (XV, E16, E16, T2)])
        emit([(X1, 1, 8), (E16, 0, 2), (XW, 0, 3), (XV, 0, 4)])
        for j in range(1, 8):
            l = [(X0, X0, E1, T0), (X1, X1, E1, T1)]
            e = [(X0, 1, j), (X1, 1, 8 + j)]
            if j <= 6: l.append((XW, XW, E16, T3)); e.append((XW, 0, 3 + 2*j))
            if j <= 5: l.append((XV, XV, E16, T2)); e.append((XV, 0, 4 + 2*j))
            if j == 6: l.append((E2, E1, E1, T2))
            if j == 7: l += [(GB, GA, E128, T2), (E4, E2, E2, T3)]
            s.cmuls(l); emit(e)
        s.stamp("k2")
        if s.o.get("bal", 1): a(f"s_setprio {s.o.get('ap', 1)}")
        a("s_waitcnt lgkmcnt(0)")
        s.stamp("k3")
        for ks in range(4): a(f"ds_read_b128 {V(64+4*ks,4)}, v24 offset:{64*ks}")
        for ks in range(4): a(f"ds_read_b128 {V(80+4*ks,4)}, v24 offset:{BUF+64*ks}")
        s.cmuls([(X0, GA, E2, T0), (X1, GB, E2, T1), (XV, GB, E128, T2), (E16, E128, E128, T3)])
        a("s_waitcnt lgkmcnt(4)")
        emit([(GA, 0, 0), (GB, 0, 4), (X0, 0, 1), (X1, 0, 5), (XV, 0, 8)])
        s.cmuls([(X0, X0, E2, T0), (X1, X1, E2, T1), (XW, XV, E128, T2), (GA, XV, E4, T3)])
        a("s_waitcnt lgkmcnt(5)")
        for ks in range(4): s.mfma(96, 80+4*ks, 64+4*ks, None if ks == 0 else 96)
        emit([(X0, 0, 2), (X1, 0, 6), (XW, 0, 10), (GA, 0, 9)])
        s.stamp("k4")
        ug = s.o.get("ug", 0) and not s.o.get("aonly")
        a("s_waitcnt vmcnt(0)")
        s.nonce_get(115)
        s.cmuls([(X0, X0, E2, T0), (X1, X1, E2, T1), (XV, XV, E16, T2), (GA, XW, E4, T3)])
        emit([(X0, 0, 3), (X1, 0, 7), (XV, 0, 12), (GA, 0, 11)])
        s.cmuls([(XW, XW, E16, T0), (GA, XV, E4, T1), (XV, XV, E16, T2)])
        emit([(XW, 0, 14), (GA, 0, 13), (XV, 1, 0)])
        s.cmuls([(GB, XW, E4, T0), (XW, XW, E16, T1), (XV, XV, E16, T2)])
        emit([(GB, 0, 15), (XW, 1, 1), (XV, 1, 2)])
        s.stamp("k5")
        if s.o.get("ul", 1) == 2: uloads()
        a("s_waitcnt lgkmcnt(2)")
        for ks in range(4): a(f"ds_read_b128 {V(80+4*ks,4)}, v24 offset:{64*ks}")
        for h in range(3):
            s.cmuls([(XW, XW, E16, T0), (XV, XV, E16, T1)])
            emit([(XW, 1, 3 + 2*h), (XV, 1, 4 + 2*h)])
            if h == 1:
                a("s_waitcnt lgkmcnt(4)")
                for ks in range(4): s.mfma(100, 80+4*ks, 64+4*ks, None if ks == 0 else 100)
        a("s_waitcnt lgkmcnt(0)")
        for ks in range(4): a(f"ds_read_b128 {V(80+4*ks,4)}, v24 offset:{BUF+64*ks}")
        s.stamp("k6")
        if s.o.get("ul", 1) == 3: uloads()
        a("v_add_u32 v32, s59, v25")
        a(f"ds_write_b128 v32, v[96:99]\nds_write_b128 v32, v[100:103] offset:1024")
        a("s_waitcnt lgkmcnt(2)")
        for ks in range(4): s.mfma(104, 80+4*ks, 64+4*ks, None if ks == 0 else 104)
        a(f"ds_write_b128 v32, v[104:107] offset:2048")
        s.stamp(8); s.stamp("k7"); s.stamp("p4")
        for ch in "SC":
            if ch not in early: {"S": AS, "C": AC}[ch]()
        a("s_waitcnt lgkmcnt(0)\ns_barrier")
        a(f"s_setprio {s.o.get('pe', 3)}")
        s.stamp(3); s.stamp("k8"); s.stamp("e0")
        if s.o.get("ul", 1) == 0: uloads()
        a(f"""
s_cmp_eq_u32 s68, 3
s_cbranch_scc1 L_zp
s_lshl_b32 s72, s68, 10
s_mul_i32 s73, s67, {4*WV}
s_add_u32 s72, s72, s73
v_add_u32 v32, s72, v25
ds_read_b128 v[96:99], v32
ds_read_b128 v[100:103], v32 offset:{WV}
ds_read_b128 v[104:107], v32 offset:{2*WV}
ds_read_b128 v[80:83], v32 offset:{3*WV}
s_waitcnt lgkmcnt(2)
v_pk_add_f32 v[96:97], v[96:97], v[100:101]
v_pk_add_f32 v[98:99], v[98:99], v[102:103]
s_waitcnt lgkmcnt(0)
v_pk_add_f32 v[104:105], v[104:105], v[80:81]
v_pk_add_f32 v[106:107], v[106:107], v[82:83]
v_pk_add_f32 v[96:97], v[96:97], v[104:105]
v_pk_add_f32 v[98:99], v[98:99], v[106:107]
v_cvt_pk_bf16_f32 v96, v96, v97
v_cvt_pk_bf16_f32 v98, v98, v99
ds_write_b16 v20, v96
ds_write_b16_d16_hi v21, v96
ds_write_b16 v22, v98
ds_write_b16_d16_hi v23, v98
s_branch L_zpd
L_zp:
v_mov_b32 v96, 0
v_mov_b32 v97, 0
v_mov_b32 v98, 0
v_mov_b32 v99, 0
s_mul_i32 s72, s67, {KCH}
s_add_u32 s72, s72, {KC + 2*(0x4501 - KB)}
v_mov_b32 v33, s72
ds_write_b16 v33, v96
s_mul_i32 s72, s67, {CHU}
s_add_u32 s72, s72, {UA}
v_add_u32 v33, s72, v25
s_mov_b64 exec, 0x3fffffff
ds_write_b128 v33, v[96:99]          ; zero pad in front of u
s_mov_b64 exec, -1
v_lshrrev_b32 v64, 1, v3
v_mul_u32_u24 v64, 4160, v64
v_and_b32 v65, 1, v3
v_lshl_add_u32 v64, v65, 4, v64
s_add_u32 s72, s69, {KCP + 4096}
v_add_u32 v64, s72, v64""")
        if ug: s.g_wait("u", "s66", wave=7)
        a("L_zpd:")
        if s.o.get("ul", 1) == 1 and not ug: uloads()
        if "G" not in early: AG()
        a("s_waitcnt lgkmcnt(0)")
        s.stamp("e1")
        a("s_barrier")
        s.stamp("e2")
        if ug: uloads()
        for e in range(9): a(f"ds_read_u16 v{32+e}, v{8+e}")
        a(f"""
s_cmp_lg_u32 s68, 3
s_cbranch_scc1 L_nzt
s_mov_b64 exec, 0xf
ds_write_b128 v64, v[96:99]
s_mov_b64 exec, -1
L_nzt:
s_waitcnt lgkmcnt(0)
""")
        for cp in range(2):
            for j in range(4):
                x = cp + 2*j
                a(f"v_lshl_or_b32 v{48+4*cp+j}, v{33+x}, 16, v{32+x}")
            a(f"ds_write_b128 v26, {V(48+4*cp,4)} offset:{4160*cp}")
        s.stamp("e3")
        a("s_branch L_chk_u\nL_poll_u:")
        uloads()
        a("L_chk_u:\ns_waitcnt vmcnt(0)")
        s.check("u", [(119, 25, "s57", 12, "s[28:29]"), (123, 25, "s55", 12, "s[52:53]")])
        s.stamp(4); s.stamp("e4")
        a(f"""v_perm_b32 v56, v117, v116, s50
v_perm_b32 v57, v119, v118, s50
v_perm_b32 v58, v117, v116, s51
v_perm_b32 v59, v119, v118, s51
ds_write_b64 v30, v[56:57]
ds_write_b64 v30, v[58:59] offset:{CHU}
s_waitcnt lgkmcnt(0)
s_barrier
s_cmp_lg_u32 s3, 7
s_cbranch_scc1 L_nlo
s_mov_b64 exec, s[30:31]""")
        for k in range(4):
            a(f"ds_write_b16 v113, v{120+k} offset:{32*k}\nds_write_b16_d16_hi v113, v{120+k} offset:{32*k + CHU}")
        a("s_mov_b64 exec, -1\ns_waitcnt lgkmcnt(0)\nL_nlo:\ns_barrier")
        fill_w = f"""v_lshrrev_b32 v4, 1, v1
v_and_b32 v4, 3, v4
v_xor_b32 v4, v4, v2
v_lshlrev_b32 v4, 4, v4
v_lshl_add_u32 v4, v1, 6, v4
s_lshl_b32 s64, s3, 13
s_add_u32 s65, s64, {XP[1] - 8192}
s_cmp_eq_u32 s3, 0
s_cselect_b32 s64, 0, s65
v_add_u32 v4, s64, v4""".split("\n")
        fill_r = f"""v_lshrrev_b32 v5, 3, v3
v_xor_b32 v5, v5, v3
v_and_b32 v5, 3, v5
v_lshlrev_b32 v5, 4, v5
v_and_b32 v6, 0x3c, v3
v_lshl_add_u32 v5, v6, 4, v5
s_lshl_b32 s64, s3, 10
v_add_u32 v5, s64, v5
v_lshrrev_b32 v6, 2, v3
v_mul_u32_u24 v6, 14336, v6
v_and_b32 v7, 3, v3
v_lshl_add_u32 v6, v7, 4, v6
s_mul_i32 s64, s3, {16*14336}
s_lshl_b32 s65, s66, 6
s_add_u32 s64, s64, s65
s_add_u32 s64, s64, {YT}
v_cmp_eq_u32 s[56:57], 3, v7
v_mov_b32 v11, s60
v_and_b32 v9, 7, v1
v_and_b32 v12, 1, v2
v_lshl_add_u32 v9, v12, 3, v9
v_lshrrev_b32 v12, 1, v9
v_and_b32 v12, 3, v12
v_xor_b32 v12, 3, v12
v_lshlrev_b32 v12, 4, v12
v_lshl_add_u32 v9, v9, 6, v12
s_lshl_b32 s72, s3, 10
s_add_u32 s72, s72, 12
v_add_u32 v9, s72, v9
v_mul_u32_u24 v10, 14336, v2
v_lshl_add_u32 v10, v1, 2, v10
s_mul_i32 s72, s3, {2*14336}
s_add_u32 s65, s65, s72
s_add_u32 s65, s65, {YT + 128*14336}""".split("\n")
        if s.o.get("sa"): a(f"s_sleep {s.o['sa']}")
        s.stamp(5); s.stamp("e5")
        a(f"s_setprio {s.o.get('pc', 1)}")
        a("s_cmp_lt_u32 s3, 4\ns_cbranch_scc1 L_conv")
        a("\n".join(fill_r))
        s.stamp(6); s.stamp("e6")
        a("s_branch L_tC\nL_conv:")
        filler = fill_w + fill_r
        free = [64 + 4*i for i in range(16)]
        Areg, Breg = {}, {}
        pend = []
        q = []
        exports = []
        NC = 4
        def assign(cl, d):
            off = 64 * (NC - 1 - cl)
            ra = free.pop(0); rb = free.pop(0)
            Areg[(cl, d)] = ra; Breg[(cl, d)] = rb
            q.append(((cl, d), f"ds_read_b128 {V(rb,4)}, v28 offset:{512*d + off}"))
            vb = (27, 17, 18, 19)[(7 - d) >> 1]; o = 128 * ((7 - d) & 1) + off // 4
            q.append(((cl, d), f"ds_read2_b32 {V(ra,2)}, v{vb} offset0:{o} offset1:{o+1}"))
            q.append(((cl, d), f"ds_read2_b32 {V(ra+2,2)}, v{vb} offset0:{o+2} offset1:{o+3}"))
        def issue1():
            k, t = q.pop(0); a(t); pend.append(k)
        def wait(cl, d):
            while any(k == (cl, d) for k, _ in q): issue1()
            if (cl, d) in pend:
                idx = max(i for i, k in enumerate(pend) if k == (cl, d))
                a(f"s_waitcnt lgkmcnt({len(pend) - 1 - idx})")
                del pend[:idx + 1]
        first = set(); n = [0]
        left = {T: (T + 1) * NC for T in range(8)}
        def export(T):
            a(f"ds_write_b128 v4, {V(32+4*T,4)} offset:{1024*T}"); pend.append("x")
        def mm(cl, p, qq):
            T = p + qq
            s.mfma(32 + 4*T, Areg[(cl, p)], Breg[(cl, qq)], None if T not in first else 32 + 4*T)
            first.add(T); n[0] += 1
            left[T] -= 1
            if left[T] == 0: exports.append((n[0] + 5, T))
            if q and len(pend) < 15: issue1()
            elif exports and exports[0][0] <= n[0] and len(pend) < 15: export(exports.pop(0)[1])
            elif filler:
                a(filler.pop(0))
                while filler and filler[0].startswith("s_"): a(filler.pop(0))
        todo = [(cl, d) for cl in range(NC) for d in range(8)]
        def refill():
            while todo and len(free) >= 2: assign(*todo.pop(0))
        refill()
        for _ in range(9): issue1()
        for cl in range(NC):
            for d in range(8):
                wait(cl, d)
                prs = [(d, j) for j in range(d) if d + j <= 7] + [(j, d) for j in range(d) if d + j <= 7]
                if 2*d <= 7: prs.append((d, d))
                if cl == NC - 1: prs.sort(key=lambda x: x[0] + x[1])
                for p, qq in prs: mm(cl, p, qq)
                if d >= 4:
                    for k in (7 - d, d):
                        free.append(Areg[(cl, k)]); free.append(Breg[(cl, k)])
                    refill()
        assert not todo and not q and not filler
        s.stamp(6); s.stamp("e6")
        for _, T in exports: export(T)
        a("L_tC:\ns_waitcnt lgkmcnt(0)")
        s.stamp("e7")
        a("s_barrier")
        s.stamp("e8")
        for qq in range(4): a(f"ds_read_b128 {V(64+8*qq,4)}, v5 offset:{XP[qq]}")
        for qq in range(4): a(f"ds_read_b32 v{100+qq}, v9 offset:{XP[qq]}")
        def add4(d, x):
            a(f"v_pk_add_f32 {V(d,2)}, {V(d,2)}, {V(x,2)}\nv_pk_add_f32 {V(d+2,2)}, {V(d+2,2)}, {V(x+2,2)}")
        a("s_waitcnt lgkmcnt(6)"); add4(64, 72)
        a("s_waitcnt lgkmcnt(4)"); add4(80, 88)
        for r in range(4): a(f"v_cvt_pk_bf16_f32 v{96+r}, v{64+r}, v{80+r}")
        a("""v_cndmask_b32 v99, v99, v11, s[56:57]
buffer_store_dwordx4 v[96:99], v6, s[32:35], s64 offen sc1
s_waitcnt lgkmcnt(0)""")
        s.hint_send("y", "s66", s.o.get("yw", 0))
        a("""v_add_f32 v100, v100, v101
v_add_f32 v102, v102, v103
v_cvt_pk_bf16_f32 v100, v100, v102
v_cndmask_b32 v100, v100, v11, s[62:63]
s_mov_b32 exec_hi, 0
buffer_store_dword v100, v10, s[32:35], s65 offen sc1
s_mov_b64 exec, -1""")
        s.stamp(7); s.stamp("e9")
    def table(s):
        T = tables.b_tables()
        buf = np.zeros(TB_SIZE // 4, np.uint32)
        for n, off in TB.items(): buf[off // 4: off // 4 + 256] = T[n].reshape(-1)
        out = [".p2align 8", ".type L_tbl,@object", "L_tbl:"]
        for i in range(0, len(buf), 8):
            out.append(".long " + ",".join(("0x%x" % x) if x else "0" for x in buf[i:i + 8]))
        out.append("L_tbl_end:")
        out.append(f".size L_tbl, {TB_SIZE}")
        return "\n".join(out)
    def build(s):
        a = s.a
        hdr = open("concat_heads__ssm_conv_s4d__spectral_gfnet__prompt.s.ref").read().split("; Override launch")[0]
        a.raw(hdr + f"; @launch grid=({NWG},1,1) block=(512,1,1) lds={LDS_BYTES}")
        a.raw(f'.amdgcn_target "amdgcn-amd-amdhsa--gfx950"\n.text\n.globl {KNAME}\n.p2align 8\n.type {KNAME},@function\n{KNAME}:')
        s.entry(); s.row_s1(); s.t_u(); s.column(); s.row_inv(); s.t_y(); s.a_path()
        a("L_exit:")
        s.stamp(9)
        s.stamp_flush()
        a("L_end:\ns_endpgm")
        a.raw(s.table())
        a.raw(f""".section .rodata,"a"
.p2align 6
.amdhsa_kernel {KNAME}
  .amdhsa_next_free_vgpr 128
  .amdhsa_next_free_sgpr 102
  .amdhsa_accum_offset 128
  .amdhsa_group_segment_fixed_size 0
  .amdhsa_kernarg_size 104
  .amdhsa_user_sgpr_count 2
  .amdhsa_user_sgpr_kernarg_segment_ptr 1
  .amdhsa_system_sgpr_workgroup_id_x 1
.end_amdhsa_kernel""")
        return a.text().replace("BPRIO", str(s.o.get("bp", 3))).replace("    REMAP\n", {0: "", 1: "    s_add_u32 s64, s2, 272\n    s_sub_u32 s2, s2, 224\n    s_cselect_b32 s2, s64, s2\n",
            2: "    s_add_u32 s64, s2, 128\n    s_sub_u32 s65, s2, 352\n    s_cmp_lt_u32 s2, 16\n    s_cselect_b32 s64, s2, s64\n    s_cmp_ge_u32 s2, 368\n    s_cselect_b32 s2, s65, s64\n",
            3: """    s_and_b32 s64, s2, 7
    s_lshr_b32 s65, s2, 3
    s_cmp_gt_u32 s64, VX
    s_subb_u32 s66, s64, 0
    s_mul_i32 s67, s65, 7
    s_add_u32 s66, s66, s67
    s_add_u32 s67, s66, 62
    s_cmp_lt_u32 s65, 30
    s_cselect_b32 s66, s66, s67
    s_add_u32 s65, s65, 210
    s_cmp_eq_u32 s64, VX
    s_cselect_b32 s2, s65, s66
""".replace("VX", str(s.o.get("vx", 5)))}[s.o.get("ord", 0)]).replace("    KSTAMP\n", "    s_memrealtime s[92:93]\n" if s.o.get("ks") else "").replace("    AONLY\n", "    s_endpgm\n" if s.o.get("aonly") else "").replace(" NTC", " nt" if s.o.get("ntc") else "").replace(" NTE", " nt" if s.o.get("nte") else "").replace(" NTP", " nt" if s.o.get("ntp") else "").replace(" NTF", " nt" if s.o.get("nt", 0) else "").replace(" NTW", " nt" if s.o.get("ntw", 0) else "").replace(" NTG", " nt" if s.o.get("ntg", 0) else "").replace(" OUTF", (" " + s.o.get("outf", "sc1")))
if __name__ == "__main__":
    out = sys.argv[1]; stamps = len(sys.argv) > 2 and sys.argv[2] == "1"
    opts = json.loads(sys.argv[3]) if len(sys.argv) > 3 else {}
    g = G(stamps, opts); t = g.build(); open(out, "w").write(t)
    print("lines", t.count("\n"), "bytes", len(t), "nops", g.a.nops)
```

```python
import sys, math, json
import numpy as np
from asmlib import Asm, f2h
import tables
KNAME = "concat_heads__ssm_conv_s4d__spectral_gfnet__prompt_kernel"
Z1, Z2, UT, YT, STAMP = 0x010000, 0x220000, 0x430000, 0x640000, 0x1000000
EPOCH = 0x630000
HB = {'z1': 0x900000, 'u': 0x980000, 'z2': 0xA00000, 'y': 0xA80000}; HP = {'z1': 128, 'u': 144, 'z2': 256, 'y': 224}
CB = {'z1': 0x900000, 'z2': 0x920000, 'y': 0x940000, 'u': 0x960000}; EARLY = ('z1', 'u'); CT_ = {'z1': 16, 'z2': 32, 'y': 28, 'u': 18}
PSTR = 9216
NR0, NT0, NA0, NWG = 16, 144, 272, 496
LDS_BYTES = 78336
SPIN_MAX = 200000
WV, BUF, RS = 9216, 4608, 288
KC, KCH = 3072, 3072
KB = 0x3F7F
ZS = 0x4502 - KB
KCP, CHK, UA, CHU = 9216, 8320, 69120, 4608
XP = [0, 43008, 51200, 59392]
TB = {n: 1024 * i for i, n in enumerate(["COS28", "NSIN28", "R2RE", "R2IM", "TWRC", "TWRS", "F8RE", "F8IM", "G8RE", "G8IM",
                                          "R2BRE", "R2BIM", "TWIC", "TWIS", "R1B0", "R1B1"])}
TB_SIZE = 16384
T1, EB, CT = 16896, 37376, 49664

def V(a, n=1): return f"v{a}" if n == 1 else f"v[{a}:{a+n-1}]"
def S(a, n=1): return f"s{a}" if n == 1 else f"s[{a}:{a+n-1}]"

class G:
    def __init__(s, stamps=False, opts=None):
        s.a = Asm(); s.stamps = stamps; s.o = opts or {}
    def stamp(s, i):
        if not s.stamps: return
        prof = s.o.get("prof")
        if prof:
            if isinstance(i, str):
                if i[:len(prof)] == prof: s.a(f"s_memtime {S(80+2*int(i[len(prof):]),2)}")
            return
        if isinstance(i, int): s.a(f"s_memrealtime {S(80+2*i,2)}")
    def stamp_flush(s):
        if not s.stamps: return
        a = s.a
        if s.o.get("dbg") == 2:
            a(f"""s_load_dwordx2 s[100:101], s[0:1], 88
s_waitcnt lgkmcnt(0) vmcnt(0)
s_cmp_lg_u32 s3, 0
s_cbranch_scc1 L_end
s_sub_u32 s64, s2, {NT0}
s_cmp_ge_u32 s64, 8
s_cbranch_scc1 L_end
s_lshl_b32 s64, s64, 2
v_mov_b32 v5, s64
v_mov_b32 v4, s80
global_store_dword v5, v4, s[100:101]
v_mov_b32 v4, s98
global_store_dword v5, v4, s[100:101] offset:32
s_waitcnt vmcnt(0)""")
            return
        if s.o.get("dbg"):
            a("""s_load_dwordx2 s[100:101], s[0:1], 88
s_waitcnt lgkmcnt(0) vmcnt(0)
s_mov_b64 exec, 1""")
            def mx(slot, sreg, inv=False):
                if inv: a(f"s_not_b32 s64, {sreg}"); sreg = "s64"
                a(f"v_mov_b32 v4, {sreg}\nv_mov_b32 v5, {4*slot}\nglobal_atomic_umax v5, v4, s[100:101] sc1")
            st = lambda i: f"s{80+2*i}"
            mx(0, st(0), True)
            a(f"s_cmp_ge_u32 s2, {NA0}\ns_cbranch_scc1 L_dA\ns_cmp_ge_u32 s2, {NT0}\ns_cbranch_scc1 L_dT\ns_cmp_lt_u32 s2, {NR0}\ns_cbranch_scc1 L_dE")
            for k, i in enumerate((0, 2, 3, 5, 9)): mx(1 + k, st(i))
            a("s_branch L_dE\nL_dT:")
            for k, i in enumerate((3, 6, 7, 9)): mx(6 + k, st(i))
            a("s_branch L_dE\nL_dA:")
            for k, i in enumerate((0, 2, 3, 5, 6, 7)): mx(10 + k, st(i))
            a("L_dE:\ns_waitcnt vmcnt(0)")
            return
        a("s_waitcnt lgkmcnt(0) vmcnt(0)")
        for i in range(10): a(f"v_mov_b32 v{4+i}, s{80+2*i}")
        a(f"""v_mov_b32 v14, 0
v_mov_b32 v15, s70
v_mov_b32 v2, 0
s_lshl_b32 s64, s2, 3
s_add_u32 s64, s64, s3
s_lshl_b32 s64, s64, 6
s_add_u32 s64, s64, {STAMP}
buffer_store_dwordx4 v[4:7], v2, s[32:35], s64 offen
buffer_store_dwordx4 v[8:11], v2, s[32:35], s64 offen offset:16
buffer_store_dwordx4 v[12:15], v2, s[32:35], s64 offen offset:32
s_waitcnt vmcnt(0)""")
    def srd(s, base, size):
        s.a(f"s_mov_b32 s{base+2}, {size}\ns_mov_b32 s{base+3}, 0x20000")
    def mfma(s, d, A, B, c=None):
        s.a(f"v_mfma_f32_16x16x32_bf16 {V(d,4)}, {V(A,4)}, {V(B,4)}, {'0' if c is None else V(c,4)}")
    def twiddle(s, dre, dim, co, si, P, conj, T=8, packed=False):
        a = s.a
        if packed:
            for h in (0, 2):
                a(f"v_pk_mul_f32 {V(T+h,2)}, {V(dim+h,2)}, {V(si+h,2)}")
                a(f"v_pk_mul_f32 {V(T+4+h,2)}, {V(dre+h,2)}, {V(si+h,2)}")
            for h in (0, 2):
                n = " neg_lo:[0,0,1] neg_hi:[0,0,1]"
                a(f"v_pk_fma_f32 {V(dre+h,2)}, {V(dre+h,2)}, {V(co+h,2)}, {V(T+h,2)}{n if conj else ''}")
                a(f"v_pk_fma_f32 {V(dim+h,2)}, {V(dim+h,2)}, {V(co+h,2)}, {V(T+4+h,2)}{'' if conj else n}")
        else:
            for r in range(4):
                a(f"v_mul_f32 v{T+r}, v{dim+r}, v{si+r}")
                a(f"v_mul_f32 v{T+4+r}, v{dre+r}, v{si+r}")
            for r in range(4):
                a(f"v_fma_f32 v{dre+r}, v{dre+r}, v{co+r}, {'-' if conj else ''}v{T+r}")
                a(f"v_fma_f32 v{dim+r}, v{dim+r}, v{co+r}, {'' if conj else '-'}v{T+4+r}")
        s.pack(dre, dim, P)
    def pack(s, dre, dim, P):
        for r in range(4): s.a(f"v_cvt_pk_bf16_f32 v{P[r]}, v{dre+r}, v{dim+r}")
    def sincos4(s, a0, step, co, si, T=8):
        a = s.a
        a(f"v_add_f32 v{T+1}, v{a0}, v{step}")
        a(f"v_fma_f32 v{T+2}, v{step}, 2.0, v{a0}")
        a(f"v_add_f32 v{T+3}, v{T+2}, v{step}")
        regs = [a0, T+1, T+2, T+3]
        for r in range(4):
            a(f"v_cos_f32 v{co+r}, v{regs[r]}")
            a(f"v_sin_f32 v{si+r}, v{regs[r]}")
    def tbl_srd(s):
        s.a("s_getpc_b64 s[36:37]")
        n = s.a.uid()
        s.a.raw(f"L_pc{n}:")
        s.a(f"s_add_u32 s36, s36, L_tbl-L_pc{n}\ns_addc_u32 s37, s37, 0")
        s.srd(36, TB_SIZE)
    def tload(s, items, vaddr, sbase=None):
        cur = None
        for r, off in items:
            b = off & ~4095
            if b != cur:
                if sbase is None: s.a(f"s_mov_b32 s61, {b}")
                else: s.a(f"s_add_u32 s61, {sbase}, {b}")
                cur = b
            s.a(f"buffer_load_dwordx4 {V(r,4)}, v{vaddr}, s[36:39], s61 offen offset:{off - b}")
        return len(items)
    def nonce_issue(s, vn):
        s.a(f"s_mov_b32 s61, {EPOCH}\nbuffer_load_dword v{vn}, off, s[32:35], s61 NTE")
    def nonce_get(s, vn):
        s.a(f"v_add_u32 v{vn}, 1, v{vn}\nv_readfirstlane_b32 s60, v{vn}")
    def spin(s, tag, sleep):
        s.a(f"""s_add_u32 s70, s70, 1
s_cmp_gt_u32 s70, {SPIN_MAX}
s_cbranch_scc1 L_exit
s_sleep {sleep}
s_branch L_poll_{tag}""")
    def gate_issue(s, tag, K, stride, off, sreg, vt, wave=0):
        s.a(f"""
v_mul_u32_u24 v{vt+1}, {stride}, v3
s_cmp_lg_u32 s3, {wave}
s_cbranch_scc1 L_gi_{tag}
v_mov_b32 v{vt}, 0
s_mov_b64 exec, {hex((1<<K)-1)}
buffer_atomic_or v{vt}, v{vt+1}, s[32:35], {sreg} offen offset:{off} sc0 sc1
s_mov_b64 exec, -1
L_gi_{tag}:""")
    def gate_wait(s, tag, K, stride, off, sreg, vt, wave=0, sentinel=False):
        a = s.a
        a(f"""
s_cmp_lg_u32 s3, {wave}
s_cbranch_scc1 L_gd_{tag}
s_mov_b64 exec, {hex((1<<K)-1)}
s_branch L_gc_{tag}
L_poll_g{tag}:
v_mov_b32 v{vt}, 0
buffer_atomic_or v{vt}, v{vt+1}, s[32:35], {sreg} offen offset:{off} sc0 sc1
L_gc_{tag}:
s_waitcnt vmcnt(0)
v_cmp_{'eq' if sentinel else 'ne'}_u32 vcc, {'-1' if sentinel else 's60'}, v{vt}
s_cbranch_vccz L_gok_{tag}""")
        s.spin("g" + tag, s.o.get("gsl", 1))
        a(f"""L_gok_{tag}:
s_mov_b64 exec, -1
L_gd_{tag}:""")
    def hint_prep(s, e, preg):
        s.a(f"""s_and_b32 s61, {preg}, 7
s_lshl_b32 s61, s61, 10
s_lshl_b32 s100, s3, 14
s_add_u32 s61, s61, s100
s_add_u32 s61, s61, {CB[e]}
s_add_u32 s76, s32, s61
s_addc_u32 s77, s33, 0
s_mov_b32 s100, {63 if e in EARLY else 1}""")
    def hint_send(s, e, preg, wave=0, tag=""):
        s.hint_prep(e, preg)
        for r in range(2): s.a(f"s_atomic_{'inc' if e in EARLY else 'add'} s100, s[76:77], {hex(8192*r)}")
    def hint_fill(s, e, rreg, val, tag, op="swap"):
        s.a(f"""s_lshl_b32 s61, {rreg}, 13
s_add_u32 s61, s61, {CB[e]}
s_add_u32 s76, s32, s61
s_addc_u32 s77, s33, 0
s_mov_b32 s100, {val}""")
        for x in range(8): s.a(f"s_atomic_{op} s100, s[76:77], {hex(1024*x)}")
    def tlb_touch(s):
        if not s.o.get("touch", 0): return
        s.a(f"""s_cmp_lg_u32 s3, 1
s_cbranch_scc1 L_nt
v_min_u32 v8, 4, v3
v_mul_u32_u24 v8, {0x210000}, v8
buffer_load_dword v124, v8, s[32:35], 0 offen offset:64
v_and_b32 v8, 1, v3
v_mul_u32_u24 v8, {0x370000}, v8
global_load_dword v125, v8, s[24:25]
v_mov_b32 v8, 0
global_load_dword v126, v8, s[20:21]
global_load_dword v127, v8, s[22:23]
global_load_dword v123, v8, s[16:17]
L_nt:""")
    def hint_zero(s):
        s.tlb_touch()
        s.a("s_cmp_lg_u32 s3, 7\ns_cbranch_scc1 L_hz0")
        if s.o.get("ug", 0): s.hint_fill("u", "s2", 0, "d", "add")
        s.hint_fill("z1", "s2", 0, "c", "add")
        s.a("L_hz0:")
        s.a("s_cmp_lg_u32 s3, 6\ns_cbranch_scc1 L_hz1")
        s.hint_fill("z2", "s2", 0, "a")
        s.a("L_hz1:\ns_cmp_lg_u32 s3, 5\ns_cbranch_scc1 L_hz")
        s.hint_fill("y", "s2", 0, "b")
        s.a("L_hz:")
    def hint_rearm(s, e):
        s.a(f"s_cmp_ge_u32 s71, 16\ns_cbranch_scc1 L_ra_{e}\ns_cmp_lg_u32 s3, 1\ns_cbranch_scc1 L_ra_{e}")
        s.hint_fill(e, "s71", -1, "r")
        s.a(f"L_ra_{e}:")
    def g_wait(s, e, creg, wave=0):
        a = s.a
        R = s.o.get("R", 16); dl = s.o.get("dl", {}); tg = CT_[e]; sh = 1 if e in EARLY else 0
        a(f"""s_cmp_lg_u32 s3, {wave}
s_cbranch_scc1 L_hd_{e}
s_lshr_b32 s61, {creg}, 3
s_and_b32 s61, s61, {R-1}
s_lshl_b32 s61, s61, 13
s_add_u32 s61, s61, {CB[e]}
s_add_u32 s24, s32, s61
s_addc_u32 s25, s33, 0
s_mov_b32 s101, 0""")
        for k in range(8): a(f"s_mov_b32 s{72+k}, 0")
        if e == "z1" and dl.get("z1t"):
            a(f"s_cmp_ge_u32 s2, {NT0}\ns_cbranch_scc1 L_dlt\ns_sleep {dl.get('z1r', 0)}\ns_branch L_dlr\nL_dlt:\ns_sleep {dl['z1t']}\nL_dlr:")
        elif dl.get(e): a(f"s_sleep {dl[e]}")
        a(f"L_poll_h{e}:")
        for k in range(8):
            if sh: a(f"s_add_u32 s61, s{72+k}, 1\ns_lshr_b32 s61, s61, 1")
            a(f"""s_cmp_eq_u32 {'s61' if sh else 's%d' % (72+k)}, {tg >> sh}
s_cbranch_scc1 L_hp{k}_{e}
s_mov_b32 s{72+k}, 0
s_atomic_add s{72+k}, s[24:25], {hex(1024*k)} glc
L_hp{k}_{e}:""")
        a("s_add_u32 s101, s101, 1\ns_add_u32 s70, s70, 1\ns_waitcnt lgkmcnt(0)")
        a("s_mov_b32 s100, 0")
        for k in range(8):
            if sh: a(f"s_add_u32 s61, s{72+k}, 1\ns_lshr_b32 s61, s61, 1\ns_xor_b32 s61, s61, {tg >> 1}")
            else: a(f"s_xor_b32 s61, s{72+k}, {tg}")
            a("s_or_b32 s100, s100, s61")
        a(f"""s_cbranch_scc0 L_hd_{e}
s_sleep {s.o.get("gsl", 1)}
s_cmp_lt_u32 s101, {s.o.get("NF", 32)}
s_cbranch_scc1 L_poll_h{e}
L_hd_{e}:""")
    def w_sprefetch(s, tag):
        a = s.a
        a(f"""s_cmp_eq_u32 s3, 0
s_cbranch_scc1 L_sp_{tag}
s_mov_b32 s27, s3
L_sp1_{tag}:
s_lshl_b32 s61, s67, 3
s_add_u32 s61, s61, s27
s_lshl_b32 s61, s61, 4
s_add_u32 s61, s61, s66
s_mul_i32 s61, s61, 450
s_and_b32 s61, s61, -4
s_min_u32 s61, s61, {921600 - 452}
s_add_u32 s24, s48, s61
s_addc_u32 s25, s49, 0""")
        st = s.o.get("pst", 128)
        offs = list(range(0, 449, st)) + ([448] if 448 % st else [])
        for o in offs: a(f"s_load_dword s23, s[24:25], {o}")
        a("s_add_u32 s24, s52, s61\ns_addc_u32 s25, s53, 0")
        for o in offs: a(f"s_load_dword s23, s[24:25], {o}")
        a(f"""s_cmp_lg_u32 s27, 4
s_mov_b32 s27, 0
s_cbranch_scc0 L_sp1_{tag}
L_sp_{tag}:""")
    def check(s, tag, items):
        a = s.a
        m = [S(r, 2) for r in (72, 74, 76, 78, 48, 50, 52, 40)[:len(items)]]
        for mi, it in zip(m, items): a(f"v_cmp_ne_u32 {mi}, s60, v{it[0]}")
        same = len({it[4] for it in items}) == 1
        def merge(pre):
            if pre:
                for mi, it in zip(m, items): a(f"s_and_b64 {mi}, {mi}, {it[4]}")
            a(f"s_or_b64 vcc, {m[0]}, {m[1]}")
            for mi in m[2:]: a(f"s_or_b64 vcc, vcc, {mi}")
        if same:
            merge(False); a(f"s_and_b64 vcc, vcc, {items[0][4]}\ns_cbranch_scc0 L_got_{tag}")
            for mi, it in zip(m, items): a(f"s_and_b64 {mi}, {mi}, {it[4]}")
        else:
            merge(True); a(f"s_cbranch_scc0 L_got_{tag}")
        if s.o.get("aonly") or s.o.get("loud"):
            if s.o.get("aonly"): a(f"s_branch L_got_{tag}")
            else: s.spin(tag, s.o.get("sl", 4))
            a(f"L_got_{tag}:"); return
        a(f"""L_q_{tag}:
s_add_u32 s70, s70, 1
s_cmp_gt_u32 s70, {SPIN_MAX}
s_cbranch_scc1 L_exit""")
        for k, (mi, it) in enumerate(zip(m, items)):
            a(f"""s_mov_b64 exec, {mi}
s_cbranch_execz L_q{k}_{tag}
v_mov_b32 v{it[0]}, 0
buffer_atomic_or v{it[0]}, v{it[1]}, s[32:35], {it[2]} offen offset:{it[3]} sc0 sc1
L_q{k}_{tag}:""")
        a("s_mov_b64 exec, -1\ns_waitcnt vmcnt(0)")
        for mi, it in zip(m, items):
            a(f"v_cmp_ne_u32 vcc, s60, v{it[0]}\ns_and_b64 {mi}, {mi}, vcc")
        merge(False)
        a(f"""s_cbranch_scc0 L_poll_{tag}
s_sleep {s.o.get("qsl", 2)}
s_branch L_q_{tag}
L_got_{tag}:""")
    def gk(s, n):
        K = s.o.get("K", 8)
        st = (n - 1) // (K - 1) if K > 1 else 1
        if st % 2 == 0: st -= 1
        return K, 64 * st
    def lanes(s):
        s.a("""v_lshrrev_b32 v4, 6, v0
v_and_b32 v3, 63, v0
v_readfirstlane_b32 s3, v4
v_and_b32 v1, 15, v0
v_bfe_u32 v2, v0, 4, 2
s_mov_b32 s70, 0""")
    def prefetch(s, tag):
        if s.o.get("nopf"): return
        s.a(f"""
s_cmp_lg_u32 s3, 7
s_cbranch_scc1 L_nopf_{tag}
s_lshr_b32 s64, s2, 3
s_and_b32 s64, s64, 1
s_lshl_b32 s64, s64, 13
s_sub_u32 s74, s36, L_tbl-{KNAME}
s_subb_u32 s75, s37, 0
v_lshl_add_u32 v124, v3, 7, s64
v_min_u32 v124, L_tbl-{KNAME}-4, v124
global_load_dword v124, v124, s[74:75]
L_nopf_{tag}:""")

    def entry(s):
        a = s.a
        s.stamp(0); s.stamp("p0")
        if s.o.get("s0"): a(f"s_sleep {s.o['s0']}")
        a(f"""
s_load_dwordx16 s[4:19], s[0:1], 0
s_load_dwordx8 s[20:27], s[0:1], 64
s_load_dwordx2 s[32:33], s[0:1], 96
s_getpc_b64 s[36:37]
L_pc:
v_cmp_gt_u32 vcc, 8, v0
s_bfe_u32 s66, s2, 0x50003
s_lshl_b32 s66, s66, 10
s_and_saveexec_b64 s[64:65], vcc
s_cbranch_execz L_nopf
v_lshl_add_u32 v124, v0, 7, s66
v_min_u32 v124, L_tbl_end-L_pc-4, v124
{'s_nop 0' if s.o.get('nopf') else 'global_load_dword v124, v124, s[36:37] NTP'}    ; pull 1 KiB of the code into this XCD's L2 (speed only)
L_nopf:
s_mov_b64 exec, -1
s_cmp_ge_u32 s2, {NWG}
s_cbranch_scc1 L_end
REMAP
s_cmp_lt_u32 s2, {NA0}
s_cbranch_scc1 L_B
s_sub_u32 s66, s2, {NA0}           ; pair
s_lshl_b32 s64, s66, 10
v_lshl_add_u32 v24, v0, 1, s64
s_lshl_b32 s64, s66, 1
v_lshrrev_b32 v25, 8, v0
v_add_lshl_u32 v25, v25, s64, 1
s_waitcnt lgkmcnt(0)
KSTAMP
global_load_short_d16_hi v114, v25, s[14:15] NTF
global_load_short_d16_hi v4, v24, s[6:7] NTF
global_load_short_d16_hi v5, v24, s[8:9] NTF
global_load_short_d16_hi v6, v24, s[10:11] NTF
global_load_short_d16_hi v7, v24, s[12:13] NTF
s_branch L_A
L_B:
AONLY
v_lshrrev_b32 v4, 6, v0
v_and_b32 v3, 63, v0
v_readfirstlane_b32 s3, v4
v_lshlrev_b32 v7, 4, v3            ; lane*16
s_sub_u32 s58, s2, {NR0}
s_add_u32 s36, s36, L_tbl-L_pc
s_addc_u32 s37, s37, 0
s_mov_b32 s38, {TB_SIZE}
s_mov_b32 s39, 0x20000
s_mov_b32 s42, 1835008
s_mov_b32 s43, 0x20000
s_cmp_lt_u32 s58, 128
s_cbranch_scc0 L_pT
s_mov_b32 s71, s58
s_lshl_b32 s64, s3, 8
s_add_u32 s64, s64, s58
s_mov_b32 s66, {128*896}
s_lshl_b32 s65, s3, 11
s_movk_i32 s67, 1024
s_waitcnt lgkmcnt(0)
s_mov_b64 s[40:41], s[18:19]
s_branch L_pC
L_pT:
s_sub_u32 s71, s2, {NT0}
s_lshl_b32 s28, s71, 4             ; main blocks: rows 16*blk + j
s_lshl_b32 s64, s2, 7
s_add_u32 s64, s64, 15             ; leftover blocks: rows 128*b + 15 + 16j
s_add_u32 s65, s2, 128
s_cmp_lt_u32 s2, {NR0}
s_cselect_b32 s28, s64, s28
s_cselect_b32 s71, s65, s71
s_cselect_b32 s59, 16, 1
s_cselect_b32 s66, 0, {8*896}
s_mul_i32 s64, s59, s3
s_add_u32 s64, s64, s28
s_mul_i32 s65, s3, 1040
s_movk_i32 s67, {8*1040}
s_waitcnt lgkmcnt(0)
s_mov_b64 s[40:41], s[4:5]
L_pC:
KSTAMP
s_mul_i32 s64, s64, 896
s_mov_b32 m0, s65
s_add_u32 s66, s66, s64
buffer_load_dwordx4 v7, s[40:43], s64 offen NTF lds
s_add_u32 m0, s65, s67
buffer_load_dwordx4 v7, s[40:43], s66 offen NTF lds
s_mov_b32 s34, 0x10000000
s_mov_b32 s35, 0x20000
v_and_b32 v1, 15, v0
v_bfe_u32 v2, v0, 4, 2
s_mov_b32 s70, 0
""")
        s.stamp(1); s.stamp("p1")
        a("s_cmp_lt_u32 s58, 128\ns_cbranch_scc0 L_T")
    def cread(s, items):
        for r, n in items: s.a(f"ds_read_b128 {V(r,4)}, v7 offset:{CT + TB[n]}")
    def matrix(s, a0, step, re, im, conj):
        s.sincos4(a0, step, 96, 100)
        for j in range(4):
            s.a(f"v_cvt_pk_bf16_f32 v{re+j}, v{96+j}, {'-' if conj else ''}v{100+j}")
            s.a(f"v_cvt_pk_bf16_f32 v{im+j}, {'' if conj else '-'}v{100+j}, v{96+j}")
    def b0(s):
        a = s.a
        s.srd(44, 3670016); s.srd(48, 921600); s.srd(52, 921600)
        a(f"""
v_cmp_eq_u32 s[62:63], 15, v1
s_mov_b64 s[44:45], s[24:25]
s_mov_b64 s[48:49], s[20:21]
s_mov_b64 s[52:53], s[22:23]
s_and_b32 s66, s58, 15         ; f1
s_lshr_b32 s67, s58, 4         ; k2
v_lshlrev_b32 v10, 2, v1
v_lshl_add_u32 v24, v2, 19, v10    ; g*524288 + 4c
v_cvt_f32_u32 v4, v1
v_lshlrev_b32 v5, 2, v2
v_cvt_f32_u32 v5, v5
v_mul_f32 v4, {f2h(1/16)}, v4          ; c/16
""")
    def bw(s):
        s.a(f"""
s_mul_i32 s64, s67, 56
s_sub_u32 s65, 896, s64
s_cmp_lt_u32 s67, 8
s_cselect_b32 s64, s64, s65
s_cselect_b32 s65, 2, -2
v_and_b32 v8, 1, v2
v_lshrrev_b32 v9, 1, v2
v_mul_i32_i24 v6, s65, v1
v_mul_u32_u24 v10, {1024*450}, v8
v_mul_u32_u24 v11, {16*450}, v9
v_add_u32 v6, s64, v6
v_add3_u32 v6, v6, v10, v11
s_lshl_b32 s64, s3, 5
s_add_u32 s64, s64, s66
s_mul_i32 s68, s64, 450        ; W soffset r=0
""")
    def bc(s):
        a = s.a
        a(f"""
v_and_b32 v8, 1, v2
v_lshrrev_b32 v9, 1, v2
v_lshlrev_b32 v10, 2, v1
v_lshl_add_u32 v27, v2, 11, v10    ; Z1 poll: g*2048 + 4c
v_mul_u32_u24 v12, 48, v1
v_mul_u32_u24 v28, 3072, v2
v_add_u32 v11, s3, v2
v_and_b32 v11, 3, v11
v_lshl_add_u32 v28, v11, 2, v28
s_and_b32 s64, s3, 4
s_lshl_b32 s64, s64, 2
s_add_u32 s64, s64, {EB}
v_add3_u32 v28, v28, v12, s64          ; E b32: 4g*768 + 48c + 16(w>>2) + 4((w+g)&3)
v_mul_u32_u24 v9, 768, v9
v_lshl_add_u32 v9, v8, 4, v9
s_mul_i32 s64, s3, 1536
s_add_u32 s64, s64, {EB}
v_add3_u32 v29, v9, v12, s64           ; E b128
v_cvt_f32_u32 v8, s3
v_mul_f32 v8, {f2h(1/8)}, v8           ; b/8
v_add_f32 v13, v5, v8
v_mul_f32 v13, v13, v4
v_fmamk_f32 v12, v8, {f2h(1/16)}, v4
""")
        s.matrix(13, 4, 64, 68, False)
        a("v_mul_f32 v13, v12, v5")
        s.matrix(13, 12, 72, 76, True)
    def w_prefetch(s, d):
        s.a(f"""
s_lshl_b32 s64, s67, 3
s_add_u32 s64, s64, s3
s_lshl_b32 s64, s64, 4
s_add_u32 s64, s64, s66
s_mul_i32 s64, s64, 450
v_lshlrev_b32 v8, 7, v3
v_min_u32 v8, 448, v8
buffer_load_ushort v{d}, v8, s[48:51], s64 offen NTW
buffer_load_ushort v{d+1}, v8, s[52:55], s64 offen NTW
""")
        return 2
    def w_early(s, tag):
        a = s.a
        a(f"s_cmp_eq_u32 s3, 0\ns_cbranch_scc1 L_we_{tag}")
        s.w_loads()
        a(f"s_cmp_lg_u32 s3, 1\ns_cbranch_scc1 L_we_{tag}\ns_mul_i32 s61, s66, 450")
        for r in range(4):
            a(f"buffer_load_ushort v{88+r}, v6, s[48:51], s61 offen NTG")
            a(f"buffer_load_ushort v{92+r}, v6, s[52:55], s61 offen NTG")
            if r < 3: a(f"s_add_u32 s61, s61, {256*450}")
        a(f"L_we_{tag}:")
    def w_loads(s):
        a = s.a
        if s.o.get("now"):
            for r in range(8): a(f"buffer_load_dword v{16+r}, off, s[36:39], 0")
            return
        for r in range(4):
            a(f"buffer_load_short_d16_hi v{16+r}, v6, s[48:51], s68 offen NTG")
            a(f"buffer_load_short_d16_hi v{20+r}, v6, s[52:55], s68 offen NTG")
            if r < 3: a(f"s_add_u32 s68, s68, {256*450}")
    def row_s1(s):
        a = s.a
        def late_loads():
            a(f"s_lshl_b32 s64, s3, 10\ns_add_u32 m0, s64, {CT}\nbuffer_load_dwordx4 v7, s[36:39], s64 offen lds")
            s.nonce_issue(31)
        if s.o.get("cpos", 1) == -1: late_loads()
        s.b0()
        if s.o.get("cpos", 1) == 0: late_loads()
        wp = s.o.get("wp", 2)
        if s.o.get("wg", 1) == 5:
            s.bw()
            if s.o.get("wd0"): a(f"s_sleep {s.o['wd0']}")
            s.w_loads()
        a(f"""
v_cvt_f32_u32 v8, s71
v_mul_f32 v8, {f2h(1/128)}, v8             ; sigma/128
v_add_f32 v13, v5, v8
v_mul_f32 v13, v13, v4
""")
        s.matrix(13, 4, 56, 60, False)
        if s.o.get("cpos", 1) == 1: late_loads()
        a(f"""
v_mul_u32_u24 v25, 5120, v2
v_mul_u32_u24 v8, 80, v1
s_lshl_b32 s64, s3, 3
s_add_u32 s64, s64, {T1}
v_add3_u32 v25, v25, v8, s64          ; T write: g*5120 + 80c + 8w
s_mul_i32 s64, s3, 2560
s_add_u32 s64, s64, {T1}
v_lshl_add_u32 v26, v2, 4, v8
v_add_u32 v26, s64, v26               ; T read: 2w*1280 + 80c + 16g
s_lshl_b32 s65, s3, 11
v_lshl_add_u32 v120, v3, 3, s65
""")
        if s.o.get("wg", 1) != 5: s.bw()
        if s.o.get("bce"): s.bc()
        if s.o.get("wd"): a(f"s_sleep {s.o['wd']}")
        if wp == 1: s.w_prefetch(94)
        s.stamp("p2")
        a(f"s_setprio BPRIO\ns_waitcnt vmcnt({8 if s.o.get('wg', 1) == 5 else (2 if wp < 2 else 0)})")
        s.stamp(2); s.stamp("s0"); s.stamp("p3")
        if s.o.get("stop"): a("s_branch L_exit")
        a("s_barrier")
        s.stamp("s1")
        pk = s.o.get("pk", True)
        a(f"""
ds_read_b64_tr_b16 v[96:97], v120
ds_read_b64_tr_b16 v[98:99], v120 offset:512
""")
        s.cread([(32, "COS28"), (36, "NSIN28")])
        a(f"""
ds_read_b64_tr_b16 v[100:101], v120 offset:1024
ds_read_b64_tr_b16 v[102:103], v120 offset:1536
""")
        s.cread([(48, "TWRC"), (52, "TWRS"), (40, "R2RE"), (44, "R2IM")])
        if s.o.get("wg", 1) == 0: s.w_loads()
        if wp == 3: s.w_prefetch(94)
        s.stamp("s2")
        s.nonce_get(31)
        a("s_waitcnt lgkmcnt(6)")
        s.mfma(104, 96, 32); s.mfma(108, 96, 36)
        a("s_waitcnt lgkmcnt(4)")
        s.mfma(112, 100, 32); s.mfma(116, 100, 36)
        a("s_waitcnt lgkmcnt(0)")
        s.stamp("s3")
        s.twiddle(104, 108, 48, 52, [96, 97, 98, 99], False, packed=pk)
        s.mfma(104, 40, 96); s.mfma(108, 44, 96)
        s.twiddle(112, 116, 48, 52, [100, 101, 102, 103], False, packed=pk)
        s.mfma(112, 40, 100); s.mfma(116, 44, 100)
        s.stamp("s4")
        s.pack(104, 108, [120, 122, 124, 126]); s.pack(112, 116, [121, 123, 125, 127])
        for r in range(4): a(f"ds_write_b64 v25, {V(120+2*r,2)} offset:{1280*r}")
        a(f"""
s_lshl_b32 s64, s71, 6
s_lshl_b32 s65, s3, 14
s_add_u32 s64, s64, s65            ; sigma*64 + 2w*8192
s_waitcnt lgkmcnt(0)""")
        s.stamp("s5")
        a("s_barrier")
        s.stamp("s6")
        a(f"""
ds_read_b128 v[96:99], v26
ds_read_b128 v[100:103], v26 offset:1280
s_waitcnt lgkmcnt(1)
""")
        s.mfma(104, 56, 96); s.mfma(108, 60, 96)
        a("s_waitcnt lgkmcnt(0)")
        s.mfma(112, 56, 100); s.mfma(116, 60, 100)
        if s.o.get("hp", 0) == 0: s.hint_send("z1", "s71", s.o.get("hw", 0))
        s.stamp("s7")
        for t, (dr, di, P) in enumerate(((104, 108, 120), (112, 116, 124))):
            s.pack(dr, di, [P, P+1, P+2, P+3])
            for r in range(4): a(f"v_cndmask_b32 v{P+r}, v{P+r}, v31, s[62:63]")
            for r in range(4):
                a(f"s_add_u32 s65, s64, {Z1 + t*8192 + r*131072}")
                a(f"buffer_store_dword v{P+r}, v24, s[32:35], s65 offen sc1")
        if s.o.get("hp", 0) == 1: s.hint_send("z1", "s71", s.o.get("hw", 0))
        s.stamp(3); s.stamp("s8")
        s.z1_gate_issue("r")
        a(f"""s_barrier
s_lshl_b32 s64, s3, 10
s_add_u32 s64, s64, 8192
s_add_u32 m0, s64, {CT}
buffer_load_dwordx4 v7, s[36:39], s64 offen lds""")
        if s.o.get("wg", 1) == 1: s.w_loads()
        if s.o.get("wg", 1) == 3: s.w_early("r")
        if wp == 4: s.w_prefetch(94)
        if wp == 6: s.w_sprefetch("r")
        if not s.o.get("bce"):
            a("s_setprio 0"); s.bc(); a("s_setprio BPRIO")
        a("s_branch L_col")
    def z1_gate_issue(s, tag):
        s.a(f"""
s_lshl_b32 s64, s66, 4
s_add_u32 s64, s64, s67
s_lshl_b32 s64, s64, 13
s_lshl_b32 s65, s3, 6
s_add_u32 s69, s64, s65
s_add_u32 s69, s69, {Z1}           ; Z1 + unit*8192 + w*64
""")
    def t_u(s):
        a = s.a
        a(f"L_T:\ns_cmp_ge_u32 s2, {NR0}\ns_cbranch_scc1 L_hz")
        s.hint_zero()
        a(f"""
v_and_b32 v10, 3, v3
v_lshrrev_b32 v11, 2, v3
v_cmp_eq_u32 s[56:57], 3, v10
v_mul_u32_u24 v120, 4160, v10
v_lshl_add_u32 v120, v11, 2, v120
s_lshl_b32 s64, s3, 6
v_add_u32 v120, s64, v120          ; LDS: 4160e + 4q + 64w
v_mul_u32_u24 v121, {PSTR}, v11
v_lshl_add_u32 v121, v10, 4, v121  ; q*PSTR + 16e
""")
        s.b0(); s.nonce_issue(31); s.bw()
        if s.o.get("wg", 1) == 5:
            if s.o.get("wd0"): a(f"s_sleep {s.o['wd0']}")
            s.w_loads()
        if s.o.get("tce", 1): s.bc()
        wp = s.o.get("wp", 2)
        if s.o.get("wdt"): a(f"s_sleep {s.o['wdt']}")
        if wp < 2: s.w_prefetch(62)
        a(f"""
s_mul_i32 s64, s3, {16*PSTR}
s_lshl_b32 s65, s71, 6
s_add_u32 s64, s64, s65
s_add_u32 s64, s64, {UT}
s_add_u32 s65, s64, {128*PSTR}
""")
        s.stamp("p2")
        a(f"s_setprio BPRIO\ns_waitcnt vmcnt({8 if s.o.get('wg', 1) == 5 else (2 if wp < 2 else 0)})")
        s.stamp(2); s.stamp("p3")
        if s.o.get("stop"): a("s_branch L_exit")
        a("s_barrier")
        for k in range(2):
            for i in range(4): a(f"ds_read_b32 v{96+4*k+i}, v120 offset:{1040*i + 512*k}")
        s.nonce_get(31)
        a(f"""
s_waitcnt lgkmcnt(4)
v_cndmask_b32 v99, v99, v31, s[56:57]
buffer_store_dwordx4 v[96:99], v121, s[32:35], s64 offen sc1
s_cmp_ge_u32 s3, 6
s_cbranch_scc1 L_T_p2
s_waitcnt lgkmcnt(0)
v_cndmask_b32 v103, v103, v31, s[56:57]
buffer_store_dwordx4 v[100:103], v121, s[32:35], s65 offen sc1
L_T_p2:
""")
        if s.o.get("ug", 0): s.hint_send("u", "s71", s.o.get("uw", 7))
        s.stamp(3)
        if s.o.get("tfe", 0): s.t_prep(); a("s_setprio BPRIO")
        a(f"""
s_cmp_lt_u32 s2, {NR0}
s_cbranch_scc1 L_Ty
""")
        s.z1_gate_issue("t")
        a(f"s_and_b32 s64, s3, 3\ns_lshl_b32 s64, s64, 10\ns_add_u32 s64, s64, {TB['F8RE']}\ns_add_u32 m0, s64, {CT}\nbuffer_load_dwordx4 v7, s[36:39], s64 offen lds")
        if wp in (3, 4): s.w_prefetch(62)
        if wp == 6: s.w_sprefetch("t")
        if wp == 5:
            a(f"""
s_barrier
s_sub_u32 s65, s3, 1
s_cmp_ge_u32 s65, 4
s_cbranch_scc1 L_nwp
s_sub_u32 s64, s67, 8
s_lshl_b32 s64, s64, 2
s_add_u32 s64, s64, s65
s_lshl_b32 s64, s64, 6
s_add_u32 s64, s64, s66
s_mul_i32 s64, s64, 450
v_lshlrev_b32 v8, 7, v1
v_min_u32 v8, 448, v8
v_mul_u32_u24 v9, {16*450}, v2
v_add_u32 v8, v8, v9
buffer_load_ushort v60, v8, s[48:51], s64 offen NTW
buffer_load_ushort v61, v8, s[52:55], s64 offen NTW
L_nwp:
""")
        if s.o.get("wg", 1) < 2:
            a("s_barrier")
            s.w_loads()
        if s.o.get("wg", 1) == 3:
            a("s_barrier")
            s.w_early("t")
        if not s.o.get("tce", 1):
            a("s_setprio 0"); s.bc(); a("s_setprio BPRIO")
    def column(s):
        a = s.a
        a(f"L_col:\ns_setprio {s.o.get('pcol', 2)}")
        a("s_lshr_b32 s64, s3, 1")
        for jj in range(4):
            a(f"s_sub_u32 s65, {jj}, s64\ns_and_b32 s65, s65, 3\ns_lshl_b32 s65, s65, 2\nv_add_u32 v{52+jj}, s65, v7")
        a("v_subrev_u32 v51, s64, v3\nv_and_b32 v51, 3, v51\nv_and_b32 v8, 60, v3\nv_add_lshl_u32 v51, v51, v8, 4")
        s.stamp(4)
        s.g_wait("z1", "s58")
        if s.o.get("zs") == 1: s.stamp(7)
        wg = s.o.get("wg", 1)
        a(f"s_waitcnt vmcnt({8 if wg == 1 else 0})\ns_barrier")
        if s.o.get("zs") == 1: s.stamp(1)
        def zl():
            for j in range(4): a(f"buffer_load_dword v{96+j}, v27, s[32:35], s69 offen offset:{512*j} sc1")
        zl()
        if wg == 2: s.w_loads()
        if wg == 3:
            a("s_cmp_lg_u32 s3, 0\ns_cbranch_scc1 L_wl0"); s.w_loads(); a("s_waitcnt vmcnt(8)\ns_branch L_wl1\nL_wl0:\ns_waitcnt vmcnt(0)\nL_wl1:")
        for jj in range(4):
            a(f"ds_read_b32 v{32+jj}, v{52+jj} offset:{CT + TB['F8RE']}")
            a(f"ds_read_b32 v{36+jj}, v{52+jj} offset:{CT + TB['F8IM']}")
        a(f"ds_read_b128 v[40:43], v51 offset:{CT + TB['G8RE']}\nds_read_b128 v[44:47], v51 offset:{CT + TB['G8IM']}")
        if wg != 3: a(f"s_waitcnt vmcnt({8 if wg == 2 else 0})")
        if s.o.get("zs") == 1: s.stamp(2)
        a("s_branch L_chk_z1\nL_poll_z1:")
        zl()
        a("s_waitcnt vmcnt(0)\nL_chk_z1:")
        s.check("z1", [(96 + j, 27, "s69", 512 * j, "s[62:63]") for j in range(4)])
        s.stamp(5)
        s.mfma(104, 64, 96); s.mfma(108, 68, 96)
        s.pack(104, 108, [120, 121, 122, 123])
        for r in range(4): a(f"ds_write_b32 v28, v{120+r} offset:{768*r}")
        a("s_waitcnt lgkmcnt(0)\ns_barrier\nds_read_b128 v[96:99], v29\ns_waitcnt lgkmcnt(0)")
        s.mfma(104, 32, 96); s.mfma(108, 36, 96)
        a("s_waitcnt vmcnt(0)")
        s.twiddle(104, 108, 16, 20, [96, 97, 98, 99], True)
        s.mfma(104, 40, 96); s.mfma(108, 44, 96)
        s.pack(104, 108, [120, 121, 122, 123])
        a("ds_write_b128 v29, v[120:123]\ns_waitcnt lgkmcnt(0)\ns_barrier")
        for j in range(4): a(f"ds_read_b32 v{96+j}, v28 offset:{768*j}")

        a(f"""
s_lshl_b32 s64, s3, 14
s_lshl_b32 s65, s67, 10
s_add_u32 s64, s64, s65
s_lshl_b32 s65, s66, 6
s_add_u32 s64, s64, s65
s_waitcnt lgkmcnt(0)
""")
        s.mfma(104, 72, 96); s.mfma(108, 76, 96)
        if s.o.get("hp", 0) == 0: s.hint_send("z2", "s58", s.o.get("hw", 0))
        s.pack(104, 108, [120, 121, 122, 123])
        for r in range(4): a(f"v_cndmask_b32 v{120+r}, v{120+r}, v31, s[62:63]")
        for r in range(4):
            a(f"s_add_u32 s65, s64, {Z2 + r*131072}")
            a(f"buffer_store_dword v{120+r}, v24, s[32:35], s65 offen sc1")
        if s.o.get("hp", 0) == 1: s.hint_send("z2", "s58", s.o.get("hw", 0))
        s.stamp(6)
        a(f"s_cmp_ge_u32 s2, {NT0}\ns_cbranch_scc1 L_Ty")
    def row_inv(s):
        a = s.a
        a(f"s_setprio {s.o.get('pprep', 0)}")
        a(f"""
s_lshl_b32 s64, s71, 14
s_lshl_b32 s65, s3, 11
s_add_u32 s69, s64, s65
s_add_u32 s69, s69, {Z2}
""")
        s.cread([(32, "R2BRE"), (36, "R2BIM"), (40, "TWIC"), (44, "TWIS"), (48, "R1B0"), (52, "R1B1")])
        a(f"""
v_cvt_f32_u32 v8, s71
v_fmamk_f32 v12, v8, {f2h(1/2048)}, v4
v_mul_f32 v13, v12, v5
""")
        s.matrix(13, 12, 80, 84, True)
        a(f"""
v_and_b32 v10, 1, v2
v_lshl_add_u32 v11, v10, 4, v1        ; n1 = c + 16(g&1)
v_lshlrev_b32 v30, 5, v11
v_lshrrev_b32 v12, 1, v2
v_lshl_add_u32 v30, v12, 4, v30
v_cmp_lt_u32 vcc, 27, v11
v_mov_b32 v12, 0x10000000
v_cndmask_b32 v30, v30, v12, vcc
v_lshlrev_b32 v5, 8, v2
v_lshl_add_u32 v5, v1, 2, v5
v_cmp_eq_u32 s[28:29], 3, v2
""")
        a(f"s_setprio {s.o.get('pinv', 3)}")
        s.g_wait("z2", "s71")
        a("s_waitcnt lgkmcnt(0)\ns_barrier\nL_poll_z2:")
        for t in range(2):
            for j in range(4): a(f"buffer_load_dword v{96+4*t+j}, v5, s[32:35], s69 offen offset:{1024*t+64*j} sc1")
        a("s_waitcnt vmcnt(0)")
        s.check("z2", [(96 + 4 * t + j, 5, "s69", 1024 * t + 64 * j, "s[62:63]") for t in range(2) for j in range(4)])
        if s.o.get("zs") != 1: s.stamp(7)
        if s.o.get("sb"): a(f"s_sleep {s.o['sb']}")
        pk = s.o.get("pk2", True)
        s.mfma(104, 80, 96); s.mfma(108, 84, 96); s.mfma(112, 80, 100); s.mfma(116, 84, 100)
        s.pack(104, 108, [120, 122, 124, 126]); s.pack(112, 116, [121, 123, 125, 127])
        for r in range(4): a(f"ds_write_b64 v25, {V(120+2*r,2)} offset:{1280*r}")
        a(f"""
s_lshl_b32 s64, s3, 8
s_add_u32 s64, s64, s71
s_mul_i32 s64, s64, 1792
s_add_u32 s64, s64, 896
s_add_u32 s65, s64, {128*1792}
s_waitcnt lgkmcnt(0)
s_barrier
ds_read_b128 v[96:99], v26
ds_read_b128 v[100:103], v26 offset:1280
s_waitcnt lgkmcnt(1)
""")
        s.mfma(104, 96, 32); s.mfma(108, 96, 36)
        a("s_waitcnt lgkmcnt(0)")
        s.mfma(112, 100, 32); s.mfma(116, 100, 36)
        s.twiddle(104, 108, 40, 44, [96, 97, 98, 99], True, packed=pk)
        a("v_cndmask_b32_e64 v99, v99, 0, s[28:29]")
        s.mfma(104, 96, 48); s.mfma(108, 96, 52)
        s.twiddle(112, 116, 40, 44, [100, 101, 102, 103], True, packed=pk)
        a("v_cndmask_b32_e64 v103, v103, 0, s[28:29]")
        s.mfma(112, 100, 48); s.mfma(116, 100, 52)
        for t, (d0, d1, P, so) in enumerate(((104, 108, 120, "s64"), (112, 116, 124, "s65"))):
            a(f"""v_cvt_pk_bf16_f32 v{P}, v{d0}, v{d0+1}
v_cvt_pk_bf16_f32 v{P+1}, v{d0+2}, v{d0+3}
v_cvt_pk_bf16_f32 v{P+2}, v{d1}, v{d1+1}
v_cvt_pk_bf16_f32 v{P+3}, v{d1+2}, v{d1+3}
v_permlane16_swap_b32 v{P}, v{P+2}
v_permlane16_swap_b32 v{P+1}, v{P+3}
buffer_store_dwordx4 {V(P,4)}, v30, s[44:47], {so} offen OUTF""")
        s.hint_rearm("z1")
        s.stamp(8)
        a("s_branch L_exit")
    def t_prep(s):
        a = s.a
        a(f"""
s_setprio 0
s_mul_i32 s29, s71, 14336
s_add_u32 s29, s29, {YT}
s_mul_i32 s72, s59, 1792
s_movk_i32 s73, 840
s_cmp_eq_u32 s59, 1
s_cselect_b32 s59, s73, 448
s_mul_i32 s28, s28, 1792
v_mul_u32_u24 v8, {(1<<20)//56+1}, v0
v_lshrrev_b32 v8, 20, v8
v_mul_u32_u24 v9, 56, v8
v_sub_u32 v9, v0, v9               ; grp0
v_add_u32 v10, 512, v0
v_mul_u32_u24 v11, {(1<<20)//56+1}, v10
v_lshrrev_b32 v11, 20, v11         ; row1
v_mul_u32_u24 v12, 56, v11
v_sub_u32 v12, v10, v12            ; grp1
v_lshlrev_b32 v9, 4, v9
v_lshlrev_b32 v12, 4, v12
global_load_dwordx4 v[112:115], v9, s[16:17]
global_load_dwordx4 v[116:119], v12, s[16:17]
v_min_u32 v11, 15, v11
v_mul_u32_u24 v25, 912, v8
v_add_u32 v25, v25, v9
v_mul_u32_u24 v26, 912, v11
v_add_u32 v26, v26, v12
v_lshl_add_u32 v104, v8, 7, v25
v_lshl_add_u32 v108, v11, 7, v26
ds_read_b128 v[104:107], v104
ds_read_b128 v[108:111], v108
v_mul_u32_u24 v48, s72, v8
v_add_u32 v48, v48, v9
v_mul_u32_u24 v49, s72, v11
v_add_u32 v49, v49, v12
v_mov_b32 v13, 0x10000000
v_cmp_gt_u32 vcc, s59, v0
v_cndmask_b32 v48, v13, v48, vcc
v_cmp_gt_u32 vcc, s59, v10
v_cndmask_b32 v49, v13, v49, vcc
v_and_b32 v10, 3, v0
v_mul_u32_u24 v10, 3648, v10
v_and_b32 v11, 0xfffffffc, v0
v_add_u32 v50, v10, v11
v_lshlrev_b32 v30, 4, v0           ; tid*16
v_cmp_gt_u32 vcc, 384, v0
s_mov_b64 s[30:31], vcc
s_waitcnt vmcnt(0) lgkmcnt(0)
""")
        for it in range(2):
            for j in range(4):
                u, d, o = 104 + 4*it + j, 112 + 4*it + j, 80 + 8*it + 2*j
                a(f"""v_lshlrev_b32 v8, 16, v{u}
v_lshlrev_b32 v9, 16, v{d}
v_and_b32 v10, 0xffff0000, v{u}
v_and_b32 v11, 0xffff0000, v{d}
v_mul_f32 v8, v8, v9
v_mul_f32 v10, v10, v11
v_cvt_pk_bf16_f32 v8, v8, v10
v_lshlrev_b32 v{o}, 16, v8
v_and_b32 v{o+1}, 0xffff0000, v8""")
    def t_y(s):
        a = s.a
        a("L_Ty:")
        if not s.o.get("tfe", 0): s.t_prep()
        a("s_add_u32 s64, s29, 8192\nv_mov_b32 v103, v31")
        a("s_setprio BPRIO")
        s.g_wait("y", "s71")
        a(f"""
s_barrier
L_poll_y:
buffer_load_dwordx4 v[96:99], v30, s[32:35], s29 offen sc1
s_mov_b64 exec, s[30:31]
s_cbranch_execz L_y1
buffer_load_dwordx4 v[100:103], v30, s[32:35], s64 offen sc1
L_y1:
s_mov_b64 exec, -1
s_waitcnt vmcnt(0)
""")
        s.check("y", [(99, 30, "s29", 12, "s[56:57]"), (103, 30, "s64", 12, "s[56:57]")])
        if s.o.get("zs") != 1: s.stamp(7)
        for r in range(4): a(f"ds_write_b32 v50, v{96+r} offset:{912*r}")
        a("s_mov_b64 exec, s[30:31]")
        for r in range(4): a(f"ds_write_b32 v50, v{100+r} offset:{912*r+512}")
        a(f"""
s_mov_b64 exec, -1
s_waitcnt lgkmcnt(0)
s_barrier
ds_read_b128 v[96:99], v25
ds_read_b128 v[100:103], v26
""")
        for it in range(2):
            a(f"s_waitcnt lgkmcnt({1-it})")
            for j in range(4):
                y = 96 + 4*it + j
                a(f"v_lshlrev_b32 v{8+2*j}, 16, v{y}\nv_and_b32 v{9+2*j}, 0xffff0000, v{y}")
            for j in range(4): a(f"v_pk_add_f32 {V(8+2*j,2)}, {V(8+2*j,2)}, {V(80+8*it+2*j,2)}")
            for j in range(4): a(f"v_cvt_pk_bf16_f32 v{104+4*it+j}, v{8+2*j}, v{9+2*j}")
            a(f"buffer_store_dwordx4 {V(104+4*it,4)}, v{48+it}, s[44:47], s28 offen OUTF")
        a(f"""
s_add_u32 s64, s71, s3
s_cmp_lg_u32 s64, 0
s_cbranch_scc1 L_noep
s_mov_b32 s61, {EPOCH}
s_mov_b64 exec, 1
buffer_store_dword v31, off, s[32:35], s61
s_mov_b64 exec, -1
L_noep:""")
        if s.o.get("ug", 0): s.hint_rearm("u")
        s.stamp(8)
        a("s_branch L_exit")
    def cmuls(s, lst):
        for d, x, e, t in lst:
            s.a(f"v_pk_mul_f32 {V(t,2)}, {V(x,2)}, {V(e,2)} op_sel:[1,1] op_sel_hi:[1,0] neg_lo:[1,0]")
        for d, x, e, t in lst:
            s.a(f"v_pk_fma_f32 {V(d,2)}, {V(x,2)}, {V(e,2)}, {V(t,2)} op_sel_hi:[0,1,1]")
    def exp2_bf16(s, pairs):
        L_HI = 1.4426950216293335; L_LO = 1.4426950408889634 - L_HI
        for fmt in (f"v_mul_f32 v{{t}}, {f2h(L_HI)}, v{{x}}", "v_exp_f32 v{d}, v{t}", "v_fma_f32 v{u}, v{x}, s71, -v{t}",
                    f"v_fmac_f32 v{{u}}, {f2h(L_LO)}, v{{x}}", f"v_mul_f32 v{{u}}, {f2h(math.log(2))}, v{{u}}",
                    "v_fma_f32 v{d}, v{d}, v{u}, v{d}", "v_cvt_pk_bf16_f32 v{d}, v{d}, v{d}", "v_and_b32 v{d}, 0xffff0000, v{d}"):
            for d, x, t in pairs: s.a(fmt.format(d=d, x=x, t=t, u=t + 1))
    def a_path(s):
        a = s.a
        a("L_A:")
        if s.o.get("ap", 1): a(f"s_setprio {s.o.get('ap', 1)}")
        s.stamp(1); s.stamp("p1")
        s.a("v_lshrrev_b32 v32, 6, v0\nv_and_b32 v3, 63, v0\nv_readfirstlane_b32 s3, v32\nv_and_b32 v1, 15, v0\nv_bfe_u32 v2, v0, 4, 2\ns_mov_b32 s70, 0")
        s.srd(32, "0x10000000")
        s.nonce_issue(115)
        a(f"""
s_lshr_b32 s67, s3, 2              ; ch
s_and_b32 s68, s3, 3               ; q4
v_lshlrev_b32 v25, 4, v3           ; 16*lane
""")
        nl = 1
        def addr_pairs(fl, dst):
            for i in range(0, len(fl), 2):
                a(f"v_cvt_pk_bf16_f32 v{fl[i]}, v{fl[i]}, v{fl[min(i+1, len(fl)-1)]}")
            for i in range(0, len(fl), 2):
                a(f"v_lshlrev_b32 v{fl[i]}, 1, v{fl[i]}")
            for i in range(len(fl)):
                a(f"v_add_u32_sdwa v{dst[i]}, s64, v{fl[i & ~1]} dst_sel:DWORD dst_unused:UNUSED_PAD src0_sel:DWORD src1_sel:WORD_{i & 1}")
        def AG():
            a(f"""
s_mul_i32 s72, s67, {KCH}
s_add_u32 s72, s72, {KC}
s_sub_u32 s64, s72, {2*KB}
v_and_b32 v33, 255, v0
v_lshlrev_b32 v33, 3, v33
v_sub_u32 v33, 2047, v33
v_cvt_f32_i32 v40, v33             ; lag of element 0
""")
            for e in range(1, 9):
                a(f"v_add_f32 v{40+e}, {f2h(-float(e))}, v40")
            a(f"v_mov_b32 v34, {f2h(2064.0)}")
            for e in (8,):
                a(f"v_cmp_gt_f32 vcc, 0, v{40+e}\nv_cndmask_b32 v{40+e}, v{40+e}, v34, vcc")
            addr_pairs(list(range(40, 49)), list(range(8, 17)))
            a("v_max_i32 v15, s72, v15")
        def AS():
            a(f"""
s_mul_i32 s72, s67, {KCH}
s_add_u32 s72, s72, {KC}
s_sub_u32 s64, s72, {2*KB}
""")
            a(f"""
v_lshrrev_b32 v34, 1, v2           ; g>>1
v_and_b32 v35, 1, v2               ; g&1
s_cmp_eq_u32 s68, 1
s_cbranch_scc1 L_sc1
s_cmp_eq_u32 s68, 2
s_cbranch_scc1 L_sc2
v_lshlrev_b32 v36, 7, v34
v_lshl_add_u32 v36, v35, 2, v36    ; 128(g>>1) + 4(g&1) + r
v_mov_b32 v37, 1
v_mov_b32 v38, 2
s_branch L_scd
L_sc1:
v_lshlrev_b32 v36, 7, v2
v_add_u32 v36, 256, v36            ; g<2: 256+128g + 2r
v_lshlrev_b32 v37, 8, v2           ; g>=2: 256g + 128(r>>1) + 4(r&1)
v_cmp_lt_u32 vcc, 1, v2
v_cndmask_b32 v36, v36, v37, vcc
v_cndmask_b32_e64 v37, 2, 4, vcc
v_mov_b32 v38, 128
v_cndmask_b32 v38, 4, v38, vcc
s_branch L_scd
L_sc2:
v_lshlrev_b32 v36, 9, v2
v_add_u32 v36, 1024, v36           ; 1024 + 128(4g+r)
v_mov_b32 v37, 128
v_mov_b32 v38, 256
L_scd:
v_lshl_add_u32 v36, v1, 3, v36
v_add_u32 v37, v36, v37
v_sub_u32 v39, v37, v36
v_add_u32 v38, v36, v38
v_add_u32 v39, v38, v39
v_mov_b32 v34, 2080
v_cmp_lt_u32 vcc, 2048, v36
v_cndmask_b32 v36, v36, v34, vcc
v_cmp_lt_u32 vcc, 2048, v37
v_cndmask_b32 v37, v37, v34, vcc
v_cmp_lt_u32 vcc, 2048, v38
v_cndmask_b32 v38, v38, v34, vcc
v_cmp_lt_u32 vcc, 2048, v39
v_cndmask_b32 v39, v39, v34, vcc
v_cvt_f32_u32 v40, v36
v_cvt_f32_u32 v41, v37
v_cvt_f32_u32 v42, v38
v_cvt_f32_u32 v43, v39
""")
            addr_pairs([40, 41, 42, 43], [20, 21, 22, 23])
            a("v_max_i32 v20, s72, v20")
        def AC():
            a(f"""
v_cmp_eq_u32 s[62:63], 15, v1
s_mul_i32 s69, s67, {CHK}
s_add_u32 s64, s69, {KCP}
v_and_b32 v26, 255, v0
v_lshl_add_u32 v26, v26, 4, s64
v_add_u32 v34, 1, v1
v_and_b32 v34, 1, v34              ; s = (i+1)&1
v_mul_u32_u24 v35, 4158, v34       ; s*4160 - 2s
v_lshlrev_b32 v36, 4, v2
v_lshlrev_b32 v37, 1, v1
v_sub_u32 v36, v36, v37            ; 16g - 2i
s_bfe_u32 s73, s3, 0x10001
s_and_b32 s64, s3, 1
s_lshl_b32 s64, s64, 8              ; 64*4h
s_mul_i32 s65, s73, {CHK}
s_sub_u32 s65, s65, s64
s_add_u32 s72, s65, {KCP + 2*2031 - 192 - 512*7}
v_add3_u32 v27, v35, v36, s72      ; vA
v_add_u32 v17, 1024, v27
v_add_u32 v18, 2048, v27
v_add_u32 v19, 3072, v27
v_lshlrev_b32 v28, 5, v1
v_lshl_add_u32 v28, v2, 4, v28
s_mul_i32 s72, s73, {CHU}
s_sub_u32 s72, s72, s64
s_add_u32 s72, s72, {UA + 448 - 192}
v_add_u32 v28, s72, v28            ; vB
s_lshl_b32 s64, s3, 9
s_add_u32 s64, s64, {UA + 480}
v_lshl_add_u32 v30, v3, 3, s64
v_and_b32 v34, 3, v3
v_cmp_eq_u32 s[28:29], 3, v34
v_cmp_gt_u32 vcc, 8, v1
s_mov_b32 s30, vcc_lo
s_mov_b32 s31, 0
s_mov_b32 s52, s62
s_mov_b32 s53, 0
v_lshlrev_b32 v35, 8, v2
v_lshl_add_u32 v35, v1, 5, v35
s_add_u32 s64, s64, 30
v_add_u32 v113, s64, v35                 ; rows 256w + 128g + 16c + 15
v_lshlrev_b32 v29, 2, v3
s_mul_i32 s58, s66, {PSTR}
s_add_u32 s58, s58, {UT}
s_lshl_b32 s64, s3, 10
s_add_u32 s57, s58, s64
s_lshl_b32 s64, s3, 7
s_add_u32 s55, s58, s64
s_add_u32 s55, s55, 8192
s_mov_b32 s50, 0x05040100
s_mov_b32 s51, 0x07060302
""")
        a(f"""
s_mul_i32 s59, s3, {WV}
v_mul_u32_u24 v24, {RS}, v1
v_lshl_add_u32 v24, v2, 4, v24
v_add_u32 v24, s59, v24
s_mov_b32 s71, {f2h(1.4426950216293335)}
s_mov_b32 m0, s59
""")
        def uloads():
            a("""buffer_load_dwordx4 v[116:119], v25, s[32:35], s57 offen sc1
s_mov_b32 exec_hi, 0
buffer_load_dword v120, v29, s[32:35], s55 offen sc1
s_mov_b64 exec, -1""")
        early = s.o.get("ae", "SGC")
        for ch in early: {"S": AS, "G": AG, "C": AC}[ch]()
        s.stamp("p2")
        a(f"s_waitcnt vmcnt({nl})")
        s.stamp("p3")
        a("s_cmp_lg_u32 s3, 7\ns_cbranch_scc1 L_a_w\ns_waitcnt vmcnt(5)\nL_a_w:") if False else None
        if s.o.get("bal", 1): a(f"s_cmp_eq_u32 s67, 0\ns_cbranch_scc1 L_bal0\ns_setprio {s.o.get('ap', 1) + 1}\nL_bal0:")
        s.stamp(2); s.stamp("k0")
        if s.o.get("stop"): a("s_branch L_exit")
        s.exp2_bf16([(31, 114, 34), (32, 4, 36)])
        a(f"""
v_mul_f32 v33, v5, v31             ; zi
v_mul_f32 v32, v32, v31            ; -zr
v_mul_f32 v33, 0.15915494, v33     ; revolutions
v_mul_f32 v32, {f2h(-1.4426950408889634)}, v32     ; zr*log2e
v_add_f32 v31, v31, v31
v_mul_f32 v35, {f2h(8.0)}, v33
v_mul_f32 v37, {f2h(128.0)}, v33
v_mul_f32 v34, {f2h(8.0)}, v32
v_mul_f32 v36, {f2h(128.0)}, v32
v_fract_f32 v35, v35
v_fract_f32 v37, v37
v_fract_f32 v33, v33
v_exp_f32 v34, v34
v_cos_f32 v58, v35
v_sin_f32 v59, v35
v_exp_f32 v36, v36
v_cos_f32 v60, v37
v_sin_f32 v61, v37
v_exp_f32 v32, v32
v_cos_f32 v56, v33
v_sin_f32 v57, v33
v_mul_f32 v42, v6, v31
v_mul_f32 v43, v7, v31             ; G0 = 2C dt
v_mul_f32 v58, v58, v34
v_mul_f32_e64 v59, v59, -v34       ; conj E8
v_mul_f32 v60, v60, v36
v_mul_f32 v61, v61, v36
v_mul_f32 v56, v56, v32
v_mul_f32 v57, v57, v32
""")
        s.stamp("k1")
        E1, E8, E128, E2, E4 = 56, 58, 60, 38, 40
        pkr = [54, 55, 62, 63, 4, 5, 6, 7]
        st = {"k": 0}
        def emit(lst):
            ps = []
            for x, buf, row in lst:
                p = pkr[st["k"] % 8]; st["k"] += 1; ps.append(p)
                a(f"v_cvt_pk_bf16_f32 v{p}, v{x}, v{x+1}")
            for p, (x, buf, row) in zip(ps, lst):
                a(f"ds_write_addtid_b32 v{p} offset:{buf*BUF + row*RS}")
        X0, X1, XV, XW, T0, T1, T2, T3 = 42, 44, 46, 32, 48, 50, 52, 108
        GA, GB = 34, 36
        E16 = 110
        a(f"v_mov_b32 v7, 0x3f80\nds_write_addtid_b32 v7 offset:0")
        s.cmuls([(X1, X0, E128, T1), (E16, E8, E8, T2)])
        emit([(E8, 0, 1), (X0, 1, 0)])
        s.cmuls([(GA, X1, E128, T0), (XW, E16, E8, T3), (XV, E16, E16, T2)])
        emit([(X1, 1, 8), (E16, 0, 2), (XW, 0, 3), (XV, 0, 4)])
        for j in range(1, 8):
            l = [(X0, X0, E1, T0), (X1, X1, E1, T1)]
            e = [(X0, 1, j), (X1, 1, 8 + j)]
            if j <= 6: l.append((XW, XW, E16, T3)); e.append((XW, 0, 3 + 2*j))
            if j <= 5: l.append((XV, XV, E16, T2)); e.append((XV, 0, 4 + 2*j))
            if j == 6: l.append((E2, E1, E1, T2))
            if j == 7: l += [(GB, GA, E128, T2), (E4, E2, E2, T3)]
            s.cmuls(l); emit(e)
        s.stamp("k2")
        if s.o.get("bal", 1): a(f"s_setprio {s.o.get('ap', 1)}")
        a("s_waitcnt lgkmcnt(0)")
        s.stamp("k3")
        for ks in range(4): a(f"ds_read_b128 {V(64+4*ks,4)}, v24 offset:{64*ks}")
        for ks in range(4): a(f"ds_read_b128 {V(80+4*ks,4)}, v24 offset:{BUF+64*ks}")
        s.cmuls([(X0, GA, E2, T0), (X1, GB, E2, T1), (XV, GB, E128, T2), (E16, E128, E128, T3)])
        a("s_waitcnt lgkmcnt(4)")
        emit([(GA, 0, 0), (GB, 0, 4), (X0, 0, 1), (X1, 0, 5), (XV, 0, 8)])
        s.cmuls([(X0, X0, E2, T0), (X1, X1, E2, T1), (XW, XV, E128, T2), (GA, XV, E4, T3)])
        a("s_waitcnt lgkmcnt(5)")
        for ks in range(4): s.mfma(96, 80+4*ks, 64+4*ks, None if ks == 0 else 96)
        emit([(X0, 0, 2), (X1, 0, 6), (XW, 0, 10), (GA, 0, 9)])
        s.stamp("k4")
        ug = s.o.get("ug", 0) and not s.o.get("aonly")
        a("s_waitcnt vmcnt(0)")
        s.nonce_get(115)
        s.cmuls([(X0, X0, E2, T0), (X1, X1, E2, T1), (XV, XV, E16, T2), (GA, XW, E4, T3)])
        emit([(X0, 0, 3), (X1, 0, 7), (XV, 0, 12), (GA, 0, 11)])
        s.cmuls([(XW, XW, E16, T0), (GA, XV, E4, T1), (XV, XV, E16, T2)])
        emit([(XW, 0, 14), (GA, 0, 13), (XV, 1, 0)])
        s.cmuls([(GB, XW, E4, T0), (XW, XW, E16, T1), (XV, XV, E16, T2)])
        emit([(GB, 0, 15), (XW, 1, 1), (XV, 1, 2)])
        s.stamp("k5")
        if s.o.get("ul", 1) == 2: uloads()
        a("s_waitcnt lgkmcnt(2)")
        for ks in range(4): a(f"ds_read_b128 {V(80+4*ks,4)}, v24 offset:{64*ks}")
        for h in range(3):
            s.cmuls([(XW, XW, E16, T0), (XV, XV, E16, T1)])
            emit([(XW, 1, 3 + 2*h), (XV, 1, 4 + 2*h)])
            if h == 1:
                a("s_waitcnt lgkmcnt(4)")
                for ks in range(4): s.mfma(100, 80+4*ks, 64+4*ks, None if ks == 0 else 100)
        a("s_waitcnt lgkmcnt(0)")
        for ks in range(4): a(f"ds_read_b128 {V(80+4*ks,4)}, v24 offset:{BUF+64*ks}")
        s.stamp("k6")
        if s.o.get("ul", 1) == 3: uloads()
        a("v_add_u32 v32, s59, v25")
        a(f"ds_write_b128 v32, v[96:99]\nds_write_b128 v32, v[100:103] offset:1024")
        a("s_waitcnt lgkmcnt(2)")
        for ks in range(4): s.mfma(104, 80+4*ks, 64+4*ks, None if ks == 0 else 104)
        a(f"ds_write_b128 v32, v[104:107] offset:2048")
        s.stamp(8); s.stamp("k7"); s.stamp("p4")
        for ch in "SC":
            if ch not in early: {"S": AS, "C": AC}[ch]()
        a("s_waitcnt lgkmcnt(0)\ns_barrier")
        a(f"s_setprio {s.o.get('pe', 3)}")
        s.stamp(3); s.stamp("k8"); s.stamp("e0")
        if s.o.get("ul", 1) == 0: uloads()
        a(f"""
s_cmp_eq_u32 s68, 3
s_cbranch_scc1 L_zp
s_lshl_b32 s72, s68, 10
s_mul_i32 s73, s67, {4*WV}
s_add_u32 s72, s72, s73
v_add_u32 v32, s72, v25
ds_read_b128 v[96:99], v32
ds_read_b128 v[100:103], v32 offset:{WV}
ds_read_b128 v[104:107], v32 offset:{2*WV}
ds_read_b128 v[80:83], v32 offset:{3*WV}
s_waitcnt lgkmcnt(2)
v_pk_add_f32 v[96:97], v[96:97], v[100:101]
v_pk_add_f32 v[98:99], v[98:99], v[102:103]
s_waitcnt lgkmcnt(0)
v_pk_add_f32 v[104:105], v[104:105], v[80:81]
v_pk_add_f32 v[106:107], v[106:107], v[82:83]
v_pk_add_f32 v[96:97], v[96:97], v[104:105]
v_pk_add_f32 v[98:99], v[98:99], v[106:107]
v_cvt_pk_bf16_f32 v96, v96, v97
v_cvt_pk_bf16_f32 v98, v98, v99
ds_write_b16 v20, v96
ds_write_b16_d16_hi v21, v96
ds_write_b16 v22, v98
ds_write_b16_d16_hi v23, v98
s_branch L_zpd
L_zp:
v_mov_b32 v96, 0
v_mov_b32 v97, 0
v_mov_b32 v98, 0
v_mov_b32 v99, 0
s_mul_i32 s72, s67, {KCH}
s_add_u32 s72, s72, {KC + 2*(0x4501 - KB)}
v_mov_b32 v33, s72
ds_write_b16 v33, v96
s_mul_i32 s72, s67, {CHU}
s_add_u32 s72, s72, {UA}
v_add_u32 v33, s72, v25
s_mov_b64 exec, 0x3fffffff
ds_write_b128 v33, v[96:99]          ; zero pad in front of u
s_mov_b64 exec, -1
v_lshrrev_b32 v64, 1, v3
v_mul_u32_u24 v64, 4160, v64
v_and_b32 v65, 1, v3
v_lshl_add_u32 v64, v65, 4, v64
s_add_u32 s72, s69, {KCP + 4096}
v_add_u32 v64, s72, v64""")
        if ug: s.g_wait("u", "s66", wave=7)
        a("L_zpd:")
        if s.o.get("ul", 1) == 1 and not ug: uloads()
        if "G" not in early: AG()
        a("s_waitcnt lgkmcnt(0)")
        s.stamp("e1")
        a("s_barrier")
        s.stamp("e2")
        if ug: uloads()
        for e in range(9): a(f"ds_read_u16 v{32+e}, v{8+e}")
        a(f"""
s_cmp_lg_u32 s68, 3
s_cbranch_scc1 L_nzt
s_mov_b64 exec, 0xf
ds_write_b128 v64, v[96:99]
s_mov_b64 exec, -1
L_nzt:
s_waitcnt lgkmcnt(0)
""")
        for cp in range(2):
            for j in range(4):
                x = cp + 2*j
                a(f"v_lshl_or_b32 v{48+4*cp+j}, v{33+x}, 16, v{32+x}")
            a(f"ds_write_b128 v26, {V(48+4*cp,4)} offset:{4160*cp}")
        s.stamp("e3")
        a("s_branch L_chk_u\nL_poll_u:")
        uloads()
        a("L_chk_u:\ns_waitcnt vmcnt(0)")
        s.check("u", [(119, 25, "s57", 12, "s[28:29]"), (120, 29, "s55", 0, "s[52:53]")])
        s.stamp(4); s.stamp("e4")
        a(f"""v_perm_b32 v56, v117, v116, s50
v_perm_b32 v57, v119, v118, s50
v_perm_b32 v58, v117, v116, s51
v_perm_b32 v59, v119, v118, s51
s_andn2_b64 exec, -1, s[28:29]
ds_write_b64 v30, v[56:57]
ds_write_b64 v30, v[58:59] offset:{CHU}
s_mov_b64 exec, s[28:29]
ds_write_b32 v30, v56
ds_write_b16 v30, v57 offset:4
ds_write_b32 v30, v58 offset:{CHU}
ds_write_b16 v30, v59 offset:{CHU+4}
s_mov_b64 exec, s[30:31]
ds_write_b16 v113, v120
ds_write_b16_d16_hi v113, v120 offset:{CHU}
s_mov_b64 exec, -1
s_waitcnt lgkmcnt(0)
s_barrier""")
        fill_w = f"""v_lshrrev_b32 v4, 1, v1
v_and_b32 v4, 3, v4
v_xor_b32 v4, v4, v2
v_lshlrev_b32 v4, 4, v4
v_lshl_add_u32 v4, v1, 6, v4
s_lshl_b32 s64, s3, 13
s_add_u32 s65, s64, {XP[1] - 8192}
s_cmp_eq_u32 s3, 0
s_cselect_b32 s64, 0, s65
v_add_u32 v4, s64, v4""".split("\n")
        fill_r = f"""v_lshrrev_b32 v5, 3, v3
v_xor_b32 v5, v5, v3
v_and_b32 v5, 3, v5
v_lshlrev_b32 v5, 4, v5
v_and_b32 v6, 0x3c, v3
v_lshl_add_u32 v5, v6, 4, v5
s_lshl_b32 s64, s3, 10
v_add_u32 v5, s64, v5
v_lshrrev_b32 v6, 2, v3
v_mul_u32_u24 v6, 14336, v6
v_and_b32 v7, 3, v3
v_lshl_add_u32 v6, v7, 4, v6
s_mul_i32 s64, s3, {16*14336}
s_lshl_b32 s65, s66, 6
s_add_u32 s64, s64, s65
s_add_u32 s64, s64, {YT}
v_cmp_eq_u32 s[56:57], 3, v7
v_mov_b32 v11, s60
v_and_b32 v9, 7, v1
v_and_b32 v12, 1, v2
v_lshl_add_u32 v9, v12, 3, v9
v_lshrrev_b32 v12, 1, v9
v_and_b32 v12, 3, v12
v_xor_b32 v12, 3, v12
v_lshlrev_b32 v12, 4, v12
v_lshl_add_u32 v9, v9, 6, v12
s_lshl_b32 s72, s3, 10
s_add_u32 s72, s72, 12
v_add_u32 v9, s72, v9
v_mul_u32_u24 v10, 14336, v2
v_lshl_add_u32 v10, v1, 2, v10
s_mul_i32 s72, s3, {2*14336}
s_add_u32 s65, s65, s72
s_add_u32 s65, s65, {YT + 128*14336}""".split("\n")
        if s.o.get("sa"): a(f"s_sleep {s.o['sa']}")
        s.stamp(5); s.stamp("e5")
        a(f"s_setprio {s.o.get('pc', 1)}")
        a("s_cmp_lt_u32 s3, 4\ns_cbranch_scc1 L_conv")
        a("\n".join(fill_r))
        s.stamp(6); s.stamp("e6")
        a("s_branch L_tC\nL_conv:")
        filler = fill_w + fill_r
        free = [64 + 4*i for i in range(16)]
        Areg, Breg = {}, {}
        pend = []
        q = []
        exports = []
        NC = 4
        def assign(cl, d):
            off = 64 * (NC - 1 - cl)
            ra = free.pop(0); rb = free.pop(0)
            Areg[(cl, d)] = ra; Breg[(cl, d)] = rb
            q.append(((cl, d), f"ds_read_b128 {V(rb,4)}, v28 offset:{512*d + off}"))
            vb = (27, 17, 18, 19)[(7 - d) >> 1]; o = 128 * ((7 - d) & 1) + off // 4
            q.append(((cl, d), f"ds_read2_b32 {V(ra,2)}, v{vb} offset0:{o} offset1:{o+1}"))
            q.append(((cl, d), f"ds_read2_b32 {V(ra+2,2)}, v{vb} offset0:{o+2} offset1:{o+3}"))
        def issue1():
            k, t = q.pop(0); a(t); pend.append(k)
        def wait(cl, d):
            while any(k == (cl, d) for k, _ in q): issue1()
            if (cl, d) in pend:
                idx = max(i for i, k in enumerate(pend) if k == (cl, d))
                a(f"s_waitcnt lgkmcnt({len(pend) - 1 - idx})")
                del pend[:idx + 1]
        first = set(); n = [0]
        left = {T: (T + 1) * NC for T in range(8)}
        def export(T):
            a(f"ds_write_b128 v4, {V(32+4*T,4)} offset:{1024*T}"); pend.append("x")
        def mm(cl, p, qq):
            T = p + qq
            s.mfma(32 + 4*T, Areg[(cl, p)], Breg[(cl, qq)], None if T not in first else 32 + 4*T)
            first.add(T); n[0] += 1
            left[T] -= 1
            if left[T] == 0: exports.append((n[0] + 5, T))
            if q and len(pend) < 15: issue1()
            elif exports and exports[0][0] <= n[0] and len(pend) < 15: export(exports.pop(0)[1])
            elif filler:
                a(filler.pop(0))
                while filler and filler[0].startswith("s_"): a(filler.pop(0))
        todo = [(cl, d) for cl in range(NC) for d in range(8)]
        def refill():
            while todo and len(free) >= 2: assign(*todo.pop(0))
        refill()
        for _ in range(9): issue1()
        for cl in range(NC):
            for d in range(8):
                wait(cl, d)
                prs = [(d, j) for j in range(d) if d + j <= 7] + [(j, d) for j in range(d) if d + j <= 7]
                if 2*d <= 7: prs.append((d, d))
                if cl == NC - 1: prs.sort(key=lambda x: x[0] + x[1])
                for p, qq in prs: mm(cl, p, qq)
                if d >= 4:
                    for k in (7 - d, d):
                        free.append(Areg[(cl, k)]); free.append(Breg[(cl, k)])
                    refill()
        assert not todo and not q and not filler
        s.stamp(6); s.stamp("e6")
        for _, T in exports: export(T)
        a("L_tC:\ns_waitcnt lgkmcnt(0)")
        s.stamp("e7")
        a("s_barrier")
        s.stamp("e8")
        for qq in range(4): a(f"ds_read_b128 {V(64+8*qq,4)}, v5 offset:{XP[qq]}")
        for qq in range(4): a(f"ds_read_b32 v{100+qq}, v9 offset:{XP[qq]}")
        def add4(d, x):
            a(f"v_pk_add_f32 {V(d,2)}, {V(d,2)}, {V(x,2)}\nv_pk_add_f32 {V(d+2,2)}, {V(d+2,2)}, {V(x+2,2)}")
        a("s_waitcnt lgkmcnt(0)" if s.o.get("yh", 1) == 0 else "s_waitcnt lgkmcnt(4)")
        if s.o.get("yh", 1) == 0: s.hint_send("y", "s66")
        add4(64, 72); add4(80, 88)
        for r in range(4): a(f"v_cvt_pk_bf16_f32 v{96+r}, v{64+r}, v{80+r}")
        a("""v_cndmask_b32 v99, v99, v11, s[56:57]
buffer_store_dwordx4 v[96:99], v6, s[32:35], s64 offen sc1""")
        if s.o.get("yh", 1) == 1:
            a("s_waitcnt lgkmcnt(0)")
            s.hint_send("y", "s66")
        if s.o.get("yh", 1) == 2: a("s_waitcnt lgkmcnt(0)")
        a("""v_add_f32 v100, v100, v101
v_add_f32 v102, v102, v103
v_cvt_pk_bf16_f32 v100, v100, v102
v_cndmask_b32 v100, v100, v11, s[62:63]
s_mov_b32 exec_hi, 0
buffer_store_dword v100, v10, s[32:35], s65 offen sc1
s_mov_b64 exec, -1""")
        if s.o.get("yh", 1) == 2: s.hint_send("y", "s66")
        s.stamp(7); s.stamp("e9")
    def table(s):
        T = tables.b_tables()
        buf = np.zeros(TB_SIZE // 4, np.uint32)
        for n, off in TB.items(): buf[off // 4: off // 4 + 256] = T[n].reshape(-1)
        out = [".p2align 8", ".type L_tbl,@object", "L_tbl:"]
        for i in range(0, len(buf), 8):
            out.append(".long " + ",".join(("0x%x" % x) if x else "0" for x in buf[i:i + 8]))
        out.append("L_tbl_end:")
        out.append(f".size L_tbl, {TB_SIZE}")
        return "\n".join(out)
    def build(s):
        a = s.a
        hdr = open("concat_heads__ssm_conv_s4d__spectral_gfnet__prompt.s.ref").read().split("; Override launch")[0]
        a.raw(hdr + f"; @launch grid=({NWG},1,1) block=(512,1,1) lds={LDS_BYTES}")
        a.raw(f'.amdgcn_target "amdgcn-amd-amdhsa--gfx950"\n.text\n.globl {KNAME}\n.p2align 8\n.type {KNAME},@function\n{KNAME}:')
        s.entry(); s.row_s1(); s.t_u(); s.column(); s.row_inv(); s.t_y(); s.a_path()
        a("L_exit:")
        s.stamp(9)
        s.stamp_flush()
        a("L_end:\ns_endpgm")
        a.raw(s.table())
        a.raw(f""".section .rodata,"a"
.p2align 6
.amdhsa_kernel {KNAME}
  .amdhsa_next_free_vgpr 128
  .amdhsa_next_free_sgpr 102
  .amdhsa_accum_offset 128
  .amdhsa_group_segment_fixed_size 0
  .amdhsa_kernarg_size 104
  .amdhsa_user_sgpr_count 2
  .amdhsa_user_sgpr_kernarg_segment_ptr 1
  .amdhsa_system_sgpr_workgroup_id_x 1
.end_amdhsa_kernel""")
        return a.text().replace("BPRIO", str(s.o.get("bp", 3))).replace("    REMAP\n", {0: "", 1: "    s_add_u32 s64, s2, 272\n    s_sub_u32 s2, s2, 224\n    s_cselect_b32 s2, s64, s2\n",
            2: "    s_add_u32 s64, s2, 128\n    s_sub_u32 s65, s2, 352\n    s_cmp_lt_u32 s2, 16\n    s_cselect_b32 s64, s2, s64\n    s_cmp_ge_u32 s2, 368\n    s_cselect_b32 s2, s65, s64\n",
            3: """    s_and_b32 s64, s2, 7
    s_lshr_b32 s65, s2, 3
    s_cmp_gt_u32 s64, VX
    s_subb_u32 s66, s64, 0
    s_mul_i32 s67, s65, 7
    s_add_u32 s66, s66, s67
    s_add_u32 s67, s66, 62
    s_cmp_lt_u32 s65, 30
    s_cselect_b32 s66, s66, s67
    s_add_u32 s65, s65, 210
    s_cmp_eq_u32 s64, VX
    s_cselect_b32 s2, s65, s66
""".replace("VX", str(s.o.get("vx", 5)))}[s.o.get("ord", 0)]).replace("    KSTAMP\n", "    s_memrealtime s[92:93]\n" if s.o.get("ks") else "").replace("    AONLY\n", "    s_endpgm\n" if s.o.get("aonly") else "").replace(" NTC", " nt" if s.o.get("ntc") else "").replace(" NTE", " nt" if s.o.get("nte") else "").replace(" NTP", " nt" if s.o.get("ntp") else "").replace(" NTF", " nt" if s.o.get("nt", 0) else "").replace(" NTW", " nt" if s.o.get("ntw", 0) else "").replace(" NTG", " nt" if s.o.get("ntg", 0) else "").replace(" OUTF", (" " + s.o.get("outf", "sc1")))
if __name__ == "__main__":
    out = sys.argv[1]; stamps = len(sys.argv) > 2 and sys.argv[2] == "1"
    opts = json.loads(sys.argv[3]) if len(sys.argv) > 3 else {}
    g = G(stamps, opts); t = g.build(); open(out, "w").write(t)
    print("lines", t.count("\n"), "bytes", len(t), "nops", g.a.nops)
```
